```python
import torch

def _softmax(x, axis=-1):
    return torch.softmax(x, dim=axis)
def _gelu(x):
    return torch.nn.functional.gelu(x, approximate="tanh")
def _silu(x):
    return torch.nn.functional.silu(x)
def _sigmoid(x):
    return torch.sigmoid(x)
def _layernorm(x, axis=-1, eps=1e-5):
    m = x.mean(dim=axis, keepdim=True)
    v = x.var(dim=axis, keepdim=True, unbiased=False)
    return (x - m) / torch.sqrt(v + eps)
def _scatter_add(tgt, idx, src, axis=0):
    return tgt.clone().index_add_(axis, idx, src)
def _segment_sum(src, seg, n):
    out = torch.zeros((n,) + src.shape[1:], dtype=src.dtype)
    return out.index_add_(0, seg, src)
def _pad(x, pw):
    flat = tuple(v for pair in reversed(pw) for v in pair)
    return torch.nn.functional.pad(x, flat)

kernel_name = 'sequential_preLN__sliding_local_dilated__dense_activation_gelu__prompt'

def setup_inputs():

    _w = (lambda a: (lambda t: t.to(torch.bfloat16) if t.is_floating_point() else t)(torch.as_tensor(a)))
    def _A_setup():
        B, S, D = 1, 2048, 512
        return {
            "x": _w((lambda *s: torch.randn(*s, dtype=torch.bfloat16) * 0.05)(B, S, D)),
            "wqkv": _w((lambda *s: torch.randn(*s, dtype=torch.bfloat16) * 0.05)(D, 3 * D)),
            "wo": _w((lambda *s: torch.randn(*s, dtype=torch.bfloat16) * 0.05)(D, D)),
        }
    _A_in = _A_setup()

    def _B_setup():
        B, S, D, F = 1, 2048, 512, 1792
        return {
            "x": _w((lambda *s: torch.randn(*s, dtype=torch.bfloat16) * 0.05)(B, S, D)),
            "w1": _w((lambda *s: torch.randn(*s, dtype=torch.bfloat16) * 0.8)(D, F) * (D ** -0.5)),
            "b1": _w((lambda *s: torch.randn(*s, dtype=torch.bfloat16) * 0.8)(F) * 0.01),
            "w2": _w((lambda *s: torch.randn(*s, dtype=torch.bfloat16) * 0.8)(F, D) * (F ** -0.5)),
            "b2": _w((lambda *s: torch.randn(*s, dtype=torch.bfloat16) * 0.8)(D) * 0.01),
        }
    _B_in = _B_setup()

    return {
        "A_x": _A_in["x"],
        "A_wqkv": _A_in["wqkv"],
        "A_wo": _A_in["wo"],
        "B_x": _B_in["x"],
        "B_w1": _B_in["w1"],
        "B_b1": _B_in["b1"],
        "B_w2": _B_in["w2"],
        "B_b2": _B_in["b2"],
    }

def reference(A_x, A_wqkv, A_wo, B_x, B_w1, B_b1, B_w2, B_b2):
    def _A_ref(x, wqkv, wo):
        B, S, D = x.shape
        H = 32; Dh = D // H
        W, dil = 8, 2
        qkv = (lambda x, *d: x.permute(*d))((x @ wqkv).reshape(B, S, 3, H, Dh), 2, 0, 3, 1, 4)
        q, k, v = qkv[0], qkv[1], qkv[2]
        scale = Dh ** -0.5
        pos = torch.arange(S)
        off = torch.arange(W) * dil
        idx = pos[:, None] - off[None, :]
        mask = idx >= 0
        idx_c = torch.where(mask, idx, 0).reshape(-1)
        kg = k[:, :, idx_c, :].reshape(B, H, S, W, Dh)
        vg = v[:, :, idx_c, :].reshape(B, H, S, W, Dh)
        logits = torch.einsum("bhsd,bhswd->bhsw", q, kg) * scale
        logits = torch.where(mask[None, None, :, :], logits, -1e9)
        attn = _softmax(logits, axis=-1)
        o = torch.einsum("bhsw,bhswd->bhsd", attn, vg)
        return (lambda x, *d: x.permute(*d))(o, 0, 2, 1, 3).reshape(B, S, D) @ wo

    def _B_ref(x, w1, b1, w2, b2):
        h = torch.einsum("bsd,df->bsf", x, w1) + b1
        h = _gelu(h)
        return torch.einsum("bsf,fd->bsd", h, w2) + b2

    x = A_x
    h = x + _A_ref(_layernorm(x, axis=-1), A_wqkv, A_wo)
    h2 = h + _B_ref(_layernorm(h, axis=-1), B_w1, B_b1, B_w2, B_b2)
    return h2
```

```python
import re

REG_RE = re.compile(r'^(-|abs\()?\s*([vas])(?:\[(\d+):(\d+)\]|(\d+))\)?$')

def parse_reg(tok):
    t = tok.strip()
    if t in ("vcc", "exec", "m0", "scc"):
        return [(t, 0)]
    if t in ("vcc_lo", "vcc_hi"):
        return [("vcc", 0)]
    if t in ("exec_lo", "exec_hi"):
        return [("exec", 0)]
    m = REG_RE.match(t)
    if not m:
        return []
    k = m.group(2)
    if m.group(3) is not None:
        return [(k, i) for i in range(int(m.group(3)), int(m.group(4)) + 1)]
    return [(k, int(m.group(5)))]

def split_ops(s):
    ops, depth, cur = [], 0, ""
    for ch in s:
        if ch in "[(": depth += 1
        if ch in "])": depth -= 1
        if ch == "," and depth == 0:
            ops.append(cur.strip()); cur = ""
        else:
            cur += ch
    if cur.strip(): ops.append(cur.strip())
    return ops

TRANS = ("v_exp_f32", "v_log_f32", "v_rcp_f32", "v_rsq_f32", "v_sqrt_f32", "v_sin_f32", "v_cos_f32")

class Ins:
    __slots__ = ("text", "mn", "ops", "mods", "defs", "uses", "kind", "tag", "passes", "srcc", "srcab", "sdata", "comment")
    def __init__(self, text, tag=None):
        self.text = text.strip()
        self.tag = tag
        self.defs, self.uses = set(), set()
        self.kind = "other"
        self.passes = 0
        self.srcc = set(); self.srcab = set(); self.sdata = set()
        t = self.text.split(";")[0].strip()
        if not t or t.endswith(":") or t.startswith("."):
            self.mn = ""; self.ops = []; self.mods = ""
            self.kind = "label" if t.endswith(":") else "none"
            return
        parts = t.split(None, 1)
        self.mn = mn = parts[0]
        rest = parts[1] if len(parts) > 1 else ""
        ops = split_ops(rest)
        self.mods = ""
        if ops:
            last = ops[-1].split()
            if len(last) > 1 and not mn.startswith("s_waitcnt"):
                ops[-1] = last[0]; self.mods = " ".join(last[1:])
        self.ops = ops
        R = [parse_reg(o) for o in ops]
        D, U = self.defs, self.uses
        def d(i): D.update(R[i])
        def u(*idx):
            for i in idx:
                if i < len(R): U.update(R[i])
        n = len(ops)
        if mn.startswith("v_mfma"):
            self.kind = "mfma"
            self.passes = 8 if "32x32" in mn else 4
            d(0); u(1, 2, 3)
            self.srcab = set(R[1]) | set(R[2]); self.srcc = set(R[3])
        elif mn.startswith("ds_read") or mn.startswith("ds_bpermute") or mn.startswith("ds_swizzle"):
            self.kind = "ds"; d(0); u(*range(1, n))
        elif mn.startswith("ds_write"):
            self.kind = "ds"; u(*range(n))
            for i in range(1, n): self.sdata.update(R[i])
        elif mn.startswith("buffer_load") or mn.startswith("global_load"):
            self.kind = "vm"
            if "lds" in self.mods.split() or mn.startswith("global_load_lds"):
                u(*range(n)); U.add(("m0", 0)); self.kind = "vmdma"
            else:
                d(0); u(*range(1, n))
        elif mn.startswith("buffer_store") or mn.startswith("global_store"):
            self.kind = "vmst"; u(*range(n))
            di = 0 if mn.startswith("buffer_store") else 1
            if "x4" in mn or "x3" in mn: self.sdata = set(R[di])
        elif mn.startswith("buffer_atomic") or mn.startswith("global_atomic"):
            self.kind = "vm"; u(*range(n))
            if "sc0" in self.mods.split(): d(0)
        elif mn in ("buffer_wbl2", "buffer_inv"):
            self.kind = "vmst"
        elif mn.startswith("s_load") or mn.startswith("s_memtime") or mn.startswith("s_memrealtime"):
            self.kind = "smem"; d(0); u(*range(1, n))
        elif mn == "s_waitcnt":
            self.kind = "wait"
        elif mn == "s_nop":
            self.kind = "nop"
        elif mn == "s_barrier":
            self.kind = "barrier"
        elif mn.startswith("s_cbranch") or mn == "s_branch" or mn == "s_endpgm":
            self.kind = "branch"
            if "vcc" in mn: U.add(("vcc", 0))
            if "scc" in mn: U.add(("scc", 0))
            if "exec" in mn: U.add(("exec", 0))
        elif mn.startswith("s_cmp") or mn.startswith("s_bitcmp"):
            self.kind = "salu"; u(*range(n)); D.add(("scc", 0))
        elif mn in ("s_sleep", "s_setprio"):
            self.kind = "salu"
        elif mn.startswith("s_"):
            self.kind = "salu"; d(0); u(*range(1, n))
            if mn.startswith(("s_add", "s_sub", "s_and", "s_or", "s_xor", "s_lshl", "s_lshr", "s_ashr", "s_min", "s_max", "s_andn2", "s_not", "s_bfe", "s_abs")):
                D.add(("scc", 0))
            if mn.startswith(("s_cselect", "s_addc", "s_subb")): U.add(("scc", 0))
            if "saveexec" in mn: D.add(("exec", 0)); U.add(("exec", 0))
        elif mn.startswith("v_"):
            self.kind = "valu"
            if mn.startswith("v_cmp"):
                d(0); u(*range(1, n))
            elif mn.startswith(("v_readfirstlane", "v_readlane")):
                d(0); u(*range(1, n))
            elif mn.startswith("v_permlane"):
                d(0); d(1); u(0, 1)
            elif mn.startswith(("v_fmac", "v_dot2c", "v_writelane")) or "_dpp" in mn:
                d(0); u(*range(n))
            elif mn.startswith(("v_add_co", "v_sub_co", "v_addc_co", "v_subb_co")):
                d(0); d(1); u(*range(2, n))
            elif mn.startswith("v_cndmask"):
                d(0); u(*range(1, n))
                if n == 3: U.add(("vcc", 0))
            else:
                d(0); u(*range(1, n))
            if mn.startswith(TRANS): self.kind = "trans"
        else:
            raise Exception("unknown instruction: " + text)

    def is_valu(self): return self.kind in ("valu", "trans")

class Prog:
    def __init__(self):
        self.items = []
    def __call__(self, text, tag=None):
        for l in text.split("\n"):
            l = l.strip()
            if l: self.items.append(Ins(l, tag))
        return self
    def add(self, lst):
        for x in lst:
            if isinstance(x, str): self(x)
            elif isinstance(x, tuple) and x and x[0] == "I": self(x[1], x[2])
            else: self.items.append(x)
    def label(self, name): self.items.append(Ins(name + ":"))
    def raw(self, text):
        i = Ins(""); i.text = text; i.kind = "none"; self.items.append(i)
    def comment(self, text): self.raw("; " + text)
    def wait_vm(self, tag): self.items.append(("wait_vm", tag))
    def wait_lgkm0(self): self.items.append(("wait_lgkm0",))
    def side_begin(self): self.items.append(("side_begin",))
    def side_end(self): self.items.append(("side_end",))

def T(text, tag):
    return ("I", text, tag)

def insert_waits(items):
    out = []
    vm, lg = [], []
    stack = []
    stats = {"vmmax": 0}
    def emit_wait(nvm=None, nlg=None):
        parts = []
        if nvm is not None:
            nvm = min(nvm, 62); parts.append(f"vmcnt({nvm})"); del vm[:max(0, len(vm) - nvm)]
        if nlg is not None:
            nlg = min(nlg, 14); parts.append(f"lgkmcnt({nlg})"); del lg[:max(0, len(lg) - nlg)]
        out.append(Ins("s_waitcnt " + " ".join(parts)))
    for it in items:
        if isinstance(it, tuple):
            if it[0] == "wait_vm":
                tags = it[1] if isinstance(it[1], (list, set, tuple)) else [it[1]]
                idx = max([i for i, o in enumerate(vm) if o["tag"] in tags], default=-1)
                if idx >= 0: emit_wait(nvm=len(vm) - 1 - idx)
            elif it[0] == "wait_lgkm0":
                if lg: emit_wait(nlg=0)
            elif it[0] == "assume_vm":
                vm[:] = [{"defs": set(), "tag": t, "kind": "vmdma", "id": -k} for k, t in enumerate(it[1], 1)]
            elif it[0] == "side_begin":
                stack.append(([dict(o) for o in vm], [dict(o) for o in lg]))
            elif it[0] == "side_end":
                svm, slg = stack.pop()
                assert all(any(o["id"] == p["id"] for p in slg) or not o["defs"] for o in lg), "side region left lgkm loads outstanding"
                assert all(any(o["id"] == p["id"] for p in svm) or not o["defs"] for o in vm), "side region left vm loads outstanding"
                vm[:] = svm; lg[:] = slg
            continue
        ins = it
        if ins.kind == "wait":
            m = re.search(r"vmcnt\((\d+)\)", ins.text)
            if m: del vm[:max(0, len(vm) - int(m.group(1)))]
            m = re.search(r"lgkmcnt\((\d+)\)", ins.text)
            if m: del lg[:max(0, len(lg) - int(m.group(1)))]
            out.append(ins); continue
        touched = ins.defs | ins.uses
        if touched:
            nvm = nlg = None
            isvm = ins.kind in ("vm",)
            isds = ins.kind == "ds"
            for i, o in enumerate(vm):
                if o["defs"] & ins.uses or (o["defs"] & ins.defs and not isvm):
                    nvm = len(vm) - 1 - i
            smem_pending = any(o["kind"] == "smem" for o in lg)
            for i, o in enumerate(lg):
                if o["defs"] & ins.uses or (o["defs"] & ins.defs and not (isds and o["kind"] == "ds")):
                    nlg = 0 if smem_pending else len(lg) - 1 - i
            if nvm is not None or nlg is not None: emit_wait(nvm, nlg)
        out.append(ins)
        if ins.kind in ("vm", "vmdma", "vmst"):
            vm.append({"defs": set(ins.defs) if ins.kind == "vm" else set(), "tag": ins.tag, "kind": ins.kind, "id": id(ins)})
            stats["vmmax"] = max(stats["vmmax"], len(vm))
        elif ins.kind in ("ds", "smem"):
            lg.append({"defs": set(ins.defs), "tag": ins.tag, "kind": ins.kind, "id": id(ins)})
    return out, stats

def only_v(s): return {r for r in s if r[0] in ("v", "a")}
def only_s(s): return {r for r in s if r[0] in ("s", "vcc")}

def required_gap(p, c):
    g = 0
    pv = only_v(p.defs)
    if p.is_valu():
        if c.kind == "mfma" and pv & c.uses: g = max(g, 2)
        if p.kind == "trans" and c.kind in ("valu",) and pv & c.uses: g = max(g, 1)
        if c.mn.startswith("v_permlane") and pv & c.uses: g = max(g, 2)
        if "_dpp" in c.mn and pv & c.uses: g = max(g, 2)
        if c.mn.startswith(("v_readlane", "v_readfirstlane")) and pv & c.uses: g = max(g, 1)
        ps = only_s(p.defs)
        if ps:
            if c.is_valu() and ps & c.uses: g = max(g, 4 if c.mn.startswith(("v_readlane", "v_writelane")) else 2)
            if c.kind in ("vm", "vmdma", "vmst") and ps & c.uses: g = max(g, 5)
            if c.kind == "salu" and ps & c.uses: g = max(g, 1)
    if p.kind == "mfma":
        P = p.passes
        if c.kind == "mfma":
            if pv & c.srcab: g = max(g, P + 4)
            ov = pv & c.srcc
            if ov:
                if not (only_v(c.srcc) == pv and c.passes == P): g = max(g, P + 2)
            if pv & only_v(c.defs) and not (only_v(c.defs) == pv and c.passes == P and ov): g = max(g, P + 2)
        elif c.is_valu():
            if pv & (c.uses | c.defs): g = max(g, P + 4)
        elif c.kind in ("ds", "vm", "vmdma", "vmst"):
            if pv & (c.uses | c.defs): g = max(g, P + 4)
        if c.is_valu() and only_v(p.srcc) & c.defs: g = max(g, P - 1)
    if p.kind == "salu" and ("m0", 0) in p.defs and c.kind == "vmdma": g = max(g, 1)
    if p.kind in ("vmst",) and p.sdata:
        if c.is_valu() and p.sdata & c.defs: g = max(g, 2)
        elif p.sdata & c.defs: g = max(g, 1)
    return g

def insert_nops(items):
    out = []
    hist = []
    stack = []
    WINDOW = 20
    nnops = 0
    for it in items:
        if isinstance(it, tuple):
            if it[0] == "side_begin": stack.append([[i, d] for i, d in hist])
            elif it[0] == "side_end":
                saved = stack.pop()
                ids = {id(i): k for k, (i, d) in enumerate(hist)}
                for i, d in saved:
                    d2 = d + 1
                    if id(i) in ids: hist[ids[id(i)]][1] = min(hist[ids[id(i)]][1], d2)
                    else: hist.append([i, d2])
            continue
        ins = it
        if ins.kind in ("none", "label"):
            out.append(ins); continue
        need = 0
        for p, d in hist:
            g = required_gap(p, ins)
            if g > d: need = max(need, g - d)
        while need > 0:
            k = min(need, 16)
            out.append(Ins(f"s_nop {k-1}")); nnops += k
            for h in hist: h[1] += k
            need -= k
        out.append(ins)
        st = 1
        if ins.kind == "nop": st = int(ins.ops[0]) + 1
        for h in hist: h[1] += st
        hist = [h for h in hist if h[1] < WINDOW]
        if ins.kind in ("valu", "trans", "mfma", "salu", "vmst"): hist.append([ins, 0])
    return out, nnops

def finalize(prog):
    items = []
    marks = []
    w, stats = insert_waits_keep(prog.items)
    o, nn = insert_nops(w)
    stats["nops"] = nn
    return o, stats

def insert_waits_keep(items):
    res = []
    chunk_out = []
    class Mark(Ins):
        pass
    seq = []
    for it in items:
        seq.append(it)
        if isinstance(it, tuple) and it[0] in ("side_begin", "side_end"):
            m = Ins(""); m.kind = "none"; m.text = "@@" + it[0]; seq.append(m)
    out, stats = insert_waits(seq)
    for o in out:
        if o.kind == "none" and o.text.startswith("@@"): res.append((o.text[2:],))
        else: res.append(o)
    return res, stats

def render(items):
    lines = []
    for i in items:
        if i.kind == "label": lines.append(i.text)
        elif i.kind == "none": lines.append(i.text)
        else: lines.append("    " + i.text)
    return "\n".join(lines) + "\n"

def interleave(main, fillers, per_gap):
    out = []
    fi = 0
    for i, m in enumerate(main):
        out.append(m)
        n = per_gap(i) if callable(per_gap) else per_gap
        for _ in range(n):
            if fi < len(fillers): out.append(fillers[fi]); fi += 1
    out.extend(fillers[fi:])
    return out

def spread(main, fillers, start=0, end=None):
    end = len(main) if end is None else end
    n = end - start
    out = list(main[:start])
    k = 0
    for i in range(n):
        out.append(main[start + i])
        tgt = (len(fillers) * (i + 1)) // n
        while k < tgt: out.append(fillers[k]); k += 1
    out.extend(main[end:])
    return out

def zipmerge(*streams):
    out = []
    idx = [0] * len(streams)
    left = sum(len(s) for s in streams)
    while left:
        for k, s in enumerate(streams):
            if idx[k] < len(s): out.append(s[idx[k]]); idx[k] += 1; left -= 1
    return out

class Pool:
    def __init__(self, lo, hi):
        self.free_ = set(range(lo, hi)); self.lo, self.hi = lo, hi; self.high = 0
    def alloc(self, n=1, align=None):
        if align is None: align = 2 if n > 1 else 1
        for b in range(self.lo, self.hi):
            if b % align: continue
            if all((b + i) in self.free_ for i in range(n)):
                for i in range(n): self.free_.discard(b + i)
                self.high = max(self.high, b + n)
                return b
        raise Exception(f"pool exhausted (n={n}, free={len(self.free_)})")
    def take(self, b, n):
        for i in range(n):
            assert (b + i) in self.free_, f"reg {b+i} busy"
            self.free_.discard(b + i)
        self.high = max(self.high, b + n)
        return b
    def free(self, b, n=1):
        for i in range(n):
            assert (b + i) not in self.free_, f"double free {b+i}"
            self.free_.add(b + i)


def spread_pairs(main, pairs, start=0, end=None):
    end = len(main) if end is None else end
    pos = [i for i in range(start, end) if not (isinstance(main[i], tuple) and main[i][0] != "I")]
    n = len(pos)
    out = []
    k = 0
    assign = {}
    for q in range(len(pairs)):
        assign.setdefault(pos[min(n - 1, (q * n) // len(pairs))], []).append(pairs[q])
    for i, m in enumerate(main):
        if i in assign:
            lst = assign[i]
            out.extend(lst[0][0]); out.append(m); out.extend(lst[0][1])
            for pre, post in lst[1:]:
                out.extend(pre); out.extend(post)
        else:
            out.append(m)
    return out
```

```python
from core import *
from kern import *
import kern

L_WO = 94208; L_EX2 = 143360; L_S = 131072
C1 = -2.0 * math.sqrt(2.0 / math.pi) * math.log2(math.e)
C2 = C1 * 0.044715
s_a, s_b, s_c, s_d = 4, 5, 6, 7
s_so = 8; s_so2 = 9
s_4k, s_8k, s_12k = 10, 11, 12
s_i16c = 13
s_cnt = 16
s_b0, s_b1, s_b2 = 20, 21, 22
s_nh, s_sh = 23, 24
s_wg = 25

def setup(p, g):
    V = g.V
    p(f"s_min_u32 s{s_i16c}, s{s_i16}, 13")
    p(f"s_mov_b32 s{s_4k}, 4096"); p(f"s_mov_b32 s{s_8k}, 8192"); p(f"s_mov_b32 s{s_12k}, 12288")
    p(f"s_lshr_b32 s{s_nh}, s{s_w}, 1"); p(f"s_and_b32 s{s_sh}, s{s_w}, 1")
    g.vFl = V.alloc()
    g.vEp = V.alloc(2)
    t = V.alloc()
    p(f"s_lshl_b32 s{s_a}, s{s_R}, 10")
    p(f"s_add_u32 s{s_a}, s{s_a}, {WS_FL}")
    p(f"v_and_b32 v{t}, 15, v0")
    p(f"v_lshlrev_b32 v{t}, 3, v{t}")
    p(f"v_add_u32 v{g.vFl}, s{s_a}, v{t}")
    p(f"v_mov_b32 v{t}, s{s_a}")
    p(f"buffer_load_dwordx2 {vr(g.vEp,2)}, v{t}, {srd(sWS)}, 0 offen offset:768 sc1", "ep")
    p(f"v_and_b32 v{t}, 3, v0")
    p(f"v_lshlrev_b32 v{t}, 7, v{t}")
    p(f"v_add_u32 v{t}, s{s_a}, v{t}")
    p(f"buffer_load_dword v{g.vdummy}, v{t}, {srd(sWS)}, 0 offen", "warm")
    V.free(t)
    g.vWod = V.alloc(); g.vW1d = V.alloc(); g.vW2d = V.alloc()
    t0, t1, t2 = V.alloc(), V.alloc(), V.alloc()
    p(f"v_and_b32 v{t0}, 7, v0")
    p(f"v_lshrrev_b32 v{t1}, 2, v{t0}")
    p(f"v_bfe_u32 v{t2}, v0, 4, 1")
    p(f"v_xor_b32 v{t1}, v{t1}, v{t2}")
    p(f"v_and_b32 v{t0}, 3, v{t0}")
    p(f"v_lshl_add_u32 v{t0}, v{t1}, 2, v{t0}")
    p(f"v_lshlrev_b32 v{t0}, 4, v{t0}")
    p(f"v_lshrrev_b32 v{t1}, 3, v0")
    p(f"v_lshl_add_u32 v{t2}, v{t1}, 10, v{t0}")
    p(f"s_lshl_b32 s{s_a}, s{s_j}, 7")
    p(f"v_add_u32 v{g.vW2d}, s{s_a}, v{t2}")
    p(f"s_lshl_b32 s{s_a}, s{s_w}, 13")
    p(f"v_add_u32 v{g.vWod}, s{s_a}, v{g.vW2d}")
    p(f"v_mul_u32_u24 v{t1}, 3584, v{t1}")
    p(f"v_add_u32 v{t1}, v{t1}, v{t0}")
    p(f"s_mul_i32 s{s_a}, s{s_w}, {8*3584}")
    p(f"s_lshl_b32 s{s_b}, s{s_i16c}, 8")
    p(f"s_add_u32 s{s_a}, s{s_a}, s{s_b}")
    p(f"v_add_u32 v{g.vW1d}, s{s_a}, v{t1}")
    for r in (t0, t1, t2): V.free(r)
    g.vB1 = V.alloc(4); g.vB2 = V.alloc(8)
    t0, t1 = V.alloc(), V.alloc()
    p(f"v_and_b32 v{t0}, 31, v0")
    p(f"v_lshlrev_b32 v{t0}, 1, v{t0}")
    p(f"s_lshl_b32 s{s_a}, s{s_i16c}, 8")
    p(f"v_add_u32 v{t0}, s{s_a}, v{t0}")
    for nt in range(4):
        p(f"global_load_ushort v{g.vB1+nt}, v{t0}, {sp(sB1)} offset:{nt*64}", "b1")
    p(f"v_lshrrev_b32 v{t1}, 5, v0")
    p(f"v_lshlrev_b32 v{t1}, 3, v{t1}")
    p(f"s_lshl_b32 s{s_a}, s{s_j}, 7")
    p(f"s_lshl_b32 s{s_b}, s{s_nh}, 6")
    p(f"s_add_u32 s{s_a}, s{s_a}, s{s_b}")
    p(f"v_add_u32 v{t1}, s{s_a}, v{t1}")
    for q in range(4):
        p(f"global_load_dwordx2 {vr(g.vB2+2*q,2)}, v{t1}, {sp(sB2)} offset:{q*16}", "b2")
    V.free(t0); V.free(t1)

    def pairs():
        out = []
        out.append(([f"s_lshl_b32 s{s_a}, s{s_w}, 10", f"s_add_u32 s{s_b}, s{s_a}, {L_WO}", f"s_mov_b32 s{s_so}, 0"], []))
        for u in range(16):
            out.append(([f"s_add_u32 m0, s{s_b}, {u*4096}"],
                        [T(f"buffer_load_dwordx4 v{g.vWod}, {srd(sWO)}, s{s_so} offen lds", "wo"), f"s_add_u32 s{s_so}, s{s_so}, 32768"]))
        out += w1_pairs(g, 0, range(16)) + w1_pairs(g, 1, range(7))
        return out
    g.p1_prefetch_pairs = pairs

def w1_pairs(g, half, us):
    out = []
    us = list(us)
    out.append(([f"s_lshl_b32 s{s_a}, s{s_w}, 10", f"s_mov_b32 s{s_so2}, {us[0]*4*8*3584}"], []))
    for u in us:
        off = " offset:128" if half else ""
        out.append(([f"s_add_u32 m0, s{s_a}, {half*65536 + u*4096 - (128 if half else 0)}"],
                    [T(f"buffer_load_dwordx4 v{g.vW1d}, {srd(sW1)}, s{s_so2} offen{off} lds", "w1a" if half == 0 else ("w1b1" if u < 7 else "w1b2")),
                     f"s_add_u32 s{s_so2}, s{s_so2}, {4*8*3584}"]))
    return out

def flat(pairs):
    out = []
    for pre, post in pairs: out += pre + post
    return out

def get_nonce(p, g):
    p(f"v_readfirstlane_b32 s{s_nonce}, v{g.vEp}")
    p(f"v_readfirstlane_b32 s{s_nonce+1}, v{g.vEp+1}")
    p(f"s_add_u32 s{s_nonce}, s{s_nonce}, 2")
    p(f"s_or_b32 s{s_nonce}, s{s_nonce}, 1")
    p(f"v_mov_b32 v{g.vEp}, s{s_nonce}")
    p(f"v_mov_b32 v{g.vEp+1}, s{s_nonce+1}")

def signal(p, g, ph, tags):
    V = g.V
    p.wait_vm(tags)
    p.wait_lgkm0()
    p("s_barrier")
    t = V.alloc()
    p(f"s_lshl_b32 s{s_a}, s{s_R}, 10")
    p(f"s_lshl_b32 s{s_b}, s{s_i16}, 3")
    p(f"s_add_u32 s{s_a}, s{s_a}, s{s_b}")
    p(f"s_add_u32 s{s_a}, s{s_a}, {WS_FL}")
    p(f"v_mov_b32 v{t}, s{s_a}")
    p(f"s_cmp_eq_u32 s{s_w}, 0")
    p(f"s_cselect_b64 exec, 1, 0")
    p(f"buffer_store_dwordx2 {vr(g.vEp,2)}, v{t}, {srd(sWS)}, 0 offen offset:{ph*128}", f"flagA{ph}")
    p("s_mov_b64 exec, -1")
    g.vMyFl = t

def wait_flags(p, g, ph, eight):
    V = g.V
    a = V.alloc(2); va = V.alloc()
    L = f"{ph}"
    if eight:
        p(f"s_and_b32 s{s_a}, s{s_i16}, 8")
        p(f"s_lshl_b32 s{s_a}, s{s_a}, 3")
        p(f"v_add_u32 v{va}, s{s_a}, v{g.vFl}")
    else:
        p(f"v_mov_b32 v{va}, v{g.vFl}")
    p(f"s_cmp_lg_u32 s{s_w}, 0")
    p(f"s_cbranch_scc1 L_skip{L}")
    p.side_begin()
    p(f"s_mov_b32 s{s_cnt}, 0")
    p(f"s_mov_b32 s{s_c}, 0")
    p(f"s_mov_b64 exec, {0xff if eight else 0xffff}")
    p.label(f"L_poll{L}")
    p(f"buffer_load_dwordx2 {vr(a,2)}, v{va}, {srd(sWS)}, 0 offen offset:{ph*128} sc1")
    p("s_waitcnt vmcnt(0)")
    p(f"v_cmp_ne_u64 vcc, {sp(s_nonce)}, {vr(a,2)}")
    p(f"s_cbranch_vccz L_ok{L}")
    p(f"s_add_u32 s{s_cnt}, s{s_cnt}, 1")
    p(f"s_cmp_lt_u32 s{s_cnt}, 64")
    p(f"s_cbranch_scc1 L_poll{L}")
    p(f"s_cmp_eq_u32 s{s_c}, 0")
    p(f"s_cbranch_scc0 L_pub{L}")
    p(f"s_mov_b32 s{s_c}, 1")
    p(f"s_mov_b64 exec, 1")
    p(f"buffer_store_dwordx2 {vr(g.vEp,2)}, v{g.vMyFl}, {srd(sWS)}, 0 offen offset:{384 + ph*128} sc1")
    p(f"s_mov_b64 exec, {0xff if eight else 0xffff}")
    p.label(f"L_pub{L}")
    p(f"buffer_load_dwordx2 {vr(a,2)}, v{va}, {srd(sWS)}, 0 offen offset:{384 + ph*128} sc1")
    p("s_waitcnt vmcnt(0)")
    p(f"v_cmp_ne_u64 vcc, {sp(s_nonce)}, {vr(a,2)}")
    p(f"s_cbranch_vccz L_ok{L}")
    p(f"s_cmp_lt_u32 s{s_cnt}, 0x100000")
    p(f"s_cbranch_scc1 L_poll{L}")
    p.label(f"L_ok{L}")
    p(f"s_cmp_eq_u32 s{s_c}, 0")
    p(f"s_cbranch_scc0 L_fin{L}")
    p(f"s_mov_b64 exec, 1")
    p(f"buffer_store_dwordx2 {vr(g.vEp,2)}, v{g.vMyFl}, {srd(sWS)}, 0 offen offset:{384 + ph*128} sc1")
    p.label(f"L_fin{L}")
    p("s_mov_b64 exec, -1")
    p.side_end()
    p.label(f"L_skip{L}")
    p("s_barrier")
    V.free(a, 2); V.free(va); V.free(g.vMyFl)

def tr_base(p, g, dst, natural, tmp):
    t0, t1 = tmp
    p(f"v_bfe_u32 v{t0}, v0, 2, 2")
    p(f"v_lshrrev_b32 v{t1}, 5, v0")
    p(f"v_lshl_add_u32 v{t0}, v{t1}, {3 if natural else 2}, v{t0}")
    p(f"v_lshlrev_b32 v{t0}, 7, v{t0}")
    p(f"v_bfe_u32 v{t1}, v0, 3, 1")
    p(f"v_lshl_add_u32 v{t0}, v{t1}, 6, v{t0}")
    p(f"v_bfe_u32 v{t1}, v0, 4, 1")
    p(f"v_lshl_add_u32 v{t0}, v{t1}, 5, v{t0}")
    p(f"v_and_b32 v{t1}, 3, v0")
    p(f"v_lshl_add_u32 v{dst}, v{t1}, 3, v{t0}")

def m32(d, A, B, c): return f"v_mfma_f32_32x32x16_bf16 {d}, {A}, {B}, {c}"

def phase2(p, g):
    V = g.V
    get_nonce(p, g)
    signal(p, g, 0, ["ost"])
    stamp(p, g, 4)
    vWa, vWb, vO = V.alloc(), V.alloc(), V.alloc()
    t0, t1 = V.alloc(), V.alloc()
    tr_base(p, g, vWa, True, (t0, t1))
    p(f"s_lshl_b32 s{s_a}, s{s_nh}, 15")
    p(f"s_add_u32 s{s_a}, s{s_a}, {L_WO}")
    p(f"s_lshl_b32 s{s_b}, s{s_nh}, 6")
    p(f"v_xor_b32 v{vWa}, s{s_b}, v{vWa}")
    p(f"v_add_u32 v{vWa}, s{s_a}, v{vWa}")
    p(f"v_xor_b32 v{vWb}, 64, v{vWa}")
    p(f"s_lshl_b32 s{s_a}, s{s_rt}, 16")
    p(f"s_lshl_b32 s{s_b}, s{s_sh}, 15")
    p(f"s_add_u32 s{s_a}, s{s_a}, s{s_b}")
    p(f"s_lshl_b32 s{s_b}, s{s_nh}, 14")
    p(f"s_add_u32 s{s_a}, s{s_a}, s{s_b}")
    if WS_O: p(f"s_add_u32 s{s_a}, s{s_a}, {WS_O}")
    p(f"v_lshlrev_b32 v{t0}, 4, v0")
    p(f"v_add_u32 v{vO}, s{s_a}, v{t0}")
    V.free(t0); V.free(t1)
    p.wait_vm(["wo"])
    wait_flags(p, g, 0, True)
    stamp(p, g, 5)
    OF = V.alloc(64)
    so = ["0", f"s{s_4k}", f"s{s_8k}", f"s{s_12k}"]
    for ks in range(16):
        off = f" offset:{(ks & 3) * 1024}" if ks & 3 else ""
        p(f"buffer_load_dwordx4 {vr(OF+4*ks,4)}, v{vO}, {srd(sWS)}, {so[ks >> 2]} offen{off} sc1")
    WF = [V.alloc(8), V.alloc(8), V.alloc(8)]
    acc = [V.alloc(16), V.alloc(16)]
    def reads(ks):
        b = WF[ks % 3]
        return [f"ds_read_b64_tr_b16 {vr(b + 4*u + 2*rd, 2)}, v{(vWa, vWb)[u]} offset:{ks*2048 + rd*512}" for u in range(2) for rd in range(2)]
    p.add(reads(0)); p.add(reads(1))
    for ks in range(16):
        b = WF[ks % 3]
        m = [m32(vr(acc[u], 16), vr(b + 4*u, 4), vr(OF + 4*ks, 4), "0" if ks == 0 else vr(acc[u], 16)) for u in range(2)]
        f = reads(ks + 2) if ks + 2 < 16 else []
        p.add([m[0]] + f[:2] + [m[1]] + f[2:])
    for b in WF: V.free(b, 8)
    V.free(OF, 64); V.free(vWa); V.free(vWb); V.free(vO)
    vE = V.alloc();
    p(f"s_lshl_b32 s{s_a}, s{s_w}, 12")
    p(f"s_add_u32 s{s_a}, s{s_a}, {L_EX2}")
    p(f"v_lshlrev_b32 v{vE}, 4, v0")
    p(f"v_add_u32 v{vE}, s{s_a}, v{vE}")
    p.wait_lgkm0(); p("s_barrier")
    stamp(p, g, 6)
    for q in range(4): p(f"ds_write_b128 v{vE}, {vr(acc[1]+4*q,4)} offset:{q*1024}")
    p.add(flat(w1_pairs(g, 1, range(7, 16))))
    p(f"v_xor_b32 v{vE}, 8192, v{vE}") if (L_EX2 & 8192) == 0 else None
    if (L_EX2 & 8192) != 0:
        p(f"s_xor_b32 s{s_b}, s{s_w}, 2")
        p(f"s_lshl_b32 s{s_b}, s{s_b}, 12")
        p(f"s_add_u32 s{s_b}, s{s_b}, {L_EX2}")
        p(f"v_lshlrev_b32 v{vE}, 4, v0")
        p(f"v_add_u32 v{vE}, s{s_b}, v{vE}")
    p.wait_lgkm0(); p("s_barrier")
    for q in range(4): p(f"ds_read_b128 {vr(acc[1]+4*q,4)}, v{vE} offset:{q*1024}")
    V.free(vE)
    A = acc[0]
    t = V.alloc(4)
    for q in range(8):
        x = g.xres + q
        p(f"v_lshlrev_b32 v{t + (q&1)*2}, 16, v{x}")
        p(f"v_and_b32 v{t + (q&1)*2 + 1}, 0xffff0000, v{x}")
        p(f"v_pk_add_f32 {vr(A + 2*q, 2)}, {vr(A + 2*q, 2)}, {vr(t + (q&1)*2, 2)}")
    for q in range(8):
        p(f"v_pk_add_f32 {vr(A + 2*q, 2)}, {vr(A + 2*q, 2)}, {vr(acc[1] + 2*q, 2)}")
    V.free(t, 4); V.free(acc[1], 16)
    hp = g.xres
    for q in range(8): p(f"v_cvt_pk_bf16_f32 v{hp+q}, v{A+2*q}, v{A+2*q+1}")
    V.free(A, 16)
    vH = V.alloc(); vS = V.alloc(); SQ = V.alloc(2); t = V.alloc(2)
    p(f"s_lshl_b32 s{s_a}, s{s_rt}, 1")
    p(f"s_add_u32 s{s_a}, s{s_a}, s{s_sh}")
    p(f"s_lshl_b32 s{s_b}, s{s_a}, 15")
    p(f"s_lshl_b32 s{s_c}, s{s_j}, 12")
    p(f"s_add_u32 s{s_b}, s{s_b}, s{s_c}")
    p(f"s_lshl_b32 s{s_c}, s{s_nh}, 11")
    p(f"s_add_u32 s{s_b}, s{s_b}, s{s_c}")
    p(f"s_add_u32 s{s_b}, s{s_b}, {WS_H}")
    p(f"v_lshlrev_b32 v{vH}, 4, v0")
    p(f"v_add_u32 v{vH}, s{s_b}, v{vH}")
    p(f"buffer_store_dwordx4 {vr(hp,4)}, v{vH}, {srd(sWS)}, 0 offen sc1", "hst")
    p(f"buffer_store_dwordx4 {vr(hp+4,4)}, v{vH}, {srd(sWS)}, 0 offen offset:1024 sc1", "hst")
    p(f"v_mov_b32 v{SQ}, 0"); p(f"v_mov_b32 v{SQ+1}, 0")
    for q in range(8):
        p(f"v_dot2c_f32_bf16 v{SQ}, v{hp+q}, v{g.ones}")
        p(f"v_dot2c_f32_bf16 v{SQ+1}, v{hp+q}, v{hp+q}")
    p(f"v_mov_b32 v{t}, v{SQ}"); p(f"v_mov_b32 v{t+1}, v{SQ+1}")
    p(f"v_permlane32_swap_b32 v{SQ}, v{t}"); p(f"v_permlane32_swap_b32 v{SQ+1}, v{t+1}")
    p(f"v_add_f32 v{SQ}, v{SQ}, v{t}"); p(f"v_add_f32 v{SQ+1}, v{SQ+1}, v{t+1}")
    p(f"s_lshl_b32 s{s_b}, s{s_a}, 12")
    p(f"s_lshl_b32 s{s_c}, s{s_j}, 9")
    p(f"s_add_u32 s{s_b}, s{s_b}, s{s_c}")
    p(f"s_lshl_b32 s{s_c}, s{s_nh}, 8")
    p(f"s_add_u32 s{s_b}, s{s_b}, s{s_c}")
    p(f"s_add_u32 s{s_b}, s{s_b}, {WS_ST}")
    p(f"v_lshlrev_b32 v{vS}, 3, v0")
    p(f"v_add_u32 v{vS}, s{s_b}, v{vS}")
    p("s_mov_b32 exec_hi, 0")
    p(f"buffer_store_dwordx2 {vr(SQ,2)}, v{vS}, {srd(sWS)}, 0 offen sc1", "hst")
    p("s_mov_b64 exec, -1")
    V.free(vH); V.free(vS); V.free(SQ, 2); V.free(t, 2)
    g.hp = hp
    stamp(p, g, 7)

def w2_slot(s):
    if s < 3: return (0, s * 2048)
    if s < 11: return (1, (s - 3) * 2048)
    return (2, (s - 11) * 2048)
def w2_dma(g, u):
    grp, off = w2_slot(u if u < 19 else u - 19)
    sb = (s_b0, s_b1, s_b2)[grp]
    out = []
    for e in range(2):
        out.append(([f"s_add_u32 m0, s{sb}, {off + e*1024}", f"s_add_u32 s{s_so}, s{s_wg}, {(16*u + 8*e)*1024}"],
                    [T(f"buffer_load_dwordx4 v{g.vW2d}, {srd(sW2)}, s{s_so} offen lds", f"w2_{u}")]))
    return out

def phase3(p, g):
    V = g.V
    signal(p, g, 1, ["hst", "w1a", "w1b1", "w1b2"])
    stamp(p, g, 8)
    p(f"s_mul_i32 s{s_b0}, s{s_w}, 7168"); p(f"s_add_u32 s{s_b0}, s{s_b0}, {L_S}")
    p(f"s_lshl_b32 s{s_b1}, s{s_w}, 14"); p(f"s_add_u32 s{s_b2}, s{s_b1}, 65536")
    p(f"s_mul_i32 s{s_wg}, s{s_w}, {448*1024}")
    for u in range(3): p.add(flat(w2_dma(g, u)))
    vW = [V.alloc() for _ in range(4)]
    t0, t1 = V.alloc(), V.alloc()
    tr_base(p, g, vW[0], False, (t0, t1))
    p(f"v_xor_b32 v{vW[1]}, 64, v{vW[0]}")
    p(f"v_add_u32 v{vW[2]}, 65536, v{vW[0]}")
    p(f"v_add_u32 v{vW[3]}, 65536, v{vW[1]}")
    g.vTrD = V.alloc()
    p(f"v_mov_b32 v{g.vTrD}, v{vW[0]}")
    vC = V.alloc()
    p(f"s_and_b32 s{s_a}, s{s_w}, 1"); p(f"s_lshl_b32 s{s_a}, s{s_a}, 6")
    p(f"s_lshr_b32 s{s_b}, s{s_w}, 1"); p(f"s_lshl_b32 s{s_b}, s{s_b}, 16")
    p(f"v_xor_b32 v{vC}, s{s_a}, v{vW[0]}")
    p(f"v_add_u32 v{vC}, s{s_b}, v{vC}")
    csacc = V.alloc(16); CF = [V.alloc(4) for _ in range(4)]
    def cr(ks): return [f"ds_read_b64_tr_b16 {vr(CF[ks % 4] + 2*rd, 2)}, v{vC} offset:{ks*2048 + rd*1024}" for rd in range(2)]
    ones = vr(g.ones, 4)
    p.add(cr(0) + cr(1) + cr(2))
    for ks in range(32):
        p(m32(vr(csacc, 16), ones, vr(CF[ks % 4], 4), "0" if ks == 0 else vr(csacc, 16)))
        if ks + 3 < 32: p.add(cr(ks + 3))
    for b in CF: V.free(b, 4)
    p(f"v_and_b32 v{t0}, 31, v0")
    p(f"v_lshlrev_b32 v{t0}, 2, v{t0}")
    p(f"v_add_u32 v{t0}, {L_M}, v{t0}")
    p(f"s_lshl_b32 s{s_a}, s{s_w}, 7")
    p(f"v_add_u32 v{t1}, s{s_a}, v{t0}")
    p(f"ds_write_b32 v{t1}, v{csacc}")
    V.free(csacc, 16); V.free(vC)
    vH, vS, vH1 = V.alloc(), V.alloc(), V.alloc()
    p(f"s_lshl_b32 s{s_a}, s{s_R}, 2"); p(f"s_add_u32 s{s_a}, s{s_a}, s{s_w}")
    p(f"s_lshl_b32 s{s_b}, s{s_a}, 15"); p(f"s_add_u32 s{s_b}, s{s_b}, {WS_H}")
    p(f"v_lshlrev_b32 v{t1}, 4, v0")
    p(f"v_add_u32 v{vH}, s{s_b}, v{t1}")
    p(f"s_mul_i32 s{s_b}, s{s_a}, 114688"); p(f"s_lshl_b32 s{s_c}, s{s_i16}, 13")
    p(f"s_add_u32 s{s_b}, s{s_b}, s{s_c}"); p(f"s_add_u32 s{s_b}, s{s_b}, {WS_H1}")
    p(f"v_add_u32 v{vH1}, s{s_b}, v{t1}")
    p(f"s_lshl_b32 s{s_b}, s{s_a}, 12"); p(f"s_add_u32 s{s_b}, s{s_b}, {WS_ST}")
    p(f"v_and_b32 v{t1}, 31, v0"); p(f"v_lshlrev_b32 v{t1}, 3, v{t1}")
    p(f"v_lshrrev_b32 v{vS}, 5, v0"); p(f"v_lshl_add_u32 v{vS}, v{vS}, 8, v{t1}")
    p(f"v_add_u32 v{vS}, s{s_b}, v{vS}")
    p.wait_lgkm0()
    wait_flags(p, g, 1, False)
    stamp(p, g, 9)
    CA = [V.alloc(4) for _ in range(4)]
    csv = V.alloc(4)
    for nt in range(4): p(f"ds_read_b32 v{csv+nt}, v{t0} offset:{nt*128}")
    p(f"s_cmp_ge_u32 s{s_i16}, 14")
    p("s_cbranch_scc1 L_idle3")
    p.side_begin()
    ST = V.alloc(16)
    for q in range(8):
        p(f"buffer_load_dwordx2 {vr(ST+2*q,2)}, v{vS}, {srd(sWS)}, 0 offen offset:{q*512} sc1")
    p(f"s_mov_b32 s{s_so}, 0")
    for ks in range(32):
        off = f" offset:{(ks & 3)*1024}" if ks & 3 else ""
        p(f"buffer_load_dwordx4 a[{4*ks}:{4*ks+3}], v{vH}, {srd(sWS)}, s{s_so} offen{off} sc1")
        if (ks & 3) == 3: p(f"s_add_u32 s{s_so}, s{s_so}, 4096")
    for nt in range(4):
        p(f"v_cvt_pk_bf16_f32 v{CA[nt]}, v{csv+nt}, v{csv+nt}")
        p(f"v_and_b32 v{t0}, 0xffff0000, v{CA[nt]}")
        p(f"v_sub_f32 v{t1}, v{csv+nt}, v{t0}")
        p(f"v_cvt_pk_bf16_f32 v{CA[nt]+1}, v{t1}, v{t1}")
        p(f"v_lshl_or_b32 v{CA[nt]+2}, v{g.vB1+nt}, 16, v{g.vB1+nt}")
        p(f"v_mov_b32 v{CA[nt]+3}, 0")
    acc = [V.alloc(16) for _ in range(4)]
    WF = [V.alloc(4) for _ in range(6)]
    def rd(nt, ks, buf): return [f"ds_read_b64_tr_b16 {vr(buf + 2*r, 2)}, v{vW[nt]} offset:{ks*2048 + r*1024}" for r in range(2)]
    def act(ks): return f"a[{4*ks}:{4*ks+3}]"
    S, Qq = ST, ST + 1
    BM = V.alloc(4); K1, K2, sd, rs = V.alloc(), V.alloc(), V.alloc(), V.alloc()
    u0, u1, u2, u3 = (V.alloc() for _ in range(4))
    st = []
    for q in range(1, 8):
        st += [f"v_add_f32 v{S}, v{S}, v{ST+2*q}", f"v_add_f32 v{Qq}, v{Qq}, v{ST+2*q+1}"]
    st += [f"v_mov_b32 v{u0}, v{S}", f"v_mov_b32 v{u1}, v{Qq}",
           f"v_permlane32_swap_b32 v{S}, v{u0}", f"v_permlane32_swap_b32 v{Qq}, v{u1}",
           f"v_add_f32 v{S}, v{S}, v{u0}", f"v_add_f32 v{Qq}, v{Qq}, v{u1}",
           f"v_mul_f32 v{u0}, {fl(1/512)}, v{S}",
           f"v_mul_f32 v{u1}, {fl(1/512)}, v{Qq}",
           f"v_add_f32 v{u1}, {fl(1e-5)}, v{u1}",
           f"v_fma_f32 v{u1}, -v{u0}, v{u0}, v{u1}",
           f"v_rsq_f32 v{rs}, v{u1}",
           f"v_mul_f32 v{u0}, -0.5, v{u0}",
           f"v_mul_f32 v{sd}, v{u1}, v{rs}",
           f"v_mul_f32 v{K1}, {fl(C1)}, v{rs}",
           f"v_mul_f32 v{u1}, v{rs}, v{rs}",
           f"v_mul_f32 v{u1}, v{u1}, v{rs}",
           f"v_mul_f32 v{K2}, {fl(C2)}, v{u1}"]
    st += split_hi_lo(u0, BM, u2, u3, True)
    st += [f"v_mul_f32 v{u0}, 0.5, v{sd}"]
    st += split_hi_lo(u0, BM + 2, u2, u3, False)
    st += [f"v_mov_b32 v{BM+3}, 0"]
    mainA = []
    p.add(rd(0, 0, WF[0]) + rd(1, 0, WF[1]) + rd(0, 1, WF[2]) + rd(1, 1, WF[3]))
    for ks in range(32):
        b0, b1 = WF[(2*ks) % 6], WF[(2*ks + 1) % 6]
        grp = [m32(vr(acc[0], 16), vr(b0, 4), act(ks), "0" if ks == 0 else vr(acc[0], 16))]
        if ks + 2 < 32: grp += rd(0, ks + 2, WF[(2*ks + 4) % 6])
        grp += [m32(vr(acc[1], 16), vr(b1, 4), act(ks), "0" if ks == 0 else vr(acc[1], 16))]
        if ks + 2 < 32: grp += rd(1, ks + 2, WF[(2*ks + 5) % 6])
        mainA.append(grp)
    sidx = 0
    for ks, grp in enumerate(mainA):
        p.add(grp)
        if ks >= 2 and sidx < len(st):
            p.add(st[sidx:sidx + 3]); sidx += 3
    p.add(st[sidx:])
    for nt in range(2): p(m32(vr(acc[nt], 16), vr(CA[nt], 4), vr(BM, 4), vr(acc[nt], 16)))
    p.wait_lgkm0(); p("s_barrier")
    stamp(p, g, 10)
    def gelu(nt):
        A = acc[nt]
        ops = []
        T_ = [u0, u1, u2, u3]
        for blk in range(4):
            rs_ = [A + 4*blk + i for i in range(4)]
            ops += [f"v_mul_f32 v{T_[i]}, v{rs_[i]}, v{rs_[i]}" for i in range(4)]
            ops += [f"v_fma_f32 v{T_[i]}, v{T_[i]}, v{K2}, v{K1}" for i in range(4)]
            ops += [f"v_mul_f32 v{T_[i]}, v{rs_[i]}, v{T_[i]}" for i in range(4)]
            ops += [f"v_exp_f32 v{T_[i]}, v{T_[i]}" for i in range(4)]
            ops += [f"v_fma_f32 v{T_[i]}, v{T_[i]}, v{sd}, v{sd}" for i in range(4)]
            ops += [f"v_rcp_f32 v{T_[i]}, v{T_[i]}" for i in range(4)]
            ops += [f"v_mul_f32 v{rs_[i]}, v{rs_[i]}, v{T_[i]}" for i in range(4)]
            ops += [f"v_cvt_pk_bf16_f32 v{A + 2*blk}, v{rs_[0]}, v{rs_[1]}", f"v_cvt_pk_bf16_f32 v{A + 2*blk + 1}, v{rs_[2]}, v{rs_[3]}"]
            if blk & 1:
                e = blk >> 1
                idx = 2*nt + e
                so = f"s{s_4k}" if idx >= 4 else "0"
                off = f" offset:{(idx & 3)*1024}" if idx & 3 else ""
                ops.append(T(f"buffer_store_dwordx4 {vr(A + 4*e, 4)}, v{vH1}, {srd(sWS)}, {so} offen{off} sc1", "h1st"))
        return ops
    def single_pass(nt, fillers, first_reads):
        main = []
        for ks in range(32):
            grp = [m32(vr(acc[nt], 16), vr(WF[ks % 6], 4), act(ks), "0" if ks == 0 else vr(acc[nt], 16))]
            if ks + 4 < 32: grp += rd(nt, ks + 4, WF[(ks + 4) % 6])
            main.append(grp)
        for ks in range(4): p.add(rd(nt, ks, WF[ks % 6]))
        k = 0
        per = -(-len(fillers) // 32)
        for ks, grp in enumerate(main):
            p.add(grp)
            p.add(fillers[k:k + per]); k += per
        p.add(fillers[k:])
        p(m32(vr(acc[nt], 16), vr(CA[nt], 4), vr(BM, 4), vr(acc[nt], 16)))
    w2a = []
    for u in range(3, 11): w2a += flat(w2_dma(g, u))
    g0, g1 = gelu(0), gelu(1)
    single_pass(2, w2a + g0, None)
    single_pass(3, g1, None)
    p.wait_lgkm0(); p("s_barrier")
    stamp(p, g, 11)
    w2b = []
    for u in range(11, 19): w2b += flat(w2_dma(g, u))
    p.add(gelu(2)); p.add(gelu(3))
    p.add(w2b)
    p.wait_vm(["h1st"])
    for b in WF: V.free(b, 4)
    for b in acc: V.free(b, 16)
    V.free(ST, 16); V.free(BM, 4)
    for r in (K1, K2, sd, rs, u0, u1, u2, u3): V.free(r)
    p.side_end()
    p.label("L_merge3")
    q = Prog()
    q.label("L_idle3")
    for u in range(3, 19): q.add(flat(w2_dma(g, u)))
    q("s_waitcnt vmcnt(16)")
    q("s_branch L_merge3")
    g.tail_blocks.append(q)
    for b in CA: V.free(b, 4)
    V.free(csv, 4); V.free(t0); V.free(t1)
    for r in vW + [vH, vS, vH1]: V.free(r)
    V.free(g.vB1, 4)

def phase4(p, g):
    V = g.V
    p.items.append(("assume_vm", [f"w2_{u}" for u in range(11, 19) for _ in range(2)]))
    signal(p, g, 2, [])
    stamp(p, g, 12)
    acc = [V.alloc(16) for _ in range(4)]
    t = V.alloc(4)
    for q in range(8):
        p(f"v_lshlrev_b32 v{acc[0]+2*q}, 16, v{g.hp+q}")
        p(f"v_and_b32 v{acc[0]+2*q+1}, 0xffff0000, v{g.hp+q}")
        p(f"v_lshlrev_b32 v{t}, 16, v{g.vB2+q}")
        p(f"v_and_b32 v{t+1}, 0xffff0000, v{g.vB2+q}")
        p(f"v_pk_add_f32 {vr(acc[0]+2*q,2)}, {vr(acc[0]+2*q,2)}, {vr(t,2)}")
    V.free(t, 4); V.free(g.vB2, 8); V.free(g.hp, 8)
    vR = [[V.alloc(), V.alloc()] for _ in range(3)]
    p(f"s_lshl_b32 s{s_a}, s{s_nh}, 6")
    p(f"v_xor_b32 v{g.vTrD}, s{s_a}, v{g.vTrD}")
    for grp, sb in enumerate((s_b0, s_b1, s_b2)):
        p(f"v_add_u32 v{vR[grp][0]}, s{sb}, v{g.vTrD}")
        p(f"v_xor_b32 v{vR[grp][1]}, 64, v{g.vTrD}")
        p(f"v_add_u32 v{vR[grp][1]}, s{sb}, v{vR[grp][1]}")
    V.free(g.vTrD)
    vA = [V.alloc(), V.alloc()]; t1 = V.alloc()
    p(f"v_lshlrev_b32 v{t1}, 4, v0")
    for a_ in range(2):
        p(f"s_xor_b32 s{s_a}, s{s_sh}, {a_}")
        p(f"s_lshl_b32 s{s_b}, s{s_rt}, 1"); p(f"s_add_u32 s{s_a}, s{s_a}, s{s_b}")
        p(f"s_mul_i32 s{s_a}, s{s_a}, 114688")
        p(f"s_mul_i32 s{s_b}, s{s_w}, {28*1024}"); p(f"s_add_u32 s{s_a}, s{s_a}, s{s_b}")
        p(f"s_add_u32 s{s_a}, s{s_a}, {WS_H1}")
        p(f"v_add_u32 v{vA[a_]}, s{s_a}, v{t1}")
    V.free(t1)
    p.wait_vm([f"w2_{u}" for u in range(0, 11)])
    wait_flags(p, g, 2, False)
    stamp(p, g, 13)
    def loads(u):
        out = []
        if (u & 3) == 0: out.append(f"s_mov_b32 s{s_so2}, {(u >> 2) * 4096}")
        off = f" offset:{(u & 3)*1024}" if u & 3 else ""
        for a_ in range(2):
            out.append(T(f"buffer_load_dwordx4 a[{8*u+4*a_}:{8*u+4*a_+3}], v{vA[a_]}, {srd(sWS)}, s{s_so2} offen{off} sc1", f"h1_{u}"))
        return out
    WF = [V.alloc(8) for _ in range(3)]
    def reads(u):
        grp, off = w2_slot(u if u < 19 else u - 19)
        b = WF[u % 3]
        return [f"ds_read_b64_tr_b16 {vr(b + 4*bb + 2*r, 2)}, v{vR[grp][bb]} offset:{off + r*1024}" for bb in range(2) for r in range(2)]
    D = 6
    for u in range(D): p.add(loads(u))
    p.wait_vm(["w2_0", "w2_1"])
    p.add(reads(0)); p.add(reads(1))
    for u in range(28):
        b = WF[u % 3]
        m = []
        for bb in range(2):
            for a_ in range(2):
                d = vr(acc[2*bb + a_], 16)
                first = (u == 0 and 2*bb + a_ != 0)
                m.append(m32(d, vr(b + 4*bb, 4), f"a[{8*u+4*a_}:{8*u+4*a_+3}]", "0" if first else d))
        fill = []
        if u + D < 28: fill += loads(u + D)
        seq = [m[0]]
        if u + 2 < 28: seq += [("wait_vm", [f"w2_{u+2}"])] + reads(u + 2)
        seq += [m[1]] + fill + [m[2]]
        if u >= 1 and (u - 1) + 19 < 28:
            seq += [("wait_lgkm_reads",)] if False else []
            seq += flat(w2_dma(g, (u - 1) + 19))
        seq += [m[3]]
        p.add(seq)
    for b in WF: V.free(b, 8)
    for g_ in vR:
        for r in g_: V.free(r)
    for r in vA: V.free(r)
    stamp(p, g, 14)
    vE, vP = V.alloc(), V.alloc()
    p(f"v_lshlrev_b32 v{vE}, 4, v0")
    p(f"v_add_u32 v{vP}, s{s_b1}, v{vE}")
    p.wait_lgkm0()
    for u in range(1, 4):
        for q in range(4): p(f"ds_write_b128 v{vP}, {vr(acc[u]+4*q,4)} offset:{(u-1)*4096 + q*1024}")
    p.wait_lgkm0(); p("s_barrier")
    for u in range(1, 4):
        p(f"s_xor_b32 s{s_a}, s{s_w}, {u}"); p(f"s_lshl_b32 s{s_a}, s{s_a}, 14")
        p(f"v_add_u32 v{vP}, s{s_a}, v{vE}")
        for q in range(4): p(f"ds_read_b128 {vr(acc[u]+4*q,4)}, v{vP} offset:{(u-1)*4096 + q*1024}")
    A = acc[0]
    for u in range(1, 4):
        for q in range(8): p(f"v_pk_add_f32 {vr(A+2*q,2)}, {vr(A+2*q,2)}, {vr(acc[u]+2*q,2)}")
    for q in range(8): p(f"v_cvt_pk_bf16_f32 v{A+q}, v{A+2*q}, v{A+2*q+1}")
    for q in (0, 2):
        p(f"v_permlane32_swap_b32 v{A+2*q}, v{A+2*q+2}")
        p(f"v_permlane32_swap_b32 v{A+2*q+1}, v{A+2*q+3}")
    p(f"s_lshl_b32 s{s_a}, s{s_rt}, 6"); p(f"s_lshl_b32 s{s_b}, s{s_sh}, 5"); p(f"s_add_u32 s{s_a}, s{s_a}, s{s_b}")
    p(f"s_lshl_b32 s{s_a}, s{s_a}, 10")
    p(f"s_lshl_b32 s{s_b}, s{s_j}, 7"); p(f"s_add_u32 s{s_a}, s{s_a}, s{s_b}")
    p(f"s_lshl_b32 s{s_b}, s{s_nh}, 6"); p(f"s_add_u32 s{s_a}, s{s_a}, s{s_b}")
    p(f"v_and_b32 v{vE}, 31, v0"); p(f"v_lshlrev_b32 v{vE}, 10, v{vE}")
    p(f"v_lshrrev_b32 v{vP}, 5, v0"); p(f"v_lshl_add_u32 v{vE}, v{vP}, 4, v{vE}")
    p(f"v_add_u32 v{vE}, s{s_a}, v{vE}")
    p(f"buffer_store_dwordx4 {vr(A,4)}, v{vE}, {srd(sOUT)}, 0 offen")
    p(f"buffer_store_dwordx4 {vr(A+4,4)}, v{vE}, {srd(sOUT)}, 0 offen offset:32")
    p(f"s_lshl_b32 s{s_a}, s{s_R}, 10"); p(f"s_add_u32 s{s_a}, s{s_a}, {WS_FL}")
    p(f"v_mov_b32 v{vP}, s{s_a}")
    p(f"s_or_b32 s{s_b}, s{s_i16}, s{s_w}")
    p(f"s_cmp_eq_u32 s{s_b}, 0")
    p("s_cselect_b64 exec, 1, 0")
    p(f"buffer_store_dwordx2 {vr(g.vEp,2)}, v{vP}, {srd(sWS)}, 0 offen offset:768")
    p("s_mov_b64 exec, -1")
    V.free(vE); V.free(vP)
    for b in acc: V.free(b, 16)

def rest(p, g):
    g.tail_blocks = getattr(g, "tail_blocks", [])
    phase2(p, g)
    if g.cfg.stop_after >= 3: phase3(p, g)
    if g.cfg.stop_after >= 4: phase4(p, g)
```

```python
import sys, math, struct
from core import *

NAME = "sequential_preLN__sliding_local_dilated__dense_activation_gelu__prompt"
KNAME = NAME + "_kernel"

WS_O    = 0
WS_H    = 2 << 20
WS_ST   = 4 << 20
WS_FL   = (4 << 20) + (512 << 10)
WS_H1   = 5 << 20
WS_DBG  = 13 << 20
WS_SIZE = 16 << 20

def f2u(x): return struct.unpack("<I", struct.pack("<f", x))[0]
def hx(x): return hex(x & 0xffffffff)
def fl(x): return hx(f2u(x))

sX, sWQ, sWO, sW1, sW2, sWS, sOUT = 28, 32, 36, 40, 44, 48, 52
sB1, sB2 = 14, 18
s_w, s_xg, s_j, s_rt, s_i16, s_R = 56, 57, 58, 59, 60, 61
s_t0, s_t1, s_t2, s_t3 = 62, 63, 64, 65
s_wl, s_xl0, s_xl2, s_cx, s_cw, s_ce = 66, 67, 68, 69, 70, 71
s_m1, s_m2, s_m3, s_diag = 72, 74, 76, 78
s_odd, s_va0, s_va1, s_vb0, s_vb1, s_fa0, s_fa1 = 80, 82, 84, 86, 88, 90, 92
s_nonce = 94
s_k32 = 96
s_c4 = 97
s_sv = 98
s_stamp = 100
def srd(n): return f"s[{n}:{n+3}]"
def sp(n): return f"s[{n}:{n+1}]"
def vr(a, n=1): return f"v{a}" if n == 1 else f"v[{a}:{a+n-1}]"

def mask64(fn):
    m = 0
    for l in range(64):
        if fn(l): m |= 1 << l
    return m
def set_mask(p, s, m):
    p(f"s_mov_b32 s{s}, {hx(m & 0xffffffff)}")
    p(f"s_mov_b32 s{s+1}, {hx(m >> 32)}")

L_X = 0; L_R = 81920; L_M = 159744
LDS_SIZE = 163840

class Cfg:
    stop_after = 4
    stamps = False
    rotate = True

class G:
    pass

def stamp(p, g, idx):
    if not g.cfg.stamps: return
    p(f"s_memtime {sp(s_stamp)}")
    p("s_waitcnt lgkmcnt(0)")
    p(f"v_writelane_b32 v{g.vstamp}, s{s_stamp}, {idx}")

def make_srd(p, s, base, nbytes):
    p(f"s_mov_b32 s{s}, s{base}")
    p(f"s_and_b32 s{s+1}, s{base+1}, 0xffff")
    p(f"s_mov_b32 s{s+2}, {nbytes}")
    p(f"s_mov_b32 s{s+3}, 0x00020000")

def prologue(p, g):
    cfg = g.cfg
    V = g.V
    p("s_cmp_ge_u32 s2, 256")
    p("s_cbranch_scc1 L_end")
    p("s_load_dwordx16 s[4:19], s[0:1], 0")
    p("s_load_dwordx4 s[20:23], s[0:1], 64")
    p("s_load_dwordx2 s[24:25], s[0:1], 80")
    p("s_getpc_b64 s[26:27]")
    p.label("L_pc")
    p("v_lshrrev_b32 v1, 6, v0")
    p("v_and_b32 v0, 63, v0")
    p(f"v_readfirstlane_b32 s{s_w}, v1")
    p(f"s_lshr_b32 s{s_t0}, s2, 3")
    p(f"s_lshl_b32 s{s_t0}, s{s_t0}, 2")
    p(f"s_add_u32 s{s_t0}, s{s_t0}, s{s_w}")
    p(f"s_lshl_b32 s{s_t0}, s{s_t0}, 8")
    p("v_lshlrev_b32 v1, 2, v0")
    p(f"v_add_u32 v1, s{s_t0}, v1")
    p(f"s_mov_b32 s{s_t1}, L_code_end-L_pc-4")
    p(f"v_min_u32 v1, s{s_t1}, v1")
    p(f"global_load_dword v{g.vdummy}, v1, s[26:27]")
    if cfg.stamps:
        p(f"v_mov_b32 v{g.vstamp}, 0")
        stamp(p, g, 0)
    p(f"s_and_b32 s{s_xg}, s2, 7")
    p(f"s_lshr_b32 s{s_t0}, s2, 3")
    p(f"s_and_b32 s{s_j}, s{s_t0}, 7")
    p(f"s_and_b32 s{s_i16}, s{s_t0}, 15")
    p(f"s_lshr_b32 s{s_c4}, s{s_t0}, 3")
    p(f"s_lshl_b32 s{s_rt}, s{s_xg}, 2")
    p(f"s_add_u32 s{s_rt}, s{s_rt}, s{s_c4}")
    p(f"s_lshr_b32 s{s_R}, s{s_rt}, 1")
    p(f"s_mov_b32 s{s_k32}, 32768")

def p1_addresses(p, g):
    V = g.V
    a = g.p1a = {k: V.alloc() for k in ["Wd0", "Wd1", "X0", "X1", "X2", "Xr0", "Xr1", "Ow0", "Ow1", "Hal", "Wr", "Wr2"]}
    t = [V.alloc() for _ in range(5)]
    t0, t1, t2, t3, t4 = t
    p(f"v_lshrrev_b32 v{t0}, 3, v0")
    p(f"s_lshl_b32 s{s_t0}, s{s_w}, 4")
    p(f"v_add_u32 v{t1}, s{s_t0}, v{t0}")
    p(f"v_mul_u32_u24 v{t1}, 3072, v{t1}")
    p(f"v_bfe_u32 v{t2}, v0, 1, 2")
    p(f"v_bfe_u32 v{t3}, v0, 4, 1")
    p(f"v_xor_b32 v{t2}, v{t2}, v{t3}")
    p(f"v_lshlrev_b32 v{t2}, 5, v{t2}")
    p(f"v_and_b32 v{t3}, 1, v0")
    p(f"v_lshlrev_b32 v{t3}, 4, v{t3}")
    p(f"v_add3_u32 v{t1}, v{t1}, v{t2}, v{t3}")
    p(f"s_lshl_b32 s{s_t1}, s{s_j}, 7")
    p(f"v_add_u32 v{a['Wd0']}, s{s_t1}, v{t1}")
    p(f"v_xor_b32 v{a['Wd1']}, 64, v{a['Wd0']}")
    p(f"v_add_u32 v{a['Wd1']}, {8*3072}, v{a['Wd1']}")
    p(f"s_lshl_b32 s{s_wl}, s{s_w}, 11")
    p(f"s_add_u32 s{s_wl}, s{s_wl}, {L_R}")
    p(f"s_and_b32 s{s_t0}, s{s_w}, 1")
    p(f"s_lshl_b32 s{s_t1}, s{s_t0}, 2")
    p(f"v_lshrrev_b32 v{t1}, 4, v0")
    p(f"v_add_u32 v{t1}, s{s_t1}, v{t1}")
    p(f"v_and_b32 v{t2}, 7, v0")
    p(f"v_xor_b32 v{t1}, v{t1}, v{t2}")
    p(f"v_lshlrev_b32 v{t1}, 4, v{t1}")
    p(f"v_lshl_add_u32 v{t1}, v{t0}, 10, v{t1}")
    p(f"s_lshl_b32 s{s_t1}, s{s_rt}, 6")
    p(f"s_lshl_b32 s{s_t2}, s{s_w}, 3")
    p(f"s_add_u32 s{s_t1}, s{s_t1}, s{s_t2}")
    p(f"s_sub_i32 s{s_t3}, s{s_t1}, 16")
    p(f"s_max_i32 s{s_t3}, s{s_t3}, 0")
    p(f"s_lshl_b32 s{s_t3}, s{s_t3}, 10")
    p(f"v_add_u32 v{a['X0']}, s{s_t3}, v{t1}")
    p(f"s_add_u32 s{s_t3}, s{s_t1}, 16")
    p(f"s_lshl_b32 s{s_t3}, s{s_t3}, 10")
    p(f"v_add_u32 v{a['X1']}, s{s_t3}, v{t1}")
    p(f"s_lshl_b32 s{s_t3}, s{s_rt}, 6")
    p(f"s_lshl_b32 s{s_t2}, s{s_t0}, 3")
    p(f"s_add_u32 s{s_t3}, s{s_t3}, s{s_t2}")
    p(f"s_add_u32 s{s_t3}, s{s_t3}, 48")
    p(f"s_lshl_b32 s{s_t3}, s{s_t3}, 10")
    p(f"v_add_u32 v{a['X2']}, s{s_t3}, v{t1}")
    p(f"s_lshl_b32 s{s_xl0}, s{s_w}, 10")
    p(f"s_lshr_b32 s{s_t1}, s{s_w}, 1")
    p(f"s_mul_i32 s{s_xl2}, s{s_t1}, 10240")
    p(f"s_lshl_b32 s{s_t2}, s{s_t0}, 10")
    p(f"s_add_u32 s{s_xl2}, s{s_xl2}, s{s_t2}")
    p(f"s_add_u32 s{s_xl2}, s{s_xl2}, 8192")
    p(f"v_and_b32 v{t0}, 15, v0")
    p(f"v_lshrrev_b32 v{t1}, 4, v0")
    p(f"v_lshrrev_b32 v{t2}, 1, v{t0}")
    p(f"v_xor_b32 v{t2}, v{t2}, v{t1}")
    p(f"v_lshlrev_b32 v{t2}, 4, v{t2}")
    p(f"v_lshl_add_u32 v{a['Xr0']}, v{t0}, 7, v{t2}")
    p(f"v_xor_b32 v{a['Xr1']}, 64, v{a['Xr0']}")
    p(f"s_add_u32 s{s_t2}, s{s_w}, 1")
    p(f"s_lshl_b32 s{s_t2}, s{s_t2}, 11")
    p(f"v_add_u32 v{a['Ow0']}, s{s_t2}, v{a['Xr0']}")
    p(f"v_add_u32 v{a['Ow1']}, s{s_t2}, v{a['Xr1']}")
    p(f"s_lshl_b32 s{s_t2}, s{s_t0}, 6")
    p(f"v_xor_b32 v{a['Hal']}, s{s_t2}, v{a['Xr0']}")
    p(f"s_mul_i32 s{s_t2}, s{s_t1}, 10240")
    p(f"v_add_u32 v{a['Hal']}, s{s_t2}, v{a['Hal']}")
    p(f"v_lshrrev_b32 v{t2}, 2, v{t0}")
    p(f"v_lshl_add_u32 v{t2}, v{t1}, 3, v{t2}")
    p(f"v_lshlrev_b32 v{t2}, 7, v{t2}")
    p(f"v_bfe_u32 v{t3}, v0, 3, 1")
    p(f"v_bfe_u32 v{t4}, v0, 4, 1")
    p(f"v_lshl_add_u32 v{t3}, v{t4}, 1, v{t3}")
    p(f"v_xor_b32 v{t3}, s{s_w}, v{t3}")
    p(f"v_lshl_add_u32 v{t2}, v{t3}, 5, v{t2}")
    p(f"v_and_b32 v{t3}, 3, v0")
    p(f"v_lshl_add_u32 v{t2}, v{t3}, 3, v{t2}")
    p(f"v_add_u32 v{a['Wr']}, {L_R}, v{t2}")
    p(f"v_add_u32 v{a['Wr2']}, 49152, v{a['Wr']}")
    for r in t: V.free(r)

def chunk_sregs(i, rot):
    if rot:
        return [f"s_add_u32 s{s_cx}, s{s_xg}, {i}", f"s_and_b32 s{s_cx}, s{s_cx}, 7",
                f"s_mul_i32 s{s_cw}, s{s_cx}, 196608", f"s_lshl_b32 s{s_cx}, s{s_cx}, 7"]
    return [f"s_mov_b32 s{s_cw}, {i*196608}", f"s_mov_b32 s{s_cx}, {i*128}"]

def dma_w(g, i):
    a = g.p1a; out = []
    slot = i % 3
    for X in range(3):
        for e in range(2):
            out.append(f"s_add_u32 m0, s{s_wl}, {slot*24576 + X*7168 + e*1024}")
            off = f" offset:{X*1024}" if X else ""
            out.append(T(f"buffer_load_dwordx4 v{a['Wd%d' % e]}, {srd(sWQ)}, s{s_cw} offen{off} lds", f"W{i}"))
    return out

def dma_x_pair(g, pr):
    a = g.p1a; out = []
    rot = g.cfg.rotate
    for ii in range(2):
        i = 2 * pr + ii
        if rot:
            out += [f"s_add_u32 s{s_cx}, s{s_xg}, {i}", f"s_and_b32 s{s_cx}, s{s_cx}, 7", f"s_lshl_b32 s{s_cx}, s{s_cx}, 7"]
        else:
            out += [f"s_mov_b32 s{s_cx}, {i*128}"]
        out.append(f"s_add_u32 m0, s{s_xl0}, {L_X + i*10240}")
        out.append(T(f"buffer_load_dwordx4 v{a['X0']}, {srd(sX)}, s{s_cx} offen lds", f"X{pr}"))
        out.append(f"s_add_u32 m0, s{s_xl0}, {L_X + i*10240 + 4096}")
        out.append(T(f"buffer_load_dwordx4 v{a['X1']}, {srd(sX)}, s{s_cx} offen lds", f"X{pr}"))
    out.append(f"s_lshr_b32 s{s_ce}, s{s_w}, 1")
    if rot:
        out += [f"s_add_u32 s{s_ce}, s{s_ce}, s{s_xg}", f"s_add_u32 s{s_ce}, s{s_ce}, {2*pr}", f"s_and_b32 s{s_ce}, s{s_ce}, 7"]
    else:
        out += [f"s_add_u32 s{s_ce}, s{s_ce}, {2*pr}"]
    out.append(f"s_lshl_b32 s{s_ce}, s{s_ce}, 7")
    out.append(f"s_add_u32 m0, s{s_xl2}, {L_X + 2*pr*10240}")
    out.append(T(f"buffer_load_dwordx4 v{a['X2']}, {srd(sX)}, s{s_ce} offen lds", f"X{pr}"))
    return out

def w_chunk_dma(g, i):
    rot = g.cfg.rotate
    if rot:
        pre = [f"s_add_u32 s{s_cw}, s{s_xg}, {i}", f"s_and_b32 s{s_cw}, s{s_cw}, 7", f"s_mul_i32 s{s_cw}, s{s_cw}, 196608"]
    else:
        pre = [f"s_mov_b32 s{s_cw}, {i*196608}"]
    return pre + dma_w(g, i)

def phase1(p, g):
    V = g.V
    a = g.p1a
    ones = g.ones
    FB = [V.alloc(36), V.alloc(36)]
    def fx(b, t): return FB[b] + 4 * t
    def fw(b, X): return FB[b] + 24 + 4 * X
    hal = V.alloc(4)
    Q = {t: V.alloc(4) for t in range(1, 5)}
    K = {t: V.alloc(4) for t in range(5)}
    Vv = {t: V.alloc(4) for t in range(5)}
    cs = [V.alloc(4) for _ in range(3)]
    sumO, gramO, sumH, gramH = (V.alloc(4) for _ in range(4))
    g.xres = xres = V.alloc(8)

    p.add(dma_x_pair(g, 0)); p.add(w_chunk_dma(g, 0)); p.add(w_chunk_dma(g, 1)); p.add(dma_x_pair(g, 1)); p.add(w_chunk_dma(g, 2))
    for r in range(4): p(f"v_mov_b32 v{ones+r}, 0x3f803f80")

    def reads(n):
        i, s_ = n >> 1, n & 1
        b = n & 1
        xo = (i * 10240 if i < 6 else (i - 6) * 10240)
        slot = i % 3
        wreg, wo = (a['Wr'], slot * 24576) if slot < 2 else (a['Wr2'], 0)
        xr, ow = a['Xr%d' % s_], a['Ow%d' % s_]
        def wr(X):
            return [f"ds_read_b64_tr_b16 {vr(fw(b, X) + 2*rd, 2)}, v{wreg} offset:{wo + X*8192 + s_*4096 + rd*512}" for rd in range(2)]
        out = wr(1)
        out += [f"ds_read_b128 {vr(fx(b, t), 4)}, v{xr} offset:{xo + t*2048}" for t in range(5)]
        out += wr(2) + wr(0)
        out += [f"ds_read_b128 {vr(fx(b, 5), 4)}, v{ow} offset:{xo}"]
        return out
    def mf(d, A, B, first):
        c = "0" if first else vr(d, 4)
        return f"v_mfma_f32_16x16x32_bf16 {vr(d,4)}, {vr(A,4)}, {vr(B,4)}, {c}"
    def mfmas(n):
        b = n & 1; f = n == 0
        out = [mf(K[t], fw(b, 1), fx(b, t), f) for t in range(5)]
        out.append(mf(cs[1], ones, fw(b, 1), f))
        out += [mf(Vv[t], fx(b, t), fw(b, 2), f) for t in range(5)]
        out.append(mf(cs[2], ones, fw(b, 2), f))
        out += [mf(Q[t], fw(b, 0), fx(b, t), f) for t in range(1, 5)]
        out.append(mf(cs[0], ones, fw(b, 0), f))
        out.append(mf(sumO, ones, fx(b, 5), f))
        out.append(mf(gramO, fx(b, 5), fx(b, 5), f))
        return out

    p.wait_vm(["X0", "W0"]); p("s_barrier")
    stamp(p, g, 1)
    p.add(reads(0))
    for n in range(16):
        i, s_ = n >> 1, n & 1
        pre = []
        if s_ == 1 and i < 7:
            tags = [f"W{i+1}"] + ([f"X{(i+1)//2}"] if (i + 1) % 2 == 0 else [])
            p.wait_vm(tags); p.wait_lgkm0(); p("s_barrier")
        m = mfmas(n)
        fill = []
        if n == 11:
            fill += [f"v_add_u32 v{a[k]}, 61440, v{a[k]}" for k in ("Xr0", "Xr1", "Ow0", "Ow1")]
        if n < 15: fill += reads(n + 1)
        if n % 4 == 2:
            pr = n // 4
            if pr == 3: fill.append(f"v_add_u32 v{a['Hal']}, 61440, v{a['Hal']}")
            fill.append(f"ds_read_b128 {vr(hal,4)}, v{a['Hal']} offset:{(pr % 3) * 20480 if pr < 3 else 0}")
        if n % 4 == 3:
            m.append(mf(sumH, ones, hal, n == 3)); m.append(mf(gramH, hal, hal, n == 3))
        if s_ == 1 and i + 3 < 8: fill += w_chunk_dma(g, i + 3)
        if n == 2: fill += dma_x_pair(g, 2)
        if n == 6: fill += dma_x_pair(g, 3)
        if n == 14:
            fill += xres_reads(p, g)
        p.add(spread(m, fill, 0, len(m) - 1))
    g.p1 = dict(Q=Q, K=K, V=Vv, cs=cs, sumO=sumO, gramO=gramO, sumH=sumH, gramH=gramH, FB=FB, hal=hal)
    V.free(FB[0], 36); V.free(FB[1], 36); V.free(hal, 4)
    for k in a: V.free(a[k])

def xres_reads(p, g):
    V = g.V
    t0, t1, t2, t3 = (V.alloc() for _ in range(4))
    out = []
    out.append(f"s_and_b32 s{s_t0}, s{s_w}, 1")
    out.append(f"s_lshl_b32 s{s_t0}, s{s_t0}, 5")
    out.append(f"s_add_u32 s{s_t0}, s{s_t0}, 16")
    out.append(f"v_and_b32 v{t0}, 31, v0")
    out.append(f"v_add_u32 v{t0}, s{s_t0}, v{t0}")
    out.append(f"v_bfe_u32 v{t1}, v{t0}, 1, 3")
    out.append(f"s_lshr_b32 s{s_t1}, s{s_w}, 1")
    out.append(f"s_lshl_b32 s{s_t1}, s{s_t1}, 2")
    out.append(f"v_xor_b32 v{t1}, s{s_t1}, v{t1}")
    if g.cfg.rotate:
        out += [f"s_sub_u32 s{s_t2}, s{s_j}, s{s_xg}", f"s_and_b32 s{s_t2}, s{s_t2}, 7"]
    else:
        out += [f"s_mov_b32 s{s_t2}, s{s_j}"]
    out.append(f"s_mul_i32 s{s_t2}, s{s_t2}, 10240")
    out.append(f"v_lshrrev_b32 v{t2}, 5, v0")
    out.append(f"v_lshlrev_b32 v{t2}, 3, v{t2}")
    out.append(f"v_lshl_add_u32 v{t2}, v{t0}, 7, v{t2}")
    out.append(f"v_add_u32 v{t2}, s{s_t2}, v{t2}")
    for q in range(4):
        out.append(f"v_xor_b32 v{t3}, {q}, v{t1}")
        out.append(f"v_lshl_add_u32 v{t3}, v{t3}, 4, v{t2}")
        out.append(f"ds_read_b64 {vr(g.xres + 2*q, 2)}, v{t3} offset:{L_X}")
    g._xres_tmp = [t0, t1, t2, t3]
    for r in g._xres_tmp: V.free(r)
    return out

def split_hi_lo(val, dst, t0, t1, dup):
    o = [f"v_cvt_pk_bf16_f32 v{t0}, v{val}, v{val}",
         f"v_and_b32 v{t0}, 0xffff0000, v{t0}",
         f"v_sub_f32 v{t1}, v{val}, v{t0}",
         f"v_cvt_pk_bf16_f32 v{dst}, v{t0}, v{t1}"]
    if dup: o.append(f"v_mov_b32 v{dst+1}, v{dst}")
    return o

def phase1_epilogue(p0, g):
    p = Prog()
    phase1_epilogue_body(p, g)
    items = p.items
    pairs = g.p1_prefetch_pairs() if hasattr(g, "p1_prefetch_pairs") else []
    if pairs:
        b = next(i for i, it in enumerate(items) if isinstance(it, Ins) and it.kind == "barrier")
        e = max(i for i, it in enumerate(items) if isinstance(it, Ins) and it.mn.startswith("v_exp"))
        items = spread_pairs(items, pairs, b + 1, e)
    p0.add(items)

def phase1_epilogue_body(p, g):
    V = g.V; P = g.p1
    Q, K, Vv, cs = P["Q"], P["K"], P["V"], P["cs"]
    set_mask(p, s_m1, mask64(lambda l: (l & 3) == 1))
    set_mask(p, s_m2, mask64(lambda l: (l & 3) == 2))
    set_mask(p, s_m3, mask64(lambda l: (l & 3) == 3))
    set_mask(p, s_diag, mask64(lambda l: (l >> 4) == ((l & 15) >> 2)))
    def qgp(l): return (l & 15), (l >> 4), (l & 1)
    set_mask(p, s_odd, mask64(lambda l: l & 1))
    mva0 = mask64(lambda l: 4*(l >> 4) + (l & 1) >= (l & 15) + 2)
    mva1 = mask64(lambda l: 4*(l >> 4) + (l & 1) + 2 >= (l & 15) + 2)
    set_mask(p, s_va0, mva0); set_mask(p, s_va1, mva1)
    set_mask(p, s_vb0, mask64(lambda l: 4*(l >> 4) + (l & 1) <= (l & 15)))
    set_mask(p, s_vb1, mask64(lambda l: 4*(l >> 4) + (l & 1) + 2 <= (l & 15)))
    p(f"s_cmp_eq_u32 s{s_rt}, 0")
    p(f"s_cselect_b64 {sp(s_fa0)}, 0, {sp(s_va0)}")
    p(f"s_cselect_b64 {sp(s_fa1)}, 0, {sp(s_va1)}")
    vA1, vA2, vA3 = V.alloc(), V.alloc(), V.alloc()
    p(f"v_and_b32 v{vA3}, 15, v0")
    p(f"v_lshlrev_b32 v{vA3}, 3, v{vA3}")
    p(f"v_add_u32 v{vA3}, {L_M}, v{vA3}")
    p(f"s_add_u32 s{s_t0}, s{s_w}, 1")
    p(f"s_lshl_b32 s{s_t0}, s{s_t0}, 7")
    p(f"v_add_u32 v{vA1}, s{s_t0}, v{vA3}")
    p(f"s_lshl_b32 s{s_t0}, s{s_w}, 7")
    p(f"s_add_u32 s{s_t0}, s{s_t0}, 1024")
    p(f"v_add_u32 v{vA2}, s{s_t0}, v{vA3}")
    p.wait_lgkm0(); p("s_barrier")
    stamp(p, g, 2)
    PO, PH = V.alloc(2), V.alloc(2)
    for (dst, sm, gr) in ((PO, P["sumO"], P["gramO"]), (PH, P["sumH"], P["gramH"])):
        p(f"v_mov_b32 v{dst}, v{sm}")
        p(f"v_cndmask_b32 v{dst+1}, v{gr}, v{gr+1}, {sp(s_m1)}")
        p(f"v_cndmask_b32 v{dst+1}, v{dst+1}, v{gr+2}, {sp(s_m2)}")
        p(f"v_cndmask_b32 v{dst+1}, v{dst+1}, v{gr+3}, {sp(s_m3)}")
    p(f"s_mov_b64 exec, {sp(s_diag)}")
    p(f"ds_write_b64 v{vA1}, {vr(PO,2)}")
    p(f"ds_write_b64 v{vA2}, {vr(PH,2)}")
    p("s_mov_b64 exec, -1")
    for k in ("sumO", "gramO", "sumH", "gramH"): V.free(P[k], 4)
    V.free(PO, 2); V.free(PH, 2); V.free(vA1); V.free(vA2)
    CA = [V.alloc(2) for _ in range(3)]
    tA, tB = V.alloc(), V.alloc()
    csops = []
    for X in range(3):
        csops += [f"v_cvt_pk_bf16_f32 v{CA[X]}, v{cs[X]}, v{cs[X]}",
                  f"v_and_b32 v{tA}, 0xffff0000, v{CA[X]}",
                  f"v_sub_f32 v{tB}, v{cs[X]}, v{tA}",
                  f"v_cvt_pk_bf16_f32 v{CA[X]+1}, v{tB}, v{tB}"]
    p.wait_lgkm0(); p("s_barrier")
    ST = {t: V.alloc(2) for t in range(1, 5)}
    HP = [V.alloc(2) for _ in range(4)]
    for u in range(4): p(f"ds_read_b64 {vr(HP[u],2)}, v{vA3} offset:{1024 + u*128}")
    for t in range(1, 5): p(f"ds_read_b64 {vr(ST[t],2)}, v{vA3} offset:{t*128}")
    p.add(csops)
    for X in range(3): V.free(cs[X], 4)
    V.free(vA3)
    p(f"v_pk_add_f32 {vr(HP[0],2)}, {vr(HP[0],2)}, {vr(HP[1],2)}")
    p(f"v_pk_add_f32 {vr(HP[2],2)}, {vr(HP[2],2)}, {vr(HP[3],2)}")
    p(f"v_pk_add_f32 {vr(HP[0],2)}, {vr(HP[0],2)}, {vr(HP[2],2)}")
    ST[0] = HP[0]
    for u in range(1, 4): V.free(HP[u], 2)
    vC512, C8 = V.alloc(), V.alloc(2)
    p(f"v_mov_b32 v{vC512}, {fl(1/512)}")
    p(f"v_mov_b32 v{C8}, 0x3e003e00")
    p(f"v_mov_b32 v{C8+1}, 0x3e003e00")
    BM = {t: V.alloc(2) for t in range(5)}
    RS = {t: V.alloc(2) for t in range(5)}
    rstd = {t: V.alloc() for t in range(5)}
    streams = []
    tmps = []
    for t in range(5):
        a0, a1, a2, a3 = (V.alloc() for _ in range(4)); tmps += [a0, a1, a2, a3]
        sm, sq = ST[t], ST[t] + 1
        s = [f"v_mul_f32 v{a0}, {fl(-1/2048)}, v{sm}",
             f"v_fmaak_f32 v{a1}, v{sq}, v{vC512}, {fl(1e-5)}",
             f"v_mul_f32 v{a2}, v{vC512}, v{sm}",
             f"v_fma_f32 v{a1}, -v{a2}, v{a2}, v{a1}",
             f"v_rsq_f32 v{rstd[t]}, v{a1}"]
        s += split_hi_lo(a0, BM[t], a2, a3, True)
        s += split_hi_lo(rstd[t], RS[t], a2, a3, True)
        streams.append(s)
    p.add(zipmerge(*streams))
    for r in tmps: V.free(r)
    for t in range(5): V.free(ST[t], 2)
    V.free(vC512)
    def m16(d, A, B, c): return f"v_mfma_f32_16x16x16_bf16 {vr(d,4)}, {vr(A,2)}, {vr(B,2)}, {c}"
    RB = {t: V.alloc(4) for t in range(5)}
    for t in range(5): p(m16(K[t], CA[1], BM[t], vr(K[t], 4)))
    for t in range(1, 5): p(m16(Q[t], CA[0], BM[t], vr(Q[t], 4)))
    for t in range(5): p(m16(RB[t], RS[t], C8, "0"))
    for t in range(5): p(m16(Vv[t], BM[t], CA[2], vr(Vv[t], 4)))
    for X in range(3): V.free(CA[X], 2)
    V.free(tA); V.free(tB); V.free(C8, 2)
    for t in range(5): V.free(BM[t], 2); V.free(RS[t], 2)
    vNEG, vSelLo, vSelHi = V.alloc(), V.alloc(), V.alloc()
    p(f"v_mov_b32 v{vNEG}, 0xff800000")
    p(f"v_mov_b32 v{vSelLo}, 0x0c0c0100")
    p(f"v_mov_b32 v{vSelHi}, 0x0c0c0302")
    tq = V.alloc(2)
    p(f"v_mov_b32 v{tq}, 0x01000c0c")
    p(f"v_mov_b32 v{tq+1}, 0x03020c0c")
    p(f"v_cndmask_b32 v{vSelLo}, v{vSelLo}, v{tq}, {sp(s_odd)}")
    p(f"v_cndmask_b32 v{vSelHi}, v{vSelHi}, v{tq+1}, {sp(s_odd)}")
    V.free(tq, 2)
    cq = {t: V.alloc() for t in range(1, 5)}
    for t in range(1, 5): p(f"v_mul_f32 v{cq[t]}, {fl(0.25*math.log2(math.e))}, v{rstd[t]}")
    vO = V.alloc(); t0 = V.alloc(); t1 = V.alloc()
    p(f"v_and_b32 v{t0}, 15, v0")
    p(f"v_bfe_u32 v{t1}, v0, 5, 1")
    p(f"v_lshl_add_u32 v{t0}, v{t1}, 5, v{t0}")
    p(f"v_lshlrev_b32 v{t0}, 4, v{t0}")
    p(f"v_bfe_u32 v{t1}, v0, 4, 1")
    p(f"v_lshl_add_u32 v{t0}, v{t1}, 3, v{t0}")
    p(f"s_lshl_b32 s{s_t0}, s{s_j}, 2")
    p(f"s_add_u32 s{s_t0}, s{s_t0}, s{s_w}")
    p(f"s_lshl_b32 s{s_t0}, s{s_t0}, 10")
    p(f"s_lshl_b32 s{s_t1}, s{s_rt}, 16")
    p(f"s_add_u32 s{s_t0}, s{s_t0}, s{s_t1}")
    if WS_O: p(f"s_add_u32 s{s_t0}, s{s_t0}, {WS_O}")
    p(f"v_add_u32 v{vO}, s{s_t0}, v{t0}")
    V.free(t0); V.free(t1)
    Qp = {t: V.alloc(2) for t in range(1, 5)}
    Kp = {t: V.alloc(2) for t in range(5)}
    Vp = V.alloc(10)
    st = []
    for t in range(5):
        s = [f"v_mul_f32 v{K[t]+r}, v{rstd[t]}, v{K[t]+r}" for r in range(4)]
        s += [f"v_cvt_pk_bf16_f32 v{Kp[t]+h}, v{K[t]+2*h}, v{K[t]+2*h+1}" for h in range(2)]
        if t >= 1: s += [f"v_cvt_pk_bf16_f32 v{Qp[t]+h}, v{Q[t]+2*h}, v{Q[t]+2*h+1}" for h in range(2)]
        s += [f"v_mul_f32 v{Vv[t]+r}, v{RB[t]+r}, v{Vv[t]+r}" for r in range(4)]
        s += [f"v_cvt_pk_bf16_f32 v{Vp+2*t+h}, v{Vv[t]+2*h}, v{Vv[t]+2*h+1}" for h in range(2)]
        st.append(s)
    p.add(zipmerge(*st))
    for t in range(5): V.free(K[t], 4); V.free(Vv[t], 4); V.free(RB[t], 4); V.free(rstd[t])
    for t in range(1, 5): V.free(Q[t], 4)
    blocks = []
    ones = g.ones
    allocs = []
    for b in range(4):
        qt = b + 1
        Sa, Sb, Pp, O, Dn = (V.alloc(4) for _ in range(5))
        v = [V.alloc() for _ in range(4)]
        m, mt, X1, X2 = (V.alloc() for _ in range(4))
        allocs += [(Sa, 4), (Sb, 4), (Pp, 4), (O, 4), (Dn, 4)] + [(x, 1) for x in v + [m, mt, X1, X2]]
        va0, va1 = (s_fa0, s_fa1) if b == 0 else (s_va0, s_va1)
        s = [m16(Sa, Kp[qt-1], Qp[qt], "0"), m16(Sb, Kp[qt], Qp[qt], "0")]
        s += [f"s_nop 0"] * 0
        s += [f"v_cndmask_b32 v{v[0]}, v{Sa}, v{Sa+1}, {sp(s_odd)}",
              f"v_cndmask_b32 v{v[1]}, v{Sa+2}, v{Sa+3}, {sp(s_odd)}",
              f"v_cndmask_b32 v{v[2]}, v{Sb}, v{Sb+1}, {sp(s_odd)}",
              f"v_cndmask_b32 v{v[3]}, v{Sb+2}, v{Sb+3}, {sp(s_odd)}",
              f"v_cndmask_b32 v{v[0]}, v{vNEG}, v{v[0]}, {sp(va0)}",
              f"v_cndmask_b32 v{v[1]}, v{vNEG}, v{v[1]}, {sp(va1)}",
              f"v_cndmask_b32 v{v[2]}, v{vNEG}, v{v[2]}, {sp(s_vb0)}",
              f"v_cndmask_b32 v{v[3]}, v{vNEG}, v{v[3]}, {sp(s_vb1)}",
              f"v_max3_f32 v{m}, v{v[0]}, v{v[1]}, v{v[2]}",
              f"v_max_f32 v{m}, v{m}, v{v[3]}",
              f"v_mov_b32 v{mt}, v{m}",
              f"v_permlane32_swap_b32 v{m}, v{mt}",
              f"v_max_f32 v{m}, v{m}, v{mt}",
              f"v_mov_b32 v{mt}, v{m}",
              f"v_permlane16_swap_b32 v{m}, v{mt}",
              f"v_max_f32 v{m}, v{m}, v{mt}",
              f"v_mul_f32 v{m}, v{cq[qt]}, v{m}"]
        s += [f"v_fma_f32 v{v[k]}, v{v[k]}, v{cq[qt]}, -v{m}" for k in range(4)]
        s += [f"v_exp_f32 v{v[k]}, v{v[k]}" for k in range(4)]
        s += [f"v_cvt_pk_bf16_f32 v{X1}, v{v[0]}, v{v[1]}",
              f"v_cvt_pk_bf16_f32 v{X2}, v{v[2]}, v{v[3]}",
              f"v_perm_b32 v{Pp}, v{X1}, v{X1}, v{vSelLo}",
              f"v_perm_b32 v{Pp+1}, v{X1}, v{X1}, v{vSelHi}",
              f"v_perm_b32 v{Pp+2}, v{X2}, v{X2}, v{vSelLo}",
              f"v_perm_b32 v{Pp+3}, v{X2}, v{X2}, v{vSelHi}",
              f"v_mfma_f32_16x16x32_bf16 {vr(Dn,4)}, {vr(ones,4)}, {vr(Pp,4)}, 0",
              f"v_mfma_f32_16x16x32_bf16 {vr(O,4)}, {vr(Vp+2*(qt-1),4)}, {vr(Pp,4)}, 0",
              f"v_rcp_f32 v{Dn}, v{Dn}"]
        s += [f"v_mul_f32 v{O+r}, v{Dn}, v{O+r}" for r in range(4)]
        s += [f"v_cvt_pk_bf16_f32 v{O}, v{O}, v{O+1}", f"v_cvt_pk_bf16_f32 v{O+1}, v{O+2}, v{O+3}"]
        so = f"s{s_k32}" if (b >> 1) else "0"
        off = f" offset:{(b & 1) * 256}" if (b & 1) else ""
        s += [T(f"buffer_store_dwordx2 {vr(O,2)}, v{vO}, {srd(sWS)}, {so} offen{off} sc1", "ost")]
        blocks.append(s)
    p.add(zipmerge(*blocks))
    for r, n in allocs: V.free(r, n)
    for t in range(1, 5): V.free(Qp[t], 2); V.free(cq[t])
    for t in range(5): V.free(Kp[t], 2)
    V.free(Vp, 10); V.free(vNEG); V.free(vSelLo); V.free(vSelHi); V.free(vO)

def build(cfg):
    g = G(); g.cfg = cfg
    g.V = V = Pool(1, 256)
    V.take(1, 1)
    g.vdummy = V.take(255, 1)
    if cfg.stamps: g.vstamp = V.take(254, 1)
    g.ones = V.alloc(4)
    p = Prog()
    prologue(p, g)
    p1_addresses(p, g)
    p("s_waitcnt lgkmcnt(0)")
    make_srd(p, sX, 4, 2048*512*2)
    make_srd(p, sWQ, 6, 512*1536*2)
    make_srd(p, sWO, 8, 512*512*2)
    make_srd(p, sW1, 12, 512*1792*2)
    make_srd(p, sW2, 16, 1792*512*2)
    make_srd(p, sOUT, 20, 2048*512*2)
    make_srd(p, sWS, 24, WS_SIZE)
    if cfg.stop_after >= 2:
        import kern2
        kern2.setup(p, g)
    phase1(p, g)
    phase1_epilogue(p, g)
    stamp(p, g, 3)
    if cfg.stop_after >= 2:
        import kern2
        kern2.rest(p, g)
    p("s_waitcnt vmcnt(0)")
    if cfg.stamps:
        stamp(p, g, 15)
        p(f"s_lshl_b32 s{s_t0}, s2, 2")
        p(f"s_add_u32 s{s_t0}, s{s_t0}, s{s_w}")
        p(f"s_lshl_b32 s{s_t0}, s{s_t0}, 8")
        p(f"s_add_u32 s{s_t0}, s{s_t0}, {WS_DBG}")
        p(f"v_lshlrev_b32 v1, 2, v0")
        p(f"v_add_u32 v1, s{s_t0}, v1")
        p(f"buffer_store_dword v{g.vstamp}, v1, {srd(sWS)}, 0 offen")
        p("s_waitcnt vmcnt(0)")
    p.label("L_end")
    p("s_endpgm")
    items, stats = finalize(p)
    body = render(items)
    for q in getattr(g, "tail_blocks", []):
        it2, _ = finalize(q)
        body += render(it2)
    body += "L_code_end:\n    s_endpgm\n"
    hdr = open("cdna_kernels/" + NAME + ".s.ref").read().split("; Override launch geometry")[0]
    out = hdr
    out += "; Override launch geometry by editing the next line (default: block=256,\n"
    out += f"; @launch grid=(256,1,1) block=(256,1,1) lds={LDS_SIZE}\n"
    out += '.amdgcn_target "amdgcn-amd-amdhsa--gfx950"\n.text\n'
    out += f".globl {KNAME}\n.p2align 8\n.type {KNAME},@function\n{KNAME}:\n"
    out += body
    out += f'''.section .rodata,"a"
.p2align 6
.amdhsa_kernel {KNAME}
  .amdhsa_next_free_vgpr 512
  .amdhsa_next_free_sgpr 102
  .amdhsa_accum_offset 256
  .amdhsa_group_segment_fixed_size 0
  .amdhsa_kernarg_size 88
  .amdhsa_user_sgpr_count 2
  .amdhsa_user_sgpr_kernarg_segment_ptr 1
  .amdhsa_system_sgpr_workgroup_id_x 1
.end_amdhsa_kernel
'''
    nins = sum(1 for i in items if i.kind not in ("none", "label"))
    stats["ninstr"] = nins; stats["vhigh"] = V.high
    return out, stats

if __name__ == "__main__":
    cfg = Cfg()
    outp = sys.argv[1]
    for a in sys.argv[2:]:
        k, v = a.split("=")
        setattr(cfg, k, int(v))
    s, st = build(cfg)
    open(outp, "w").write(s)
    print(st)
```

```python
import sys, math, struct
from core import *

NAME = "sequential_preLN__sliding_local_dilated__dense_activation_gelu__prompt"
KNAME = NAME + "_kernel"

WS_O    = 0
WS_H    = 2 << 20
WS_ST   = 4 << 20
WS_FL   = (4 << 20) + (512 << 10)
WS_H1   = 5 << 20
WS_DBG  = 13 << 20
WS_SIZE = 16 << 20

def f2u(x): return struct.unpack("<I", struct.pack("<f", x))[0]
def hx(x): return hex(x & 0xffffffff)
def fl(x): return hx(f2u(x))

sX, sWQ, sWO, sW1, sW2, sWS, sOUT = 28, 32, 36, 40, 44, 48, 52
sB1, sB2 = 14, 18
s_w, s_xg, s_j, s_rt, s_i16, s_R = 56, 57, 58, 59, 60, 61
s_t0, s_t1, s_t2, s_t3 = 62, 63, 64, 65
s_wl, s_xl0, s_xl2, s_cx, s_cw, s_ce = 66, 67, 68, 69, 70, 71
s_m1, s_m2, s_m3, s_diag = 72, 74, 76, 78
s_odd, s_va0, s_va1, s_vb0, s_vb1, s_fa0, s_fa1 = 80, 82, 84, 86, 88, 90, 92
s_nonce = 94
s_k32 = 96
s_c4 = 97
s_sv = 98
s_stamp = 100
def srd(n): return f"s[{n}:{n+3}]"
def sp(n): return f"s[{n}:{n+1}]"
def vr(a, n=1): return f"v{a}" if n == 1 else f"v[{a}:{a+n-1}]"

def mask64(fn):
    m = 0
    for l in range(64):
        if fn(l): m |= 1 << l
    return m
def set_mask(p, s, m):
    p(f"s_mov_b32 s{s}, {hx(m & 0xffffffff)}")
    p(f"s_mov_b32 s{s+1}, {hx(m >> 32)}")

L_X = 0; L_R = 81920; L_M = 159744
LDS_SIZE = 163840

class Cfg:
    stop_after = 4
    stamps = False
    rotate = True
    dbgspan = False
    codepf = True

class G:
    pass

def stamp(p, g, idx):
    if not g.cfg.stamps: return
    p(f"s_memtime {sp(s_stamp)}")
    p("s_waitcnt lgkmcnt(0)")
    p(f"v_writelane_b32 v{g.vstamp}, s{s_stamp}, {idx}")

def make_srd(p, s, base, nbytes):
    p(f"s_mov_b32 s{s}, s{base}")
    p(f"s_and_b32 s{s+1}, s{base+1}, 0xffff")
    p(f"s_mov_b32 s{s+2}, {nbytes}")
    p(f"s_mov_b32 s{s+3}, 0x00020000")

def prologue(p, g):
    cfg = g.cfg
    V = g.V
    p("s_cmp_ge_u32 s2, 256")
    p("s_cbranch_scc1 L_end")
    p("s_load_dwordx16 s[4:19], s[0:1], 0")
    p("s_load_dwordx4 s[20:23], s[0:1], 64")
    p("s_load_dwordx2 s[24:25], s[0:1], 80")
    p("s_getpc_b64 s[26:27]")
    p.label("L_pc")
    p("v_lshrrev_b32 v1, 6, v0")
    p("v_and_b32 v0, 63, v0")
    p(f"v_readfirstlane_b32 s{s_w}, v1")
    p(f"s_lshr_b32 s{s_t0}, s2, 3")
    p(f"s_lshl_b32 s{s_t0}, s{s_t0}, 2")
    p(f"s_add_u32 s{s_t0}, s{s_t0}, s{s_w}")
    p(f"s_lshl_b32 s{s_t0}, s{s_t0}, 8")
    p("v_lshlrev_b32 v1, 2, v0")
    p(f"v_add_u32 v1, s{s_t0}, v1")
    p(f"s_mov_b32 s{s_t1}, L_code_end-L_pc-4")
    p(f"v_min_u32 v1, s{s_t1}, v1")
    if cfg.codepf: p(f"global_load_dword v{g.vdummy}, v1, s[26:27]")
    if cfg.dbgspan:
        p("s_memrealtime s[100:101]")
        p("s_waitcnt lgkmcnt(0)")
        p(f"v_mov_b32 v253, s100")
    if cfg.stamps:
        p(f"v_mov_b32 v{g.vstamp}, 0")
        stamp(p, g, 0)
    p(f"s_and_b32 s{s_xg}, s2, 7")
    p(f"s_lshr_b32 s{s_t0}, s2, 3")
    p(f"s_and_b32 s{s_j}, s{s_t0}, 7")
    p(f"s_and_b32 s{s_i16}, s{s_t0}, 15")
    p(f"s_lshr_b32 s{s_c4}, s{s_t0}, 3")
    p(f"s_lshl_b32 s{s_rt}, s{s_xg}, 2")
    p(f"s_add_u32 s{s_rt}, s{s_rt}, s{s_c4}")
    p(f"s_lshr_b32 s{s_R}, s{s_rt}, 1")
    p(f"s_mov_b32 s{s_k32}, 32768")

def p1_addresses(p, g):
    V = g.V
    a = g.p1a = {k: V.alloc() for k in ["Wd0", "Wd1", "X0", "X1", "X2", "Xr0", "Xr1", "Ow0", "Ow1", "Hal", "Wr", "Wr2"]}
    t = [V.alloc() for _ in range(5)]
    t0, t1, t2, t3, t4 = t
    p(f"v_lshrrev_b32 v{t0}, 3, v0")
    p(f"s_lshl_b32 s{s_t0}, s{s_w}, 4")
    p(f"v_add_u32 v{t1}, s{s_t0}, v{t0}")
    p(f"v_mul_u32_u24 v{t1}, 3072, v{t1}")
    p(f"v_bfe_u32 v{t2}, v0, 1, 2")
    p(f"v_bfe_u32 v{t3}, v0, 4, 1")
    p(f"v_xor_b32 v{t2}, v{t2}, v{t3}")
    p(f"v_lshlrev_b32 v{t2}, 5, v{t2}")
    p(f"v_and_b32 v{t3}, 1, v0")
    p(f"v_lshlrev_b32 v{t3}, 4, v{t3}")
    p(f"v_add3_u32 v{t1}, v{t1}, v{t2}, v{t3}")
    p(f"s_lshl_b32 s{s_t1}, s{s_j}, 7")
    p(f"v_add_u32 v{a['Wd0']}, s{s_t1}, v{t1}")
    p(f"v_xor_b32 v{a['Wd1']}, 64, v{a['Wd0']}")
    p(f"v_add_u32 v{a['Wd1']}, {8*3072}, v{a['Wd1']}")
    p(f"s_lshl_b32 s{s_wl}, s{s_w}, 11")
    p(f"s_add_u32 s{s_wl}, s{s_wl}, {L_R}")
    p(f"s_and_b32 s{s_t0}, s{s_w}, 1")
    p(f"s_lshl_b32 s{s_t1}, s{s_t0}, 2")
    p(f"v_lshrrev_b32 v{t1}, 4, v0")
    p(f"v_add_u32 v{t1}, s{s_t1}, v{t1}")
    p(f"v_and_b32 v{t2}, 7, v0")
    p(f"v_xor_b32 v{t1}, v{t1}, v{t2}")
    p(f"v_lshlrev_b32 v{t1}, 4, v{t1}")
    p(f"v_lshl_add_u32 v{t1}, v{t0}, 10, v{t1}")
    p(f"s_lshl_b32 s{s_t1}, s{s_rt}, 6")
    p(f"s_lshl_b32 s{s_t2}, s{s_w}, 3")
    p(f"s_add_u32 s{s_t1}, s{s_t1}, s{s_t2}")
    p(f"s_sub_i32 s{s_t3}, s{s_t1}, 16")
    p(f"s_max_i32 s{s_t3}, s{s_t3}, 0")
    p(f"s_lshl_b32 s{s_t3}, s{s_t3}, 10")
    p(f"v_add_u32 v{a['X0']}, s{s_t3}, v{t1}")
    p(f"s_add_u32 s{s_t3}, s{s_t1}, 16")
    p(f"s_lshl_b32 s{s_t3}, s{s_t3}, 10")
    p(f"v_add_u32 v{a['X1']}, s{s_t3}, v{t1}")
    p(f"s_lshl_b32 s{s_t3}, s{s_rt}, 6")
    p(f"s_lshl_b32 s{s_t2}, s{s_t0}, 3")
    p(f"s_add_u32 s{s_t3}, s{s_t3}, s{s_t2}")
    p(f"s_add_u32 s{s_t3}, s{s_t3}, 48")
    p(f"s_lshl_b32 s{s_t3}, s{s_t3}, 10")
    p(f"v_add_u32 v{a['X2']}, s{s_t3}, v{t1}")
    p(f"s_lshl_b32 s{s_xl0}, s{s_w}, 10")
    p(f"s_lshr_b32 s{s_t1}, s{s_w}, 1")
    p(f"s_mul_i32 s{s_xl2}, s{s_t1}, 10240")
    p(f"s_lshl_b32 s{s_t2}, s{s_t0}, 10")
    p(f"s_add_u32 s{s_xl2}, s{s_xl2}, s{s_t2}")
    p(f"s_add_u32 s{s_xl2}, s{s_xl2}, 8192")
    p(f"v_and_b32 v{t0}, 15, v0")
    p(f"v_lshrrev_b32 v{t1}, 4, v0")
    p(f"v_lshrrev_b32 v{t2}, 1, v{t0}")
    p(f"v_xor_b32 v{t2}, v{t2}, v{t1}")
    p(f"v_lshlrev_b32 v{t2}, 4, v{t2}")
    p(f"v_lshl_add_u32 v{a['Xr0']}, v{t0}, 7, v{t2}")
    p(f"v_xor_b32 v{a['Xr1']}, 64, v{a['Xr0']}")
    p(f"s_add_u32 s{s_t2}, s{s_w}, 1")
    p(f"s_lshl_b32 s{s_t2}, s{s_t2}, 11")
    p(f"v_add_u32 v{a['Ow0']}, s{s_t2}, v{a['Xr0']}")
    p(f"v_add_u32 v{a['Ow1']}, s{s_t2}, v{a['Xr1']}")
    p(f"s_lshl_b32 s{s_t2}, s{s_t0}, 6")
    p(f"v_xor_b32 v{a['Hal']}, s{s_t2}, v{a['Xr0']}")
    p(f"s_mul_i32 s{s_t2}, s{s_t1}, 10240")
    p(f"v_add_u32 v{a['Hal']}, s{s_t2}, v{a['Hal']}")
    p(f"v_lshrrev_b32 v{t2}, 2, v{t0}")
    p(f"v_lshl_add_u32 v{t2}, v{t1}, 3, v{t2}")
    p(f"v_lshlrev_b32 v{t2}, 7, v{t2}")
    p(f"v_bfe_u32 v{t3}, v0, 3, 1")
    p(f"v_bfe_u32 v{t4}, v0, 4, 1")
    p(f"v_lshl_add_u32 v{t3}, v{t4}, 1, v{t3}")
    p(f"v_xor_b32 v{t3}, s{s_w}, v{t3}")
    p(f"v_lshl_add_u32 v{t2}, v{t3}, 5, v{t2}")
    p(f"v_and_b32 v{t3}, 3, v0")
    p(f"v_lshl_add_u32 v{t2}, v{t3}, 3, v{t2}")
    p(f"v_add_u32 v{a['Wr']}, {L_R}, v{t2}")
    p(f"v_add_u32 v{a['Wr2']}, 49152, v{a['Wr']}")
    for r in t: V.free(r)

def chunk_sregs(i, rot):
    if rot:
        return [f"s_add_u32 s{s_cx}, s{s_xg}, {i}", f"s_and_b32 s{s_cx}, s{s_cx}, 7",
                f"s_mul_i32 s{s_cw}, s{s_cx}, 196608", f"s_lshl_b32 s{s_cx}, s{s_cx}, 7"]
    return [f"s_mov_b32 s{s_cw}, {i*196608}", f"s_mov_b32 s{s_cx}, {i*128}"]

def dma_w(g, i):
    a = g.p1a; out = []
    slot = i % 3
    for X in range(3):
        for e in range(2):
            out.append(f"s_add_u32 m0, s{s_wl}, {slot*24576 + X*7168 + e*1024}")
            off = f" offset:{X*1024}" if X else ""
            out.append(T(f"buffer_load_dwordx4 v{a['Wd%d' % e]}, {srd(sWQ)}, s{s_cw} offen{off} lds", f"W{i}"))
    return out

def dma_x_pair(g, pr):
    a = g.p1a; out = []
    rot = g.cfg.rotate
    for ii in range(2):
        i = 2 * pr + ii
        if rot:
            out += [f"s_add_u32 s{s_cx}, s{s_xg}, {i}", f"s_and_b32 s{s_cx}, s{s_cx}, 7", f"s_lshl_b32 s{s_cx}, s{s_cx}, 7"]
        else:
            out += [f"s_mov_b32 s{s_cx}, {i*128}"]
        out.append(f"s_add_u32 m0, s{s_xl0}, {L_X + i*10240}")
        out.append(T(f"buffer_load_dwordx4 v{a['X0']}, {srd(sX)}, s{s_cx} offen lds", f"X{pr}"))
        out.append(f"s_add_u32 m0, s{s_xl0}, {L_X + i*10240 + 4096}")
        out.append(T(f"buffer_load_dwordx4 v{a['X1']}, {srd(sX)}, s{s_cx} offen lds", f"X{pr}"))
    out.append(f"s_lshr_b32 s{s_ce}, s{s_w}, 1")
    if rot:
        out += [f"s_add_u32 s{s_ce}, s{s_ce}, s{s_xg}", f"s_add_u32 s{s_ce}, s{s_ce}, {2*pr}", f"s_and_b32 s{s_ce}, s{s_ce}, 7"]
    else:
        out += [f"s_add_u32 s{s_ce}, s{s_ce}, {2*pr}"]
    out.append(f"s_lshl_b32 s{s_ce}, s{s_ce}, 7")
    out.append(f"s_add_u32 m0, s{s_xl2}, {L_X + 2*pr*10240}")
    out.append(T(f"buffer_load_dwordx4 v{a['X2']}, {srd(sX)}, s{s_ce} offen lds", f"X{pr}"))
    return out

def w_chunk_dma(g, i):
    rot = g.cfg.rotate
    if rot:
        pre = [f"s_add_u32 s{s_cw}, s{s_xg}, {i}", f"s_and_b32 s{s_cw}, s{s_cw}, 7", f"s_mul_i32 s{s_cw}, s{s_cw}, 196608"]
    else:
        pre = [f"s_mov_b32 s{s_cw}, {i*196608}"]
    return pre + dma_w(g, i)

def phase1(p, g):
    V = g.V
    a = g.p1a
    ones = g.ones
    FB = [V.alloc(36), V.alloc(36)]
    def fx(b, t): return FB[b] + 4 * t
    def fw(b, X): return FB[b] + 24 + 4 * X
    hal = V.alloc(4)
    Q = {t: V.alloc(4) for t in range(1, 5)}
    K = {t: V.alloc(4) for t in range(5)}
    Vv = {t: V.alloc(4) for t in range(5)}
    cs = [V.alloc(4) for _ in range(3)]
    sumO, gramO, sumH, gramH = (V.alloc(4) for _ in range(4))
    g.xres = xres = V.alloc(8)

    p.add(dma_x_pair(g, 0)); p.add(w_chunk_dma(g, 0)); p.add(w_chunk_dma(g, 1)); p.add(dma_x_pair(g, 1)); p.add(w_chunk_dma(g, 2))
    for r in range(4): p(f"v_mov_b32 v{ones+r}, 0x3f803f80")

    def reads(n):
        i, s_ = n >> 1, n & 1
        b = n & 1
        xo = (i * 10240 if i < 6 else (i - 6) * 10240)
        slot = i % 3
        wreg, wo = (a['Wr'], slot * 24576) if slot < 2 else (a['Wr2'], 0)
        xr, ow = a['Xr%d' % s_], a['Ow%d' % s_]
        def wr(X):
            return [f"ds_read_b64_tr_b16 {vr(fw(b, X) + 2*rd, 2)}, v{wreg} offset:{wo + X*8192 + s_*4096 + rd*512}" for rd in range(2)]
        out = wr(1)
        out += [f"ds_read_b128 {vr(fx(b, t), 4)}, v{xr} offset:{xo + t*2048}" for t in range(5)]
        out += wr(2) + wr(0)
        out += [f"ds_read_b128 {vr(fx(b, 5), 4)}, v{ow} offset:{xo}"]
        return out
    def mf(d, A, B, first):
        c = "0" if first else vr(d, 4)
        return f"v_mfma_f32_16x16x32_bf16 {vr(d,4)}, {vr(A,4)}, {vr(B,4)}, {c}"
    def mfmas(n):
        b = n & 1; f = n == 0
        out = [mf(K[t], fw(b, 1), fx(b, t), f) for t in range(5)]
        out.append(mf(cs[1], ones, fw(b, 1), f))
        out += [mf(Vv[t], fx(b, t), fw(b, 2), f) for t in range(5)]
        out.append(mf(cs[2], ones, fw(b, 2), f))
        out += [mf(Q[t], fw(b, 0), fx(b, t), f) for t in range(1, 5)]
        out.append(mf(cs[0], ones, fw(b, 0), f))
        out.append(mf(sumO, ones, fx(b, 5), f))
        out.append(mf(gramO, fx(b, 5), fx(b, 5), f))
        return out

    p.wait_vm(["X0", "W0"]); p("s_barrier")
    stamp(p, g, 1)
    p.add(reads(0))
    for n in range(16):
        i, s_ = n >> 1, n & 1
        pre = []
        if s_ == 1 and i < 7:
            tags = [f"W{i+1}"] + ([f"X{(i+1)//2}"] if (i + 1) % 2 == 0 else [])
            p.wait_vm(tags); p.wait_lgkm0(); p("s_barrier")
        m = mfmas(n)
        fill = []
        if n == 11:
            fill += [f"v_add_u32 v{a[k]}, 61440, v{a[k]}" for k in ("Xr0", "Xr1", "Ow0", "Ow1")]
        if n < 15: fill += reads(n + 1)
        if n % 4 == 2:
            pr = n // 4
            if pr == 3: fill.append(f"v_add_u32 v{a['Hal']}, 61440, v{a['Hal']}")
            fill.append(f"ds_read_b128 {vr(hal,4)}, v{a['Hal']} offset:{(pr % 3) * 20480 if pr < 3 else 0}")
        if n % 4 == 3:
            m.append(mf(sumH, ones, hal, n == 3)); m.append(mf(gramH, hal, hal, n == 3))
        if s_ == 1 and i + 3 < 8: fill += w_chunk_dma(g, i + 3)
        if n == 2: fill += dma_x_pair(g, 2)
        if n == 6: fill += dma_x_pair(g, 3)
        if n == 14:
            fill += xres_reads(p, g)
        p.add(spread(m, fill, 0, len(m) - 1))
    g.p1 = dict(Q=Q, K=K, V=Vv, cs=cs, sumO=sumO, gramO=gramO, sumH=sumH, gramH=gramH, FB=FB, hal=hal)
    V.free(FB[0], 36); V.free(FB[1], 36); V.free(hal, 4)
    for k in a: V.free(a[k])

def xres_reads(p, g):
    V = g.V
    t0, t1, t2, t3 = (V.alloc() for _ in range(4))
    out = []
    out.append(f"s_and_b32 s{s_t0}, s{s_w}, 1")
    out.append(f"s_lshl_b32 s{s_t0}, s{s_t0}, 5")
    out.append(f"s_add_u32 s{s_t0}, s{s_t0}, 16")
    out.append(f"v_and_b32 v{t0}, 31, v0")
    out.append(f"v_add_u32 v{t0}, s{s_t0}, v{t0}")
    out.append(f"v_bfe_u32 v{t1}, v{t0}, 1, 3")
    out.append(f"s_lshr_b32 s{s_t1}, s{s_w}, 1")
    out.append(f"s_lshl_b32 s{s_t1}, s{s_t1}, 2")
    out.append(f"v_xor_b32 v{t1}, s{s_t1}, v{t1}")
    if g.cfg.rotate:
        out += [f"s_sub_u32 s{s_t2}, s{s_j}, s{s_xg}", f"s_and_b32 s{s_t2}, s{s_t2}, 7"]
    else:
        out += [f"s_mov_b32 s{s_t2}, s{s_j}"]
    out.append(f"s_mul_i32 s{s_t2}, s{s_t2}, 10240")
    out.append(f"v_lshrrev_b32 v{t2}, 5, v0")
    out.append(f"v_lshlrev_b32 v{t2}, 3, v{t2}")
    out.append(f"v_lshl_add_u32 v{t2}, v{t0}, 7, v{t2}")
    out.append(f"v_add_u32 v{t2}, s{s_t2}, v{t2}")
    for q in range(4):
        out.append(f"v_xor_b32 v{t3}, {q}, v{t1}")
        out.append(f"v_lshl_add_u32 v{t3}, v{t3}, 4, v{t2}")
        out.append(f"ds_read_b64 {vr(g.xres + 2*q, 2)}, v{t3} offset:{L_X}")
    g._xres_tmp = [t0, t1, t2, t3]
    for r in g._xres_tmp: V.free(r)
    return out

def split_hi_lo(val, dst, t0, t1, dup):
    o = [f"v_cvt_pk_bf16_f32 v{t0}, v{val}, v{val}",
         f"v_and_b32 v{t0}, 0xffff0000, v{t0}",
         f"v_sub_f32 v{t1}, v{val}, v{t0}",
         f"v_cvt_pk_bf16_f32 v{dst}, v{t0}, v{t1}"]
    if dup: o.append(f"v_mov_b32 v{dst+1}, v{dst}")
    return o

def phase1_epilogue(p0, g):
    p = Prog()
    phase1_epilogue_body(p, g)
    items = p.items
    pairs = g.p1_prefetch_pairs() if hasattr(g, "p1_prefetch_pairs") else []
    if pairs:
        b = next(i for i, it in enumerate(items) if isinstance(it, Ins) and it.kind == "barrier")
        e = max(i for i, it in enumerate(items) if isinstance(it, Ins) and it.mn.startswith("v_exp"))
        items = spread_pairs(items, pairs, b + 1, e)
    p0.add(items)

def phase1_epilogue_body(p, g):
    V = g.V; P = g.p1
    Q, K, Vv, cs = P["Q"], P["K"], P["V"], P["cs"]
    set_mask(p, s_m1, mask64(lambda l: (l & 3) == 1))
    set_mask(p, s_m2, mask64(lambda l: (l & 3) == 2))
    set_mask(p, s_m3, mask64(lambda l: (l & 3) == 3))
    set_mask(p, s_diag, mask64(lambda l: (l >> 4) == ((l & 15) >> 2)))
    def qgp(l): return (l & 15), (l >> 4), (l & 1)
    set_mask(p, s_odd, mask64(lambda l: l & 1))
    mva0 = mask64(lambda l: 4*(l >> 4) + (l & 1) >= (l & 15) + 2)
    mva1 = mask64(lambda l: 4*(l >> 4) + (l & 1) + 2 >= (l & 15) + 2)
    set_mask(p, s_va0, mva0); set_mask(p, s_va1, mva1)
    set_mask(p, s_vb0, mask64(lambda l: 4*(l >> 4) + (l & 1) <= (l & 15)))
    set_mask(p, s_vb1, mask64(lambda l: 4*(l >> 4) + (l & 1) + 2 <= (l & 15)))
    p(f"s_cmp_eq_u32 s{s_rt}, 0")
    p(f"s_cselect_b64 {sp(s_fa0)}, 0, {sp(s_va0)}")
    p(f"s_cselect_b64 {sp(s_fa1)}, 0, {sp(s_va1)}")
    vA1, vA2, vA3 = V.alloc(), V.alloc(), V.alloc()
    p(f"v_and_b32 v{vA3}, 15, v0")
    p(f"v_lshlrev_b32 v{vA3}, 3, v{vA3}")
    p(f"v_add_u32 v{vA3}, {L_M}, v{vA3}")
    p(f"s_add_u32 s{s_t0}, s{s_w}, 1")
    p(f"s_lshl_b32 s{s_t0}, s{s_t0}, 7")
    p(f"v_add_u32 v{vA1}, s{s_t0}, v{vA3}")
    p(f"s_lshl_b32 s{s_t0}, s{s_w}, 7")
    p(f"s_add_u32 s{s_t0}, s{s_t0}, 1024")
    p(f"v_add_u32 v{vA2}, s{s_t0}, v{vA3}")
    p.wait_lgkm0(); p("s_barrier")
    stamp(p, g, 2)
    PO, PH = V.alloc(2), V.alloc(2)
    for (dst, sm, gr) in ((PO, P["sumO"], P["gramO"]), (PH, P["sumH"], P["gramH"])):
        p(f"v_mov_b32 v{dst}, v{sm}")
        p(f"v_cndmask_b32 v{dst+1}, v{gr}, v{gr+1}, {sp(s_m1)}")
        p(f"v_cndmask_b32 v{dst+1}, v{dst+1}, v{gr+2}, {sp(s_m2)}")
        p(f"v_cndmask_b32 v{dst+1}, v{dst+1}, v{gr+3}, {sp(s_m3)}")
    p(f"s_mov_b64 exec, {sp(s_diag)}")
    p(f"ds_write_b64 v{vA1}, {vr(PO,2)}")
    p(f"ds_write_b64 v{vA2}, {vr(PH,2)}")
    p("s_mov_b64 exec, -1")
    for k in ("sumO", "gramO", "sumH", "gramH"): V.free(P[k], 4)
    V.free(PO, 2); V.free(PH, 2); V.free(vA1); V.free(vA2)
    CA = [V.alloc(2) for _ in range(3)]
    tA, tB = V.alloc(), V.alloc()
    csops = []
    for X in range(3):
        csops += [f"v_cvt_pk_bf16_f32 v{CA[X]}, v{cs[X]}, v{cs[X]}",
                  f"v_and_b32 v{tA}, 0xffff0000, v{CA[X]}",
                  f"v_sub_f32 v{tB}, v{cs[X]}, v{tA}",
                  f"v_cvt_pk_bf16_f32 v{CA[X]+1}, v{tB}, v{tB}"]
    p.wait_lgkm0(); p("s_barrier")
    ST = {t: V.alloc(2) for t in range(1, 5)}
    HP = [V.alloc(2) for _ in range(4)]
    for u in range(4): p(f"ds_read_b64 {vr(HP[u],2)}, v{vA3} offset:{1024 + u*128}")
    for t in range(1, 5): p(f"ds_read_b64 {vr(ST[t],2)}, v{vA3} offset:{t*128}")
    p.add(csops)
    for X in range(3): V.free(cs[X], 4)
    V.free(vA3)
    p(f"v_pk_add_f32 {vr(HP[0],2)}, {vr(HP[0],2)}, {vr(HP[1],2)}")
    p(f"v_pk_add_f32 {vr(HP[2],2)}, {vr(HP[2],2)}, {vr(HP[3],2)}")
    p(f"v_pk_add_f32 {vr(HP[0],2)}, {vr(HP[0],2)}, {vr(HP[2],2)}")
    ST[0] = HP[0]
    for u in range(1, 4): V.free(HP[u], 2)
    vC512, C8 = V.alloc(), V.alloc(2)
    p(f"v_mov_b32 v{vC512}, {fl(1/512)}")
    p(f"v_mov_b32 v{C8}, 0x3e003e00")
    p(f"v_mov_b32 v{C8+1}, 0x3e003e00")
    BM = {t: V.alloc(2) for t in range(5)}
    RS = {t: V.alloc(2) for t in range(5)}
    rstd = {t: V.alloc() for t in range(5)}
    streams = []
    tmps = []
    for t in range(5):
        a0, a1, a2, a3 = (V.alloc() for _ in range(4)); tmps += [a0, a1, a2, a3]
        sm, sq = ST[t], ST[t] + 1
        s = [f"v_mul_f32 v{a0}, {fl(-1/2048)}, v{sm}",
             f"v_fmaak_f32 v{a1}, v{sq}, v{vC512}, {fl(1e-5)}",
             f"v_mul_f32 v{a2}, v{vC512}, v{sm}",
             f"v_fma_f32 v{a1}, -v{a2}, v{a2}, v{a1}",
             f"v_rsq_f32 v{rstd[t]}, v{a1}"]
        s += split_hi_lo(a0, BM[t], a2, a3, True)
        s += split_hi_lo(rstd[t], RS[t], a2, a3, True)
        streams.append(s)
    p.add(zipmerge(*streams))
    for r in tmps: V.free(r)
    for t in range(5): V.free(ST[t], 2)
    V.free(vC512)
    def m16(d, A, B, c): return f"v_mfma_f32_16x16x16_bf16 {vr(d,4)}, {vr(A,2)}, {vr(B,2)}, {c}"
    RB = {t: V.alloc(4) for t in range(5)}
    for t in range(5): p(m16(K[t], CA[1], BM[t], vr(K[t], 4)))
    for t in range(1, 5): p(m16(Q[t], CA[0], BM[t], vr(Q[t], 4)))
    for t in range(5): p(m16(RB[t], RS[t], C8, "0"))
    for t in range(5): p(m16(Vv[t], BM[t], CA[2], vr(Vv[t], 4)))
    for X in range(3): V.free(CA[X], 2)
    V.free(tA); V.free(tB); V.free(C8, 2)
    for t in range(5): V.free(BM[t], 2); V.free(RS[t], 2)
    vNEG, vSelLo, vSelHi = V.alloc(), V.alloc(), V.alloc()
    p(f"v_mov_b32 v{vNEG}, 0xff800000")
    p(f"v_mov_b32 v{vSelLo}, 0x0c0c0100")
    p(f"v_mov_b32 v{vSelHi}, 0x0c0c0302")
    tq = V.alloc(2)
    p(f"v_mov_b32 v{tq}, 0x01000c0c")
    p(f"v_mov_b32 v{tq+1}, 0x03020c0c")
    p(f"v_cndmask_b32 v{vSelLo}, v{vSelLo}, v{tq}, {sp(s_odd)}")
    p(f"v_cndmask_b32 v{vSelHi}, v{vSelHi}, v{tq+1}, {sp(s_odd)}")
    V.free(tq, 2)
    cq = {t: V.alloc() for t in range(1, 5)}
    for t in range(1, 5): p(f"v_mul_f32 v{cq[t]}, {fl(0.25*math.log2(math.e))}, v{rstd[t]}")
    vO = V.alloc(); t0 = V.alloc(); t1 = V.alloc()
    p(f"v_and_b32 v{t0}, 15, v0")
    p(f"v_bfe_u32 v{t1}, v0, 5, 1")
    p(f"v_lshl_add_u32 v{t0}, v{t1}, 5, v{t0}")
    p(f"v_lshlrev_b32 v{t0}, 4, v{t0}")
    p(f"v_bfe_u32 v{t1}, v0, 4, 1")
    p(f"v_lshl_add_u32 v{t0}, v{t1}, 3, v{t0}")
    p(f"s_lshl_b32 s{s_t0}, s{s_j}, 2")
    p(f"s_add_u32 s{s_t0}, s{s_t0}, s{s_w}")
    p(f"s_lshl_b32 s{s_t0}, s{s_t0}, 10")
    p(f"s_lshl_b32 s{s_t1}, s{s_rt}, 16")
    p(f"s_add_u32 s{s_t0}, s{s_t0}, s{s_t1}")
    if WS_O: p(f"s_add_u32 s{s_t0}, s{s_t0}, {WS_O}")
    p(f"v_add_u32 v{vO}, s{s_t0}, v{t0}")
    V.free(t0); V.free(t1)
    Qp = {t: V.alloc(2) for t in range(1, 5)}
    Kp = {t: V.alloc(2) for t in range(5)}
    Vp = V.alloc(10)
    st = []
    for t in range(5):
        s = [f"v_mul_f32 v{K[t]+r}, v{rstd[t]}, v{K[t]+r}" for r in range(4)]
        s += [f"v_cvt_pk_bf16_f32 v{Kp[t]+h}, v{K[t]+2*h}, v{K[t]+2*h+1}" for h in range(2)]
        if t >= 1: s += [f"v_cvt_pk_bf16_f32 v{Qp[t]+h}, v{Q[t]+2*h}, v{Q[t]+2*h+1}" for h in range(2)]
        s += [f"v_mul_f32 v{Vv[t]+r}, v{RB[t]+r}, v{Vv[t]+r}" for r in range(4)]
        s += [f"v_cvt_pk_bf16_f32 v{Vp+2*t+h}, v{Vv[t]+2*h}, v{Vv[t]+2*h+1}" for h in range(2)]
        st.append(s)
    p.add(zipmerge(*st))
    for t in range(5): V.free(K[t], 4); V.free(Vv[t], 4); V.free(RB[t], 4); V.free(rstd[t])
    for t in range(1, 5): V.free(Q[t], 4)
    blocks = []
    ones = g.ones
    allocs = []
    for b in range(4):
        qt = b + 1
        Sa, Sb, Pp, O, Dn = (V.alloc(4) for _ in range(5))
        v = [V.alloc() for _ in range(4)]
        m, mt, X1, X2 = (V.alloc() for _ in range(4))
        allocs += [(Sa, 4), (Sb, 4), (Pp, 4), (O, 4), (Dn, 4)] + [(x, 1) for x in v + [m, mt, X1, X2]]
        va0, va1 = (s_fa0, s_fa1) if b == 0 else (s_va0, s_va1)
        s = [m16(Sa, Kp[qt-1], Qp[qt], "0"), m16(Sb, Kp[qt], Qp[qt], "0")]
        s += [f"s_nop 0"] * 0
        s += [f"v_cndmask_b32 v{v[0]}, v{Sa}, v{Sa+1}, {sp(s_odd)}",
              f"v_cndmask_b32 v{v[1]}, v{Sa+2}, v{Sa+3}, {sp(s_odd)}",
              f"v_cndmask_b32 v{v[2]}, v{Sb}, v{Sb+1}, {sp(s_odd)}",
              f"v_cndmask_b32 v{v[3]}, v{Sb+2}, v{Sb+3}, {sp(s_odd)}",
              f"v_cndmask_b32 v{v[0]}, v{vNEG}, v{v[0]}, {sp(va0)}",
              f"v_cndmask_b32 v{v[1]}, v{vNEG}, v{v[1]}, {sp(va1)}",
              f"v_cndmask_b32 v{v[2]}, v{vNEG}, v{v[2]}, {sp(s_vb0)}",
              f"v_cndmask_b32 v{v[3]}, v{vNEG}, v{v[3]}, {sp(s_vb1)}",
              f"v_max3_f32 v{m}, v{v[0]}, v{v[1]}, v{v[2]}",
              f"v_max_f32 v{m}, v{m}, v{v[3]}",
              f"v_mov_b32 v{mt}, v{m}",
              f"v_permlane32_swap_b32 v{m}, v{mt}",
              f"v_max_f32 v{m}, v{m}, v{mt}",
              f"v_mov_b32 v{mt}, v{m}",
              f"v_permlane16_swap_b32 v{m}, v{mt}",
              f"v_max_f32 v{m}, v{m}, v{mt}",
              f"v_mul_f32 v{m}, v{cq[qt]}, v{m}"]
        s += [f"v_fma_f32 v{v[k]}, v{v[k]}, v{cq[qt]}, -v{m}" for k in range(4)]
        s += [f"v_exp_f32 v{v[k]}, v{v[k]}" for k in range(4)]
        s += [f"v_cvt_pk_bf16_f32 v{X1}, v{v[0]}, v{v[1]}",
              f"v_cvt_pk_bf16_f32 v{X2}, v{v[2]}, v{v[3]}",
              f"v_perm_b32 v{Pp}, v{X1}, v{X1}, v{vSelLo}",
              f"v_perm_b32 v{Pp+1}, v{X1}, v{X1}, v{vSelHi}",
              f"v_perm_b32 v{Pp+2}, v{X2}, v{X2}, v{vSelLo}",
              f"v_perm_b32 v{Pp+3}, v{X2}, v{X2}, v{vSelHi}",
              f"v_mfma_f32_16x16x32_bf16 {vr(Dn,4)}, {vr(ones,4)}, {vr(Pp,4)}, 0",
              f"v_mfma_f32_16x16x32_bf16 {vr(O,4)}, {vr(Vp+2*(qt-1),4)}, {vr(Pp,4)}, 0",
              f"v_rcp_f32 v{Dn}, v{Dn}"]
        s += [f"v_mul_f32 v{O+r}, v{Dn}, v{O+r}" for r in range(4)]
        s += [f"v_cvt_pk_bf16_f32 v{O}, v{O}, v{O+1}", f"v_cvt_pk_bf16_f32 v{O+1}, v{O+2}, v{O+3}"]
        so = f"s{s_k32}" if (b >> 1) else "0"
        off = f" offset:{(b & 1) * 256}" if (b & 1) else ""
        s += [T(f"buffer_store_dwordx2 {vr(O,2)}, v{vO}, {srd(sWS)}, {so} offen{off} sc1", "ost")]
        blocks.append(s)
    p.add(zipmerge(*blocks))
    for r, n in allocs: V.free(r, n)
    for t in range(1, 5): V.free(Qp[t], 2); V.free(cq[t])
    for t in range(5): V.free(Kp[t], 2)
    V.free(Vp, 10); V.free(vNEG); V.free(vSelLo); V.free(vSelHi); V.free(vO)

def build(cfg):
    g = G(); g.cfg = cfg
    g.V = V = Pool(1, 256)
    V.take(1, 1)
    g.vdummy = V.take(255, 1)
    if cfg.stamps: g.vstamp = V.take(254, 1)
    if cfg.dbgspan: V.take(253, 1)
    g.ones = V.alloc(4)
    p = Prog()
    prologue(p, g)
    p1_addresses(p, g)
    p("s_waitcnt lgkmcnt(0)")
    make_srd(p, sX, 4, 2048*512*2)
    make_srd(p, sWQ, 6, 512*1536*2)
    make_srd(p, sWO, 8, 512*512*2)
    make_srd(p, sW1, 12, 512*1792*2)
    make_srd(p, sW2, 16, 1792*512*2)
    make_srd(p, sOUT, 20, 2048*512*2)
    make_srd(p, sWS, 24, WS_SIZE)
    if cfg.dbgspan: p("s_mov_b64 s[26:27], s[22:23]")
    if cfg.stop_after >= 2:
        import kern2
        kern2.setup(p, g)
    phase1(p, g)
    phase1_epilogue(p, g)
    stamp(p, g, 3)
    if cfg.stop_after >= 2:
        import kern2
        kern2.rest(p, g)
    p("s_waitcnt vmcnt(0)")
    if cfg.stamps:
        stamp(p, g, 15)
        p(f"s_lshl_b32 s{s_t0}, s2, 2")
        p(f"s_add_u32 s{s_t0}, s{s_t0}, s{s_w}")
        p(f"s_lshl_b32 s{s_t0}, s{s_t0}, 8")
        p(f"s_add_u32 s{s_t0}, s{s_t0}, {WS_DBG}")
        p(f"v_lshlrev_b32 v1, 2, v0")
        p(f"v_add_u32 v1, s{s_t0}, v1")
        p(f"buffer_store_dword v{g.vstamp}, v1, {srd(sWS)}, 0 offen")
        p("s_waitcnt vmcnt(0)")
    if cfg.dbgspan:
        p("s_memrealtime s[100:101]")
        p("s_waitcnt lgkmcnt(0)")
        p("v_not_b32 v253, v253")
        p("v_mov_b32 v2, s100")
        p("v_mov_b32 v1, 0")
        p(f"s_cmp_eq_u32 s{s_w}, 0")
        p("s_cselect_b64 exec, 1, 0")
        p("global_atomic_umax v1, v253, s[26:27]")
        p("global_atomic_umax v1, v2, s[26:27] offset:4")
        if cfg.stamps:
            p(f"s_or_b32 s{s_t0}, s{s_w}, s2")
            p(f"s_cmp_eq_u32 s{s_t0}, 0")
            p("s_cselect_b64 exec, 0x3fff, 0")
            p("v_lshlrev_b32 v1, 2, v0")
            p(f"global_store_dword v1, v{g.vstamp}, s[26:27] offset:8")
        p("s_mov_b64 exec, -1")
        p("s_waitcnt vmcnt(0)")
    p.label("L_end")
    p("s_endpgm")
    items, stats = finalize(p)
    body = render(items)
    for q in getattr(g, "tail_blocks", []):
        it2, _ = finalize(q)
        body += render(it2)
    body += "L_code_end:\n    s_endpgm\n"
    hdr = open("cdna_kernels/" + NAME + ".s.ref").read().split("; Override launch geometry")[0]
    out = hdr
    out += "; Override launch geometry by editing the next line (default: block=256,\n"
    out += f"; @launch grid=(256,1,1) block=(256,1,1) lds={LDS_SIZE}\n"
    out += '.amdgcn_target "amdgcn-amd-amdhsa--gfx950"\n.text\n'
    out += f".globl {KNAME}\n.p2align 8\n.type {KNAME},@function\n{KNAME}:\n"
    out += body
    out += f'''.section .rodata,"a"
.p2align 6
.amdhsa_kernel {KNAME}
  .amdhsa_next_free_vgpr 512
  .amdhsa_next_free_sgpr 102
  .amdhsa_accum_offset 256
  .amdhsa_group_segment_fixed_size 0
  .amdhsa_kernarg_size 88
  .amdhsa_user_sgpr_count 2
  .amdhsa_user_sgpr_kernarg_segment_ptr 1
  .amdhsa_system_sgpr_workgroup_id_x 1
.end_amdhsa_kernel
'''
    nins = sum(1 for i in items if i.kind not in ("none", "label"))
    stats["ninstr"] = nins; stats["vhigh"] = V.high
    return out, stats

if __name__ == "__main__":
    cfg = Cfg()
    outp = sys.argv[1]
    for a in sys.argv[2:]:
        k, v = a.split("=")
        setattr(cfg, k, int(v))
    s, st = build(cfg)
    open(outp, "w").write(s)
    print(st)
```

```python
import re

REG_RE = re.compile(r'^(-|abs\()?\s*([vas])(?:\[(\d+):(\d+)\]|(\d+))\)?$')

def parse_reg(tok):
    t = tok.strip()
    if t in ("vcc", "exec", "m0", "scc"):
        return [(t, 0)]
    if t in ("vcc_lo", "vcc_hi"):
        return [("vcc", 0)]
    if t in ("exec_lo", "exec_hi"):
        return [("exec", 0)]
    m = REG_RE.match(t)
    if not m:
        return []
    k = m.group(2)
    if m.group(3) is not None:
        return [(k, i) for i in range(int(m.group(3)), int(m.group(4)) + 1)]
    return [(k, int(m.group(5)))]

def split_ops(s):
    ops, depth, cur = [], 0, ""
    for ch in s:
        if ch in "[(": depth += 1
        if ch in "])": depth -= 1
        if ch == "," and depth == 0:
            ops.append(cur.strip()); cur = ""
        else:
            cur += ch
    if cur.strip(): ops.append(cur.strip())
    return ops

TRANS = ("v_exp_f32", "v_log_f32", "v_rcp_f32", "v_rsq_f32", "v_sqrt_f32", "v_sin_f32", "v_cos_f32")

class Ins:
    __slots__ = ("text", "mn", "ops", "mods", "defs", "uses", "kind", "tag", "passes", "srcc", "srcab", "sdata", "comment")
    def __init__(self, text, tag=None):
        self.text = text.strip()
        self.tag = tag
        self.defs, self.uses = set(), set()
        self.kind = "other"
        self.passes = 0
        self.srcc = set(); self.srcab = set(); self.sdata = set()
        t = self.text.split(";")[0].strip()
        if not t or t.endswith(":") or t.startswith("."):
            self.mn = ""; self.ops = []; self.mods = ""
            self.kind = "label" if t.endswith(":") else "none"
            return
        parts = t.split(None, 1)
        self.mn = mn = parts[0]
        rest = parts[1] if len(parts) > 1 else ""
        ops = split_ops(rest)
        self.mods = ""
        if ops:
            last = ops[-1].split()
            if len(last) > 1 and not mn.startswith("s_waitcnt"):
                ops[-1] = last[0]; self.mods = " ".join(last[1:])
        self.ops = ops
        R = [parse_reg(o) for o in ops]
        D, U = self.defs, self.uses
        def d(i): D.update(R[i])
        def u(*idx):
            for i in idx:
                if i < len(R): U.update(R[i])
        n = len(ops)
        if mn.startswith("v_mfma"):
            self.kind = "mfma"
            self.passes = 8 if "32x32" in mn else 4
            d(0); u(1, 2, 3)
            self.srcab = set(R[1]) | set(R[2]); self.srcc = set(R[3])
        elif mn.startswith("ds_read") or mn.startswith("ds_bpermute") or mn.startswith("ds_swizzle"):
            self.kind = "ds"; d(0); u(*range(1, n))
        elif mn.startswith("ds_write"):
            self.kind = "ds"; u(*range(n))
            for i in range(1, n): self.sdata.update(R[i])
        elif mn.startswith("buffer_load") or mn.startswith("global_load"):
            self.kind = "vm"
            if "lds" in self.mods.split() or mn.startswith("global_load_lds"):
                u(*range(n)); U.add(("m0", 0)); self.kind = "vmdma"
            else:
                d(0); u(*range(1, n))
        elif mn.startswith("buffer_store") or mn.startswith("global_store"):
            self.kind = "vmst"; u(*range(n))
            di = 0 if mn.startswith("buffer_store") else 1
            if "x4" in mn or "x3" in mn: self.sdata = set(R[di])
        elif mn.startswith("buffer_atomic") or mn.startswith("global_atomic"):
            self.kind = "vm"; u(*range(n))
            if "sc0" in self.mods.split(): d(0)
        elif mn in ("buffer_wbl2", "buffer_inv"):
            self.kind = "vmst"
        elif mn.startswith("s_load") or mn.startswith("s_memtime") or mn.startswith("s_memrealtime"):
            self.kind = "smem"; d(0); u(*range(1, n))
        elif mn == "s_waitcnt":
            self.kind = "wait"
        elif mn == "s_nop":
            self.kind = "nop"
        elif mn == "s_barrier":
            self.kind = "barrier"
        elif mn.startswith("s_cbranch") or mn == "s_branch" or mn == "s_endpgm":
            self.kind = "branch"
            if "vcc" in mn: U.add(("vcc", 0))
            if "scc" in mn: U.add(("scc", 0))
            if "exec" in mn: U.add(("exec", 0))
        elif mn.startswith("s_cmp") or mn.startswith("s_bitcmp"):
            self.kind = "salu"; u(*range(n)); D.add(("scc", 0))
        elif mn in ("s_sleep", "s_setprio"):
            self.kind = "salu"
        elif mn.startswith("s_"):
            self.kind = "salu"; d(0); u(*range(1, n))
            if mn.startswith(("s_add", "s_sub", "s_and", "s_or", "s_xor", "s_lshl", "s_lshr", "s_ashr", "s_min", "s_max", "s_andn2", "s_not", "s_bfe", "s_abs")):
                D.add(("scc", 0))
            if mn.startswith(("s_cselect", "s_addc", "s_subb")): U.add(("scc", 0))
            if "saveexec" in mn: D.add(("exec", 0)); U.add(("exec", 0))
        elif mn.startswith("v_"):
            self.kind = "valu"
            if mn.startswith("v_cmp"):
                d(0); u(*range(1, n))
            elif mn.startswith(("v_readfirstlane", "v_readlane")):
                d(0); u(*range(1, n))
            elif mn.startswith("v_permlane"):
                d(0); d(1); u(0, 1)
            elif mn.startswith(("v_fmac", "v_dot2c", "v_writelane")) or "_dpp" in mn:
                d(0); u(*range(n))
            elif mn.startswith(("v_add_co", "v_sub_co", "v_addc_co", "v_subb_co")):
                d(0); d(1); u(*range(2, n))
            elif mn.startswith("v_cndmask"):
                d(0); u(*range(1, n))
                if n == 3: U.add(("vcc", 0))
            else:
                d(0); u(*range(1, n))
            if mn.startswith(TRANS): self.kind = "trans"
        else:
            raise Exception("unknown instruction: " + text)

    def is_valu(self): return self.kind in ("valu", "trans")

class Prog:
    def __init__(self):
        self.items = []
    def __call__(self, text, tag=None):
        for l in text.split("\n"):
            l = l.strip()
            if l: self.items.append(Ins(l, tag))
        return self
    def add(self, lst):
        for x in lst:
            if isinstance(x, str): self(x)
            elif isinstance(x, tuple) and x and x[0] == "I": self(x[1], x[2])
            else: self.items.append(x)
    def label(self, name): self.items.append(Ins(name + ":"))
    def raw(self, text):
        i = Ins(""); i.text = text; i.kind = "none"; self.items.append(i)
    def comment(self, text): self.raw("; " + text)
    def wait_vm(self, tag): self.items.append(("wait_vm", tag))
    def wait_lgkm0(self): self.items.append(("wait_lgkm0",))
    def opt_begin(self): self.items.append(("opt_begin",))
    def opt_end(self): self.items.append(("opt_end",))
    def side_begin(self): self.items.append(("side_begin",))
    def side_end(self): self.items.append(("side_end",))

def T(text, tag):
    return ("I", text, tag)

def insert_waits(items):
    out = []
    vm, lg = [], []
    stack = []
    stats = {"vmmax": 0}
    optdepth = 0
    def younger(i):
        return sum(1 for o in vm[i+1:] if not o.get("opt"))
    def emit_wait(nvm=None, nlg=None, drop_to=None):
        parts = []
        if nvm is not None:
            nvm = min(nvm, 62); parts.append(f"vmcnt({nvm})")
            if drop_to is not None: del vm[:drop_to + 1]
            else: del vm[:max(0, len(vm) - nvm)]
        if nlg is not None:
            nlg = min(nlg, 14); parts.append(f"lgkmcnt({nlg})"); del lg[:max(0, len(lg) - nlg)]
        out.append(Ins("s_waitcnt " + " ".join(parts)))
    for it in items:
        if isinstance(it, tuple):
            if it[0] == "wait_vm":
                tags = it[1] if isinstance(it[1], (list, set, tuple)) else [it[1]]
                idx = max([i for i, o in enumerate(vm) if o["tag"] in tags], default=-1)
                if idx >= 0: emit_wait(nvm=younger(idx), drop_to=idx)
            elif it[0] == "wait_lgkm0":
                if lg: emit_wait(nlg=0)
            elif it[0] == "opt_begin": optdepth += 1
            elif it[0] == "opt_end": optdepth -= 1
            elif it[0] == "assume_vm":
                vm[:] = [{"defs": set(), "tag": t, "kind": "vmdma", "id": -k} for k, t in enumerate(it[1], 1)]
            elif it[0] == "side_begin":
                stack.append(([dict(o) for o in vm], [dict(o) for o in lg]))
            elif it[0] == "side_end":
                svm, slg = stack.pop()
                assert all(any(o["id"] == p["id"] for p in slg) or not o["defs"] for o in lg), "side region left lgkm loads outstanding"
                assert all(any(o["id"] == p["id"] for p in svm) or not o["defs"] for o in vm), "side region left vm loads outstanding"
                vm[:] = svm; lg[:] = slg
            continue
        ins = it
        if ins.kind == "wait":
            m = re.search(r"vmcnt\((\d+)\)", ins.text)
            if m:
                N = int(m.group(1))
                done = [i for i in range(len(vm)) if younger(i) >= N]
                if done: del vm[:max(done) + 1]
            m = re.search(r"lgkmcnt\((\d+)\)", ins.text)
            if m: del lg[:max(0, len(lg) - int(m.group(1)))]
            out.append(ins); continue
        touched = ins.defs | ins.uses
        if touched:
            nvm = nlg = None
            isvm = ins.kind in ("vm",)
            isds = ins.kind == "ds"
            vidx = None
            for i, o in enumerate(vm):
                if o["defs"] & ins.uses or (o["defs"] & ins.defs and not isvm):
                    nvm = younger(i); vidx = i
            smem_pending = any(o["kind"] == "smem" for o in lg)
            for i, o in enumerate(lg):
                if o["defs"] & ins.uses or (o["defs"] & ins.defs and not (isds and o["kind"] == "ds")):
                    nlg = 0 if smem_pending else len(lg) - 1 - i
            if nvm is not None or nlg is not None: emit_wait(nvm, nlg, vidx)
        out.append(ins)
        if ins.kind in ("vm", "vmdma", "vmst"):
            vm.append({"defs": set(ins.defs) if ins.kind == "vm" else set(), "tag": ins.tag, "kind": ins.kind, "id": id(ins), "opt": optdepth > 0})
            stats["vmmax"] = max(stats["vmmax"], len(vm))
        elif ins.kind in ("ds", "smem"):
            lg.append({"defs": set(ins.defs), "tag": ins.tag, "kind": ins.kind, "id": id(ins)})
    return out, stats

def only_v(s): return {r for r in s if r[0] in ("v", "a")}
def only_s(s): return {r for r in s if r[0] in ("s", "vcc")}

def required_gap(p, c):
    g = 0
    pv = only_v(p.defs)
    if p.is_valu():
        if c.kind == "mfma" and pv & c.uses: g = max(g, 2)
        if p.kind == "trans" and c.kind in ("valu",) and pv & c.uses: g = max(g, 1)
        if c.mn.startswith("v_permlane") and pv & c.uses: g = max(g, 2)
        if "_dpp" in c.mn and pv & c.uses: g = max(g, 2)
        if c.mn.startswith(("v_readlane", "v_readfirstlane")) and pv & c.uses: g = max(g, 1)
        ps = only_s(p.defs)
        if ps:
            if c.is_valu() and ps & c.uses: g = max(g, 4 if c.mn.startswith(("v_readlane", "v_writelane")) else 2)
            if c.kind in ("vm", "vmdma", "vmst") and ps & c.uses: g = max(g, 5)
            if c.kind == "salu" and ps & c.uses: g = max(g, 1)
    if p.kind == "mfma":
        P = p.passes
        if c.kind == "mfma":
            if pv & c.srcab: g = max(g, P + 4)
            ov = pv & c.srcc
            if ov:
                if not (only_v(c.srcc) == pv and c.passes == P): g = max(g, P + 2)
            if pv & only_v(c.defs) and not (only_v(c.defs) == pv and c.passes == P and ov): g = max(g, P + 2)
        elif c.is_valu():
            if pv & (c.uses | c.defs): g = max(g, P + 4)
        elif c.kind in ("ds", "vm", "vmdma", "vmst"):
            if pv & (c.uses | c.defs): g = max(g, P + 4)
        if c.is_valu() and only_v(p.srcc) & c.defs: g = max(g, P - 1)
    if p.kind == "salu" and ("m0", 0) in p.defs and c.kind == "vmdma": g = max(g, 1)
    if p.kind in ("vmst",) and p.sdata:
        if c.is_valu() and p.sdata & c.defs: g = max(g, 2)
        elif p.sdata & c.defs: g = max(g, 1)
    return g

def insert_nops(items):
    out = []
    hist = []
    stack = []
    WINDOW = 20
    nnops = 0
    for it in items:
        if isinstance(it, tuple):
            if it[0] == "side_begin": stack.append([[i, d] for i, d in hist])
            elif it[0] == "side_end":
                saved = stack.pop()
                ids = {id(i): k for k, (i, d) in enumerate(hist)}
                for i, d in saved:
                    d2 = d + 1
                    if id(i) in ids: hist[ids[id(i)]][1] = min(hist[ids[id(i)]][1], d2)
                    else: hist.append([i, d2])
            continue
        ins = it
        if ins.kind in ("none", "label"):
            out.append(ins); continue
        need = 0
        for p, d in hist:
            g = required_gap(p, ins)
            if g > d: need = max(need, g - d)
        while need > 0:
            k = min(need, 16)
            out.append(Ins(f"s_nop {k-1}")); nnops += k
            for h in hist: h[1] += k
            need -= k
        out.append(ins)
        st = 1
        if ins.kind == "nop": st = int(ins.ops[0]) + 1
        for h in hist: h[1] += st
        hist = [h for h in hist if h[1] < WINDOW]
        if ins.kind in ("valu", "trans", "mfma", "salu", "vmst"): hist.append([ins, 0])
    return out, nnops

def finalize(prog):
    items = []
    marks = []
    w, stats = insert_waits_keep(prog.items)
    o, nn = insert_nops(w)
    stats["nops"] = nn
    return o, stats

def insert_waits_keep(items):
    res = []
    chunk_out = []
    class Mark(Ins):
        pass
    seq = []
    for it in items:
        seq.append(it)
        if isinstance(it, tuple) and it[0] in ("side_begin", "side_end"):
            m = Ins(""); m.kind = "none"; m.text = "@@" + it[0]; seq.append(m)
    out, stats = insert_waits(seq)
    for o in out:
        if o.kind == "none" and o.text.startswith("@@"): res.append((o.text[2:],))
        else: res.append(o)
    return res, stats

def render(items):
    lines = []
    for i in items:
        if i.kind == "label": lines.append(i.text)
        elif i.kind == "none": lines.append(i.text)
        else: lines.append("    " + i.text)
    return "\n".join(lines) + "\n"

def interleave(main, fillers, per_gap):
    out = []
    fi = 0
    for i, m in enumerate(main):
        out.append(m)
        n = per_gap(i) if callable(per_gap) else per_gap
        for _ in range(n):
            if fi < len(fillers): out.append(fillers[fi]); fi += 1
    out.extend(fillers[fi:])
    return out

def spread(main, fillers, start=0, end=None):
    end = len(main) if end is None else end
    n = end - start
    out = list(main[:start])
    k = 0
    for i in range(n):
        out.append(main[start + i])
        tgt = (len(fillers) * (i + 1)) // n
        while k < tgt: out.append(fillers[k]); k += 1
    out.extend(main[end:])
    return out

def zipmerge(*streams):
    out = []
    idx = [0] * len(streams)
    left = sum(len(s) for s in streams)
    while left:
        for k, s in enumerate(streams):
            if idx[k] < len(s): out.append(s[idx[k]]); idx[k] += 1; left -= 1
    return out

class Pool:
    def __init__(self, lo, hi):
        self.free_ = set(range(lo, hi)); self.lo, self.hi = lo, hi; self.high = 0
    def alloc(self, n=1, align=None):
        if align is None: align = 2 if n > 1 else 1
        for b in range(self.lo, self.hi):
            if b % align: continue
            if all((b + i) in self.free_ for i in range(n)):
                for i in range(n): self.free_.discard(b + i)
                self.high = max(self.high, b + n)
                return b
        raise Exception(f"pool exhausted (n={n}, free={len(self.free_)})")
    def take(self, b, n):
        for i in range(n):
            assert (b + i) in self.free_, f"reg {b+i} busy"
            self.free_.discard(b + i)
        self.high = max(self.high, b + n)
        return b
    def free(self, b, n=1):
        for i in range(n):
            assert (b + i) not in self.free_, f"double free {b+i}"
            self.free_.add(b + i)


def spread_pairs(main, pairs, start=0, end=None):
    end = len(main) if end is None else end
    def txt(x):
        if isinstance(x, tuple): return x[1] if x[0] == "I" else ""
        return x.text if isinstance(x, Ins) else x
    full = True; okpos = set()
    for i, x in enumerate(main):
        t = txt(x).strip()
        wr = t.startswith(("s_mov_b64 exec", "s_cselect_b64 exec", "s_mov_b32 exec", "s_and_saveexec"))
        if full and not wr and t and not t.startswith((";", "s_barrier")): okpos.add(i)
        if wr: full = t.endswith("exec, -1")
    pos = [i for i in range(start, end) if i in okpos]
    n = len(pos)
    out = []
    k = 0
    assign = {}
    for q in range(len(pairs)):
        assign.setdefault(pos[min(n - 1, (q * n) // len(pairs))], []).append(pairs[q])
    for i, m in enumerate(main):
        if i in assign:
            lst = assign[i]
            out.extend(lst[0][0]); out.append(m); out.extend(lst[0][1])
            for pre, post in lst[1:]:
                out.extend(pre); out.extend(post)
        else:
            out.append(m)
    return out


def cost(x):
    if isinstance(x, tuple):
        if x[0] == "I": t = x[1]
        else: return 0
    elif isinstance(x, Ins): t = x.text
    else: t = x
    mn = t.split()[0]
    if mn.startswith(TRANS) or mn.startswith("v_permlane"): return 2
    return 1

def weave(main, fixed=None, fifo=None, cap=2, start=0, tail=True):
    fixed = fixed or {}
    fifo = list(fifo or [])
    out = []
    k = 0
    for i, m in enumerate(main):
        out.append(m)
        used = 0
        for f in fixed.get(i, []):
            out.append(f); used += cost(f)
        c = cap(i) if callable(cap) else cap
        if i >= start:
            while k < len(fifo) and used + cost(fifo[k]) <= c:
                out.append(fifo[k]); used += cost(fifo[k]); k += 1
    rem = fifo[k:]
    if tail:
        out.extend(rem); rem = []
    return out, rem
```

```python
import sys, math, struct
from core import *

NAME = "sequential_preLN__sliding_local_dilated__dense_activation_gelu__prompt"
KNAME = NAME + "_kernel"

WS_O    = 0
WS_H    = 2 << 20
WS_ST   = 4 << 20
WS_FL   = (4 << 20) + (512 << 10)
WS_H1   = 5 << 20
WS_DBG  = 13 << 20
WS_SIZE = 16 << 20

def f2u(x): return struct.unpack("<I", struct.pack("<f", x))[0]
def hx(x): return hex(x & 0xffffffff)
def fl(x): return hx(f2u(x))
C1 = -2.0 * math.sqrt(2.0 / math.pi) * math.log2(math.e)
C2 = C1 * 0.044715

sX, sWQ, sWO, sW1, sW2, sWS, sOUT = 28, 32, 36, 40, 44, 48, 52
sB1, sB2 = 14, 18
s_w, s_xg, s_j, s_rt, s_i16, s_R = 56, 57, 58, 59, 60, 61
s_t0, s_t1, s_t2, s_t3 = 62, 63, 64, 65
s_wl, s_xl0, s_xl2 = 66, 67, 68
s_nh, s_sh, s_i16c = 69, 70, 71
s_cw, s_cx, s_ce = 72, 80, 88
s_m1, s_m2, s_m3, s_diag = 72, 74, 76, 78
s_odd, s_va0, s_va1, s_vb0, s_vb1, s_fa0, s_fa1 = 80, 82, 84, 86, 88, 90, 92
s_nonce = 94
s_k32 = 96
s_c4 = 97
s_sv = 98
s_rot = 99
s_stamp = 100
s_a, s_b, s_c, s_d = 4, 5, 6, 7
s_so, s_so2 = 8, 9
s_4k, s_8k, s_12k = 10, 11, 12
s_woG = 13
s_cnt = 16
s_woC = 17
s_b0, s_b1, s_b2, s_wg = 20, 21, 22, 23
s_woAl, s_woCl = 24, 25
def srd(n): return f"s[{n}:{n+3}]"
def sp(n): return f"s[{n}:{n+1}]"
def vr(a, n=1): return f"v{a}" if n == 1 else f"v[{a}:{a+n-1}]"
def ar(a, n=4): return f"a[{a}:{a+n-1}]"

def mask64(fn):
    m = 0
    for l in range(64):
        if fn(l): m |= 1 << l
    return m
def set_mask(s, m):
    return [f"s_mov_b32 s{s}, {hx(m & 0xffffffff)}", f"s_mov_b32 s{s+1}, {hx(m >> 32)}"]

L_X = 0; L_R = 81920; L_M = 159744
L_WA = 131072; L_WB = 81920; L_WC = 106496
L_EX2 = 131072; L_S = 131072
LDS_SIZE = 163840
KPOLL = 64

class Cfg:
    stop_after = 4
    stamps = 0
    rotate = 1
    codepf = 1
    touch = 1
    touch0 = 0
    small = 1
    tmask = 0
    latevm = 9
    xall = 0
    rt = 0
class G: pass

def stamp(p, g, idx):
    if not g.cfg.stamps: return
    p(f"s_mem{'real' if g.cfg.rt else ''}time {sp(s_stamp)}")
    p("s_waitcnt lgkmcnt(0)")
    p(f"v_writelane_b32 v{g.vstamp}, s{s_stamp}, {idx}")

def make_srd(s, base, nbytes):
    return [f"s_mov_b32 s{s}, s{base}", f"s_and_b32 s{s+1}, s{base+1}, 0xffff",
            f"s_mov_b32 s{s+2}, {nbytes}", f"s_mov_b32 s{s+3}, 0x00020000"]

def m16k32(d, A, B, c): return f"v_mfma_f32_16x16x32_bf16 {vr(d,4)}, {A}, {B}, {c}"
def m16k16(d, A, B, c): return f"v_mfma_f32_16x16x16_bf16 {vr(d,4)}, {vr(A,2)}, {vr(B,2)}, {c}"
def m32(d, A, B, c): return f"v_mfma_f32_32x32x16_bf16 {d}, {A}, {B}, {c}"

def prologue(p, g):
    cfg, V = g.cfg, g.V
    p("s_cmp_ge_u32 s2, 256")
    p("s_cbranch_scc1 L_end")
    p("s_load_dwordx16 s[4:19], s[0:1], 0")
    p("s_load_dwordx4 s[20:23], s[0:1], 64")
    p("s_load_dwordx2 s[24:25], s[0:1], 80")
    p("s_getpc_b64 s[26:27]")
    p.label("L_pc")
    p("v_lshrrev_b32 v1, 6, v0")
    p("v_and_b32 v0, 63, v0")
    p(f"v_readfirstlane_b32 s{s_w}, v1")
    p(f"s_lshr_b32 s{s_t0}, s2, 3")
    if cfg.codepf:
        p(f"s_lshl_b32 s{s_t1}, s{s_t0}, 2")
        p(f"s_add_u32 s{s_t1}, s{s_t1}, s{s_w}")
        p(f"s_lshl_b32 s{s_t1}, s{s_t1}, 8")
        p("v_lshlrev_b32 v1, 2, v0")
        p(f"v_add_u32 v1, s{s_t1}, v1")
        p(f"s_mov_b32 s{s_t1}, L_code_end-L_pc-4")
        p(f"v_min_u32 v1, s{s_t1}, v1")
        p(f"global_load_dword v{g.vdummy}, v1, s[26:27]")
    p(f"s_and_b32 s{s_xg}, s2, 7")
    p(f"s_and_b32 s{s_j}, s{s_t0}, 7")
    p(f"s_and_b32 s{s_i16}, s{s_t0}, 15")
    p(f"s_lshr_b32 s{s_c4}, s{s_t0}, 3")
    p(f"s_lshl_b32 s{s_rt}, s{s_xg}, 2")
    p(f"s_add_u32 s{s_rt}, s{s_rt}, s{s_c4}")
    p(f"s_lshr_b32 s{s_R}, s{s_rt}, 1")
    p(f"s_lshr_b32 s{s_nh}, s{s_w}, 1"); p(f"s_and_b32 s{s_sh}, s{s_w}, 1")
    if cfg.rotate == 2:
        p(f"s_lshl_b32 s{s_rot}, s{s_c4}, 1"); p(f"s_add_u32 s{s_rot}, s{s_rot}, s{s_j}"); p(f"s_add_u32 s{s_rot}, s{s_rot}, s{s_xg}")
        p(f"s_and_b32 s{s_rot}, s{s_rot}, 7")
    elif cfg.rotate == 3:
        p(f"s_lshl_b32 s{s_rot}, s{s_c4}, 1"); p(f"s_add_u32 s{s_rot}, s{s_rot}, s{s_xg}")
        p(f"s_and_b32 s{s_rot}, s{s_rot}, 7")
    elif cfg.rotate == 1: p(f"s_mov_b32 s{s_rot}, s{s_xg}")
    else: p(f"s_mov_b32 s{s_rot}, 0")
    rot = f"s{s_rot}"
    for i in range(8):
        p(f"s_add_u32 s{s_t0}, {rot}, {i}")
        p(f"s_and_b32 s{s_t0}, s{s_t0}, 7")
        p(f"s_lshl_b32 s{s_cx+i}, s{s_t0}, 7")
        p(f"s_mul_i32 s{s_cw+i}, s{s_t0}, 196608")
    for pr in range(4):
        p(f"s_cmp_eq_u32 s{s_nh}, 0")
        p(f"s_cselect_b32 s{s_ce+pr}, s{s_cx+2*pr}, s{s_cx+2*pr+1}")

def touch0_addresses(p, g):
    V = g.V
    g.vT = [V.alloc() for _ in range(3)]
    a, b, c = g.vT
    p(f"s_lshr_b32 s{s_t0}, s2, 3"); p(f"s_lshl_b32 s{s_t0}, s{s_t0}, 2"); p(f"s_add_u32 s{s_t0}, s{s_t0}, s{s_w}")
    p(f"s_mul_i32 s{s_t0}, s{s_t0}, 17")
    p(f"s_lshl_b32 s{s_t1}, s{s_xg}, 11"); p(f"s_add_u32 s{s_t0}, s{s_t0}, s{s_t1}"); p(f"s_sub_u32 s{s_t0}, s{s_t0}, 128")
    p(f"v_min_u32 v{a}, 16, v0"); p(f"v_add_u32 v{a}, s{s_t0}, v{a}"); p(f"v_max_i32 v{a}, 0, v{a}"); p(f"v_lshlrev_b32 v{a}, 7, v{a}")
    p(f"s_lshl_b32 s{s_t0}, s2, 2"); p(f"s_add_u32 s{s_t0}, s{s_t0}, s{s_w}")
    p(f"s_mul_i32 s{s_t1}, s{s_t0}, 12")
    p(f"v_min_u32 v{b}, 11, v0"); p(f"v_add_u32 v{b}, s{s_t1}, v{b}"); p(f"v_lshlrev_b32 v{b}, 7, v{b}")
    p(f"s_lshl_b32 s{s_t1}, s{s_t0}, 2")
    p(f"v_min_u32 v{c}, 3, v0"); p(f"v_add_u32 v{c}, s{s_t1}, v{c}"); p(f"v_lshlrev_b32 v{c}, 7, v{c}")

def p1_addresses(p, g):
    V = g.V
    a = g.p1a = {k: V.alloc() for k in ["Wd0", "Wd1", "X0", "X1", "X2", "Xr0", "Xr1", "Ow0", "Ow1", "Hal", "Wr", "Wr2"]}
    t0, t1, t2, t3, t4 = t = [V.alloc() for _ in range(5)]
    p(f"v_lshrrev_b32 v{t0}, 3, v0")
    p(f"s_lshl_b32 s{s_t0}, s{s_w}, 4")
    p(f"v_add_u32 v{t1}, s{s_t0}, v{t0}")
    p(f"v_mul_u32_u24 v{t1}, 3072, v{t1}")
    p(f"v_bfe_u32 v{t2}, v0, 1, 2")
    p(f"v_bfe_u32 v{t3}, v0, 4, 1")
    p(f"v_xor_b32 v{t2}, v{t2}, v{t3}")
    p(f"v_lshlrev_b32 v{t2}, 5, v{t2}")
    p(f"v_and_b32 v{t3}, 1, v0")
    p(f"v_lshlrev_b32 v{t3}, 4, v{t3}")
    p(f"v_add3_u32 v{t1}, v{t1}, v{t2}, v{t3}")
    p(f"s_lshl_b32 s{s_t1}, s{s_j}, 7")
    p(f"v_add_u32 v{a['Wd0']}, s{s_t1}, v{t1}")
    p(f"v_xor_b32 v{a['Wd1']}, 64, v{a['Wd0']}")
    p(f"v_add_u32 v{a['Wd1']}, {8*3072}, v{a['Wd1']}")
    p(f"s_lshl_b32 s{s_wl}, s{s_w}, 11")
    p(f"s_add_u32 s{s_wl}, s{s_wl}, {L_R}")
    p(f"s_lshl_b32 s{s_t1}, s{s_sh}, 2")
    p(f"v_lshrrev_b32 v{t1}, 4, v0")
    p(f"v_add_u32 v{t1}, s{s_t1}, v{t1}")
    p(f"v_and_b32 v{t2}, 7, v0")
    p(f"v_xor_b32 v{t1}, v{t1}, v{t2}")
    p(f"v_lshlrev_b32 v{t1}, 4, v{t1}")
    p(f"v_lshl_add_u32 v{t1}, v{t0}, 10, v{t1}")
    p(f"s_lshl_b32 s{s_t1}, s{s_rt}, 6")
    p(f"s_lshl_b32 s{s_t2}, s{s_w}, 3")
    p(f"s_add_u32 s{s_t2}, s{s_t1}, s{s_t2}")
    p(f"s_sub_i32 s{s_t3}, s{s_t2}, 16")
    p(f"s_max_i32 s{s_t3}, s{s_t3}, 0")
    p(f"s_lshl_b32 s{s_t3}, s{s_t3}, 10")
    p(f"v_add_u32 v{a['X0']}, s{s_t3}, v{t1}")
    p(f"s_add_u32 s{s_t3}, s{s_t2}, 16")
    p(f"s_lshl_b32 s{s_t3}, s{s_t3}, 10")
    p(f"v_add_u32 v{a['X1']}, s{s_t3}, v{t1}")
    p(f"s_lshl_b32 s{s_t2}, s{s_sh}, 3")
    p(f"s_add_u32 s{s_t3}, s{s_t1}, s{s_t2}")
    p(f"s_add_u32 s{s_t3}, s{s_t3}, 48")
    p(f"s_lshl_b32 s{s_t3}, s{s_t3}, 10")
    p(f"v_add_u32 v{a['X2']}, s{s_t3}, v{t1}")
    p(f"s_lshl_b32 s{s_xl0}, s{s_w}, 10")
    p(f"s_mul_i32 s{s_xl2}, s{s_nh}, 10240")
    p(f"s_lshl_b32 s{s_t2}, s{s_sh}, 10")
    p(f"s_add_u32 s{s_xl2}, s{s_xl2}, s{s_t2}")
    p(f"s_add_u32 s{s_xl2}, s{s_xl2}, 8192")
    p(f"v_and_b32 v{t0}, 15, v0")
    p(f"v_lshrrev_b32 v{t1}, 4, v0")
    p(f"v_lshrrev_b32 v{t2}, 1, v{t0}")
    p(f"v_xor_b32 v{t2}, v{t2}, v{t1}")
    p(f"v_lshlrev_b32 v{t2}, 4, v{t2}")
    p(f"v_lshl_add_u32 v{a['Xr0']}, v{t0}, 7, v{t2}")
    p(f"v_xor_b32 v{a['Xr1']}, 64, v{a['Xr0']}")
    p(f"s_add_u32 s{s_t2}, s{s_w}, 1")
    p(f"s_lshl_b32 s{s_t2}, s{s_t2}, 11")
    p(f"v_add_u32 v{a['Ow0']}, s{s_t2}, v{a['Xr0']}")
    p(f"v_add_u32 v{a['Ow1']}, s{s_t2}, v{a['Xr1']}")
    p(f"s_lshl_b32 s{s_t2}, s{s_sh}, 6")
    p(f"v_xor_b32 v{a['Hal']}, s{s_t2}, v{a['Xr0']}")
    p(f"s_mul_i32 s{s_t2}, s{s_nh}, 10240")
    p(f"v_add_u32 v{a['Hal']}, s{s_t2}, v{a['Hal']}")
    p(f"v_lshrrev_b32 v{t2}, 2, v{t0}")
    p(f"v_lshl_add_u32 v{t2}, v{t1}, 3, v{t2}")
    p(f"v_lshlrev_b32 v{t2}, 7, v{t2}")
    p(f"v_bfe_u32 v{t3}, v0, 3, 1")
    p(f"v_bfe_u32 v{t4}, v0, 4, 1")
    p(f"v_lshl_add_u32 v{t3}, v{t4}, 1, v{t3}")
    p(f"v_xor_b32 v{t3}, s{s_w}, v{t3}")
    p(f"v_lshl_add_u32 v{t2}, v{t3}, 5, v{t2}")
    p(f"v_and_b32 v{t3}, 3, v0")
    p(f"v_lshl_add_u32 v{t2}, v{t3}, 3, v{t2}")
    p(f"v_add_u32 v{a['Wr']}, {L_R}, v{t2}")
    p(f"v_add_u32 v{a['Wr2']}, 49152, v{a['Wr']}")
    for r in t: V.free(r)

def dma_w(g, i):
    a = g.p1a; out = []
    slot = i % 3
    for X in range(3):
        for e in range(2):
            off = f" offset:{X*1024}" if X else ""
            out.append((f"s_add_u32 m0, s{s_wl}, {slot*24576 + X*7168 + e*1024}",
                        T(f"buffer_load_dwordx4 v{a['Wd%d' % e]}, {srd(sWQ)}, s{s_cw+i} offen{off} lds", f"W{i}")))
    return out

def dma_x(g, pr):
    a = g.p1a; out = []
    for ii in range(2):
        i = 2 * pr + ii
        out.append((f"s_add_u32 m0, s{s_xl0}, {L_X + i*10240}", T(f"buffer_load_dwordx4 v{a['X0']}, {srd(sX)}, s{s_cx+i} offen lds", f"X{pr}")))
        out.append((f"s_add_u32 m0, s{s_xl0}, {L_X + i*10240 + 4096}", T(f"buffer_load_dwordx4 v{a['X1']}, {srd(sX)}, s{s_cx+i} offen lds", f"X{pr}")))
    out.append((f"s_add_u32 m0, s{s_xl2}, {L_X + 2*pr*10240}", T(f"buffer_load_dwordx4 v{a['X2']}, {srd(sX)}, s{s_ce+pr} offen lds", f"X{pr}")))
    return out

def pairs_with_sep(pairs, seps, after=2):
    out = []
    for pre, dma in pairs:
        pre = pre if isinstance(pre, list) else [pre]
        out += pre
        if len(pre) == 1 and seps: out.append(seps.pop(0))
        out.append(dma)
        for _ in range(after):
            if seps: out.append(seps.pop(0))
    return out

def fifo_pairs(pairs):
    out = []
    for pre, dma in pairs:
        out += pre if isinstance(pre, list) else [pre]
        out += dma if isinstance(dma, list) else [dma]
    return out

def wo_piece(g, which):
    out = []
    if which < 2:
        gbase, lds, n, stride = s_woG, (L_WA, L_WB)[which], 6, None
        for q in range(n):
            out.append(([f"s_add_u32 m0, s{s_woAl}, {(L_WA, L_WB)[which] - L_WA + q*1024}", f"s_add_u32 s{s_so}, s{s_woG}, {which*96*1024 + q*8192}"],
                        T(f"buffer_load_dwordx4 v{g.vW2d}, {srd(sWO)}, s{s_so} offen lds", "wo")))
    else:
        for q in range(4):
            out.append(([f"s_add_u32 m0, s{s_woCl}, {q*1024}", f"s_add_u32 s{s_so}, s{s_woC}, {q*8192}"],
                        T(f"buffer_load_dwordx4 v{g.vW2d}, {srd(sWO)}, s{s_so} offen lds", "wo")))
    return out

def w1_dma(g, half, us):
    out = []
    for u in us:
        off = " offset:128" if half else ""
        out.append(([f"s_add_u32 m0, s{s_xl0}, {half*65536 + u*4096 - (128 if half else 0)}", f"s_mov_b32 s{s_so2}, {u*4*8*3584}"],
                    T(f"buffer_load_dwordx4 v{g.vW1d}, {srd(sW1)}, s{s_so2} offen{off} lds", "w1a" if half == 0 else "w1b")))
    return out

def w2_slot(s):
    if s < 3: return (0, s * 2048)
    if s < 11: return (1, (s - 3) * 2048)
    return (2, (s - 11) * 2048)
def w2_dma(g, u):
    grp, off = w2_slot(u if u < 19 else u - 19)
    sb = (s_b0, s_b1, s_b2)[grp]
    return [([f"s_add_u32 m0, s{sb}, {off + e*1024}", f"s_add_u32 s{s_so}, s{s_wg}, {(16*u + 8*e)*1024}"],
             T(f"buffer_load_dwordx4 v{g.vW2d}, {srd(sW2)}, s{s_so} offen lds", f"w2_{u}")) for e in range(2)]

def setup_ops(g):
    V = g.V; cfg = g.cfg
    p = Prog()
    for s, b, n in ((sWS, 24, WS_SIZE), (sW1, 12, 512*1792*2), (sW2, 16, 1792*512*2), (sOUT, 20, 2048*512*2)):
        p.add(make_srd(s, b, n))
    p(f"s_min_u32 s{s_i16c}, s{s_i16}, 13")
    p(f"s_mov_b32 s{s_4k}, 4096"); p(f"s_mov_b32 s{s_8k}, 8192"); p(f"s_mov_b32 s{s_12k}, 12288"); p(f"s_mov_b32 s{s_k32}, 32768")
    p(f"s_lshl_b32 s{s_woG}, s{s_nh}, 8"); p(f"s_mul_i32 s{s_a}, s{s_sh}, 48"); p(f"s_add_u32 s{s_woG}, s{s_woG}, s{s_a}"); p(f"s_lshl_b32 s{s_woG}, s{s_woG}, 10")
    p(f"s_lshl_b32 s{s_woC}, s{s_nh}, 8"); p(f"s_lshl_b32 s{s_a}, s{s_sh}, 5"); p(f"s_add_u32 s{s_woC}, s{s_woC}, s{s_a}"); p(f"s_add_u32 s{s_woC}, s{s_woC}, 192"); p(f"s_lshl_b32 s{s_woC}, s{s_woC}, 10")
    p(f"s_mul_i32 s{s_woAl}, s{s_w}, 6144"); p(f"s_add_u32 s{s_woAl}, s{s_woAl}, {L_WA}")
    p(f"s_lshl_b32 s{s_woCl}, s{s_w}, 12"); p(f"s_add_u32 s{s_woCl}, s{s_woCl}, {L_WC}")
    p(f"s_mul_i32 s{s_b0}, s{s_w}, 7168"); p(f"s_add_u32 s{s_b0}, s{s_b0}, {L_S}")
    p(f"s_lshl_b32 s{s_b1}, s{s_w}, 14"); p(f"s_add_u32 s{s_b2}, s{s_b1}, 65536")
    p(f"s_mul_i32 s{s_wg}, s{s_w}, {448*1024}")
    g.vW1d = V.alloc(); g.vW2d = V.alloc()
    t0, t1, t2 = V.alloc(), V.alloc(), V.alloc()
    p(f"v_and_b32 v{t0}, 7, v0")
    p(f"v_lshrrev_b32 v{t1}, 2, v{t0}")
    p(f"v_bfe_u32 v{t2}, v0, 4, 1")
    p(f"v_xor_b32 v{t1}, v{t1}, v{t2}")
    p(f"v_and_b32 v{t0}, 3, v{t0}")
    p(f"v_lshl_add_u32 v{t0}, v{t1}, 2, v{t0}")
    p(f"v_lshlrev_b32 v{t0}, 4, v{t0}")
    p(f"v_lshrrev_b32 v{t1}, 3, v0")
    p(f"v_lshl_add_u32 v{t2}, v{t1}, 10, v{t0}")
    p(f"s_lshl_b32 s{s_a}, s{s_j}, 7")
    p(f"v_add_u32 v{g.vW2d}, s{s_a}, v{t2}")
    p(f"v_mul_u32_u24 v{t1}, 3584, v{t1}")
    p(f"v_add_u32 v{t1}, v{t1}, v{t0}")
    p(f"s_mul_i32 s{s_a}, s{s_w}, {8*3584}")
    p(f"s_lshl_b32 s{s_b}, s{s_i16c}, 8")
    p(f"s_add_u32 s{s_a}, s{s_a}, s{s_b}")
    p(f"v_add_u32 v{g.vW1d}, s{s_a}, v{t1}")
    g.vFl = V.alloc(); g.vMyFl = V.alloc(); g.vEp = V.alloc(2)
    p(f"s_lshl_b32 s{s_a}, s{s_R}, 10")
    p(f"s_add_u32 s{s_a}, s{s_a}, {WS_FL}")
    p(f"v_and_b32 v{t0}, 15, v0")
    p(f"v_lshlrev_b32 v{t0}, 3, v{t0}")
    p(f"v_add_u32 v{g.vFl}, s{s_a}, v{t0}")
    p(f"s_lshl_b32 s{s_b}, s{s_i16}, 3")
    p(f"s_add_u32 s{s_b}, s{s_b}, s{s_a}")
    p(f"v_mov_b32 v{g.vMyFl}, s{s_b}")
    late = g.late_vm = []; g.late_regs = []
    def keep():
        r = V.alloc(); g.late_regs.append(r); return r
    r = keep()
    p(f"v_mov_b32 v{r}, s{s_a}")
    late.append(T(f"buffer_load_dwordx2 {vr(g.vEp,2)}, v{r}, {srd(sWS)}, 0 offen offset:768 sc1", "ep"))
    r = keep()
    p(f"v_and_b32 v{r}, 3, v0")
    p(f"v_lshlrev_b32 v{r}, 7, v{r}")
    p(f"v_add_u32 v{r}, s{s_a}, v{r}")
    late.append(T(f"buffer_load_dword v{g.vdummy}, v{r}, {srd(sWS)}, 0 offen", "warm"))
    g.vB1 = V.alloc(4); g.vB2 = V.alloc(8)
    if cfg.touch:
        r = keep()
        p(f"s_lshl_b32 s{s_a}, s2, 2"); p(f"s_add_u32 s{s_a}, s{s_a}, s{s_w}")
        p(f"v_min_u32 v{r}, 13, v0"); p(f"s_mul_i32 s{s_b}, s{s_a}, 14"); p(f"v_add_u32 v{r}, s{s_b}, v{r}"); p(f"v_lshlrev_b32 v{r}, 7, v{r}")
        late.append(T(f"buffer_load_dword v{g.vdummy}, v{r}, {srd(sW1)}, 0 offen", "touch"))
        late.append(T(f"buffer_load_dword v{g.vdummy}, v{r}, {srd(sW2)}, 0 offen", "touch"))
    r = keep()
    p(f"v_and_b32 v{r}, 31, v0")
    p(f"v_lshlrev_b32 v{r}, 1, v{r}")
    p(f"s_lshl_b32 s{s_a}, s{s_i16c}, 8")
    p(f"v_add_u32 v{r}, s{s_a}, v{r}")
    for nt in range(4):
        late.append(T(f"global_load_ushort v{g.vB1+nt}, v{r}, {sp(sB1)} offset:{nt*64}", "b1"))
    r = keep()
    p(f"v_lshrrev_b32 v{r}, 5, v0")
    p(f"v_lshlrev_b32 v{r}, 3, v{r}")
    p(f"s_lshl_b32 s{s_a}, s{s_j}, 7")
    p(f"s_lshl_b32 s{s_b}, s{s_nh}, 6")
    p(f"s_add_u32 s{s_a}, s{s_a}, s{s_b}")
    p(f"v_add_u32 v{r}, s{s_a}, v{r}")
    for q in range(4):
        late.append(T(f"global_load_dwordx2 {vr(g.vB2+2*q,2)}, v{r}, {sp(sB2)} offset:{q*16}", "b2"))
    E = g.e1 = {}
    for k in ("NEG", "SelLo", "SelHi", "C512", "A1", "A2", "A3", "O"): E[k] = V.alloc()
    E["C8"] = V.alloc(2); E["XR"] = V.alloc(4)
    p(f"v_mov_b32 v{E['NEG']}, 0xff800000")
    p(f"v_and_b32 v{t0}, 1, v0")
    p(f"v_cmp_eq_u32 vcc, 1, v{t0}")
    p(f"v_mov_b32 v{E['SelLo']}, 0x0c0c0100"); p(f"v_mov_b32 v{t1}, 0x01000c0c")
    p(f"v_cndmask_b32 v{E['SelLo']}, v{E['SelLo']}, v{t1}, vcc")
    p(f"v_mov_b32 v{E['SelHi']}, 0x0c0c0302"); p(f"v_mov_b32 v{t1}, 0x03020c0c")
    p(f"v_cndmask_b32 v{E['SelHi']}, v{E['SelHi']}, v{t1}, vcc")
    p(f"v_mov_b32 v{E['C512']}, {fl(1/512)}")
    p(f"v_mov_b32 v{E['C8']}, 0x3e003e00"); p(f"v_mov_b32 v{E['C8']+1}, 0x3e003e00")
    p(f"v_and_b32 v{E['A3']}, 15, v0"); p(f"v_lshlrev_b32 v{E['A3']}, 3, v{E['A3']}"); p(f"v_add_u32 v{E['A3']}, {L_M}, v{E['A3']}")
    p(f"s_add_u32 s{s_a}, s{s_w}, 1"); p(f"s_lshl_b32 s{s_a}, s{s_a}, 7"); p(f"v_add_u32 v{E['A1']}, s{s_a}, v{E['A3']}")
    p(f"s_lshl_b32 s{s_a}, s{s_w}, 7"); p(f"s_add_u32 s{s_a}, s{s_a}, 1024"); p(f"v_add_u32 v{E['A2']}, s{s_a}, v{E['A3']}")
    p(f"v_and_b32 v{t0}, 15, v0"); p(f"v_bfe_u32 v{t1}, v0, 5, 1"); p(f"v_lshl_add_u32 v{t0}, v{t1}, 5, v{t0}")
    p(f"v_lshlrev_b32 v{t0}, 4, v{t0}"); p(f"v_bfe_u32 v{t1}, v0, 4, 1"); p(f"v_lshl_add_u32 v{t0}, v{t1}, 3, v{t0}")
    p(f"s_lshl_b32 s{s_a}, s{s_j}, 2"); p(f"s_add_u32 s{s_a}, s{s_a}, s{s_w}"); p(f"s_lshl_b32 s{s_a}, s{s_a}, 10")
    p(f"s_lshl_b32 s{s_b}, s{s_rt}, 16"); p(f"s_add_u32 s{s_a}, s{s_a}, s{s_b}")
    p(f"v_add_u32 v{E['O']}, s{s_a}, v{t0}")
    p(f"s_lshl_b32 s{s_a}, s{s_sh}, 5"); p(f"s_add_u32 s{s_a}, s{s_a}, 16")
    p(f"v_and_b32 v{t0}, 31, v0"); p(f"v_add_u32 v{t0}, s{s_a}, v{t0}")
    p(f"v_bfe_u32 v{t1}, v{t0}, 1, 3")
    p(f"s_lshl_b32 s{s_b}, s{s_nh}, 2"); p(f"v_xor_b32 v{t1}, s{s_b}, v{t1}")
    p(f"s_sub_u32 s{s_c}, s{s_j}, s{s_rot}"); p(f"s_and_b32 s{s_c}, s{s_c}, 7")
    p(f"s_mul_i32 s{s_c}, s{s_c}, 10240")
    p(f"v_lshrrev_b32 v{t2}, 5, v0"); p(f"v_lshlrev_b32 v{t2}, 3, v{t2}")
    p(f"v_lshl_add_u32 v{t2}, v{t0}, 7, v{t2}"); p(f"v_add_u32 v{t2}, s{s_c}, v{t2}")
    for q in range(4):
        p(f"v_xor_b32 v{t0}, {q}, v{t1}")
        p(f"v_lshl_add_u32 v{E['XR']+q}, v{t0}, 4, v{t2}")
    for r in (t0, t1, t2): V.free(r)
    for r in range(4): p(f"v_mov_b32 v{g.ones+r}, 0x3f803f80")
    return p.items

def phase1(p, g):
    V = g.V; a = g.p1a; ones = g.ones
    FB = [V.alloc(36), V.alloc(36)]
    def fx(b, t): return FB[b] + 4 * t
    def fw(b, X): return FB[b] + 24 + 4 * X
    hal = V.alloc(4)
    Q = {t: V.alloc(4) for t in range(1, 5)}
    K = {t: V.alloc(4) for t in range(5)}
    Vv = {t: V.alloc(4) for t in range(5)}
    cs = [V.alloc(4) for _ in range(3)]
    sumO, gramO, sumH, gramH = (V.alloc(4) for _ in range(4))
    g.xres = xres = V.alloc(8)
    E = g.e1

    def reads(n):
        i, s_ = n >> 1, n & 1
        b = n & 1
        xo = (i * 10240 if i < 6 else (i - 6) * 10240)
        slot = i % 3
        wreg, wo = (a['Wr'], slot * 24576) if slot < 2 else (a['Wr2'], 0)
        xr, ow = a['Xr%d' % s_], a['Ow%d' % s_]
        def wr(X): return [f"ds_read_b64_tr_b16 {vr(fw(b, X) + 2*rd, 2)}, v{wreg} offset:{wo + X*8192 + s_*4096 + rd*512}" for rd in range(2)]
        out = wr(1)
        out += [f"ds_read_b128 {vr(fx(b, t), 4)}, v{xr} offset:{xo + t*2048}" for t in range(5)]
        out += wr(2) + wr(0)
        out += [f"ds_read_b128 {vr(fx(b, 5), 4)}, v{ow} offset:{xo}"]
        return out
    O4 = vr(ones, 4)
    def mf(d, A, B, first): return m16k32(d, A, B, "0" if first else vr(d, 4))
    def mfmas(n):
        b = n & 1; f = n == 0
        x = lambda t: vr(fx(b, t), 4); w = lambda X: vr(fw(b, X), 4)
        out = [mf(K[t], w(1), x(t), f) for t in range(5)]
        out.append(mf(cs[1], O4, w(1), f))
        out += [mf(Vv[t], x(t), w(2), f) for t in range(5)]
        out.append(mf(cs[2], O4, w(2), f))
        out += [mf(Q[t], w(0), x(t), f) for t in range(1, 5)]
        out.append(mf(cs[0], O4, w(0), f))
        out.append(mf(sumO, O4, x(5), f))
        out.append(mf(gramO, x(5), x(5), f))
        return out
    masks = []
    masks += set_mask(s_m1, mask64(lambda l: (l & 3) == 1)) + set_mask(s_m2, mask64(lambda l: (l & 3) == 2)) + set_mask(s_m3, mask64(lambda l: (l & 3) == 3))
    masks += set_mask(s_diag, mask64(lambda l: (l >> 4) == ((l & 15) >> 2))) + set_mask(s_odd, mask64(lambda l: l & 1))
    masks += set_mask(s_va0, mask64(lambda l: 4*(l >> 4) + (l & 1) >= (l & 15) + 2))
    masks += set_mask(s_va1, mask64(lambda l: 4*(l >> 4) + (l & 1) + 2 >= (l & 15) + 2))
    masks += set_mask(s_vb0, mask64(lambda l: 4*(l >> 4) + (l & 1) <= (l & 15)))
    masks += set_mask(s_vb1, mask64(lambda l: 4*(l >> 4) + (l & 1) + 2 <= (l & 15)))
    masks += [f"s_cmp_eq_u32 s{s_rt}, 0", f"s_cselect_b64 {sp(s_fa0)}, 0, {sp(s_va0)}", f"s_cselect_b64 {sp(s_fa1)}, 0, {sp(s_va1)}"]

    p.wait_vm(["X0", "W0"]); p("s_barrier")
    stamp(p, g, 1)
    p.add(reads(0))
    for n in range(16):
        i, s_ = n >> 1, n & 1
        if s_ == 1 and i < 7:
            tags = [f"W{i+1}"] + ([f"X{(i+1)//2}"] if (i + 1) % 2 == 0 else [])
            p.wait_lgkm0(); p.wait_vm(tags); p("s_barrier")
            if g.cfg.stamps >= 2: stamp(p, g, 22 + i)
        else:
            p.wait_lgkm0()
        m = mfmas(n)
        rd = []
        if n == 11: rd += [f"v_add_u32 v{a[k]}, 61440, v{a[k]}" for k in ("Xr0", "Xr1", "Ow0", "Ow1")]
        if n < 15: rd += reads(n + 1)
        if n % 4 == 2:
            pr = n // 4
            if pr == 3: rd.append(f"v_add_u32 v{a['Hal']}, 61440, v{a['Hal']}")
            rd.append(f"ds_read_b128 {vr(hal,4)}, v{a['Hal']} offset:{pr * 20480 if pr < 3 else 0}")
        if n % 4 == 3:
            m.append(mf(sumH, O4, vr(hal, 4), n == 3)); m.append(mf(gramH, vr(hal, 4), vr(hal, 4), n == 3))
        dm = []
        if s_ == 1 and i + 3 < 8: dm = dma_w(g, i + 3)
        if n == 0 and g.cfg.small: dm = dma_w(g, 2) + dma_x(g, 1)
        if n == 2 and not g.cfg.xall: dm = dma_x(g, 2)
        if n == 4 and not g.cfg.xall: dm = dma_x(g, 3)
        if n == 11: dm = wo_piece(g, 0)
        if n == 13: dm = wo_piece(g, 1)
        extra = []
        if n == g.cfg.latevm + 1:
            extra = list(g.late_vm)
        if n == 12: extra = extra + masks[:16]
        if n == 14:
            extra = masks[16:] + [f"ds_read_b64 {vr(xres + 2*q, 2)}, v{E['XR']+q} offset:{L_X}" for q in range(4)]
        fixed = {}
        for k, r in enumerate(rd): fixed.setdefault(min(k, len(m) - 4), []).append(r)
        ng = len(m) - 1
        for k, (pre, dma) in enumerate(dm):
            gk = (k * (ng - 1)) // max(1, len(dm))
            fixed.setdefault(gk, []).extend(pre if isinstance(pre, list) else [pre])
            fixed.setdefault(gk + 1, []).insert(0, dma)
        seq, _ = weave(m, fixed, extra, cap=2)
        p.add(seq)
    g.p1 = dict(Q=Q, K=K, V=Vv, cs=cs, sumO=sumO, gramO=gramO, sumH=sumH, gramH=gramH)
    V.free(FB[0], 36); V.free(FB[1], 36); V.free(hal, 4); V.free(E["XR"], 4)
    for k in a: V.free(a[k])
    for r in g.late_regs: V.free(r)

def split_hi_lo(val, dst, t0, t1, dup):
    o = [f"v_cvt_pk_bf16_f32 v{t0}, v{val}, v{val}",
         f"v_and_b32 v{t0}, 0xffff0000, v{t0}",
         f"v_sub_f32 v{t1}, v{val}, v{t0}",
         f"v_cvt_pk_bf16_f32 v{dst}, v{t0}, v{t1}"]
    if dup: o.append(f"v_mov_b32 v{dst+1}, v{dst}")
    return o

def insert_dma(items, pairs, b, e):
    return spread_pairs(items, [(pre if isinstance(pre, list) else [pre], [dma]) for pre, dma in pairs], b, e)

def phase1_epilogue(p0, g):
    V = g.V; P = g.p1; E = g.e1
    Q, K, Vv, cs = P["Q"], P["K"], P["V"], P["cs"]
    p = Prog()
    p.wait_lgkm0(); p("s_barrier")
    stamp(p, g, 2)
    i_start = len(p.items)
    PO, PH = V.alloc(2), V.alloc(2)
    for (dst, sm, gr) in ((PO, P["sumO"], P["gramO"]), (PH, P["sumH"], P["gramH"])):
        p(f"v_cndmask_b32 v{dst+1}, v{gr}, v{gr+1}, {sp(s_m1)}")
        p(f"v_mov_b32 v{dst}, v{sm}")
        p(f"v_cndmask_b32 v{dst+1}, v{dst+1}, v{gr+2}, {sp(s_m2)}")
        p(f"v_cndmask_b32 v{dst+1}, v{dst+1}, v{gr+3}, {sp(s_m3)}")
    p(f"s_mov_b64 exec, {sp(s_diag)}")
    p(f"ds_write_b64 v{E['A1']}, {vr(PO,2)}")
    p(f"ds_write_b64 v{E['A2']}, {vr(PH,2)}")
    p("s_mov_b64 exec, -1")
    for k in ("sumO", "gramO", "sumH", "gramH"): V.free(P[k], 4)
    V.free(PO, 2); V.free(PH, 2); V.free(E["A1"]); V.free(E["A2"])
    CA = [V.alloc(2) for _ in range(3)]
    tA, tB = V.alloc(), V.alloc()
    for X in range(3):
        p(f"v_cvt_pk_bf16_f32 v{CA[X]}, v{cs[X]}, v{cs[X]}")
        p(f"v_and_b32 v{tA}, 0xffff0000, v{CA[X]}")
        p(f"v_sub_f32 v{tB}, v{cs[X]}, v{tA}")
        p(f"v_cvt_pk_bf16_f32 v{CA[X]+1}, v{tB}, v{tB}")
    for X in range(3): V.free(cs[X], 4)
    p.wait_lgkm0(); p("s_barrier")
    ST = {t: V.alloc(2) for t in range(1, 5)}
    HP = [V.alloc(2) for _ in range(4)]
    for u in range(4): p(f"ds_read_b64 {vr(HP[u],2)}, v{E['A3']} offset:{1024 + u*128}")
    for t in range(1, 5): p(f"ds_read_b64 {vr(ST[t],2)}, v{E['A3']} offset:{t*128}")
    V.free(E["A3"])
    p(f"v_pk_add_f32 {vr(HP[0],2)}, {vr(HP[0],2)}, {vr(HP[1],2)}")
    p(f"v_pk_add_f32 {vr(HP[2],2)}, {vr(HP[2],2)}, {vr(HP[3],2)}")
    p(f"v_pk_add_f32 {vr(HP[0],2)}, {vr(HP[0],2)}, {vr(HP[2],2)}")
    ST[0] = HP[0]
    for u in range(1, 4): V.free(HP[u], 2)
    BM = {t: V.alloc(2) for t in range(5)}
    RS = {t: V.alloc(2) for t in range(5)}
    rstd = {t: V.alloc(2) for t in range(5)}
    streams = []; tmps = []
    for t in (1, 2, 3, 4, 0):
        a0, a1, a2, a3 = (V.alloc() for _ in range(4)); tmps += [a0, a1, a2, a3]
        sm, sq = ST[t], ST[t] + 1
        s = [f"v_mul_f32 v{a0}, {fl(-1/2048)}, v{sm}",
             f"v_fmaak_f32 v{a1}, v{sq}, v{E['C512']}, {fl(1e-5)}",
             f"v_mul_f32 v{a2}, v{E['C512']}, v{sm}",
             f"v_fma_f32 v{a1}, -v{a2}, v{a2}, v{a1}",
             f"v_rsq_f32 v{rstd[t]}, v{a1}"]
        s += split_hi_lo(a0, BM[t], a2, a3, True)
        s += split_hi_lo(rstd[t], RS[t], a2, a3, True)
        streams.append(s)
    p.add(zipmerge(*streams))
    for r in tmps: V.free(r)
    for t in range(5): V.free(ST[t], 2)
    V.free(E["C512"])
    RB = {t: V.alloc(4) for t in range(5)}
    for t in range(5): p(m16k16(K[t], CA[1], BM[t], vr(K[t], 4)))
    for t in range(1, 5): p(m16k16(Q[t], CA[0], BM[t], vr(Q[t], 4)))
    for t in range(5): p(m16k16(RB[t], RS[t], E["C8"], "0"))
    for t in range(5): p(m16k16(Vv[t], BM[t], CA[2], vr(Vv[t], 4)))
    for X in range(3): V.free(CA[X], 2)
    V.free(tA); V.free(tB); V.free(E["C8"], 2)
    for t in range(5): V.free(BM[t], 2); V.free(RS[t], 2)
    cq = {t: V.alloc() for t in range(1, 5)}
    for t in range(1, 5): p(f"v_mul_f32 v{cq[t]}, {fl(0.25*math.log2(math.e))}, v{rstd[t]}")
    Qp = {t: V.alloc(2) for t in range(1, 5)}
    Kp = {t: V.alloc(2) for t in range(5)}
    Vp = V.alloc(10)
    st = []
    for t in range(5):
        s = [f"v_mul_f32 v{K[t]+r}, v{rstd[t]}, v{K[t]+r}" for r in range(4)]
        s += [f"v_cvt_pk_bf16_f32 v{Kp[t]+h}, v{K[t]+2*h}, v{K[t]+2*h+1}" for h in range(2)]
        if t >= 1: s += [f"v_cvt_pk_bf16_f32 v{Qp[t]+h}, v{Q[t]+2*h}, v{Q[t]+2*h+1}" for h in range(2)]
        st.append(s)
    p.add(zipmerge(*st))
    i_mid = len(p.items)
    for t in range(5): V.free(K[t], 4); V.free(rstd[t], 2)
    for t in range(1, 5): V.free(Q[t], 4)
    vst = []
    for t in range(5):
        vst += [f"v_mul_f32 v{Vv[t]+r}, v{RB[t]+r}, v{Vv[t]+r}" for r in range(4)]
        vst += [f"v_cvt_pk_bf16_f32 v{Vp+2*t+h}, v{Vv[t]+2*h}, v{Vv[t]+2*h+1}" for h in range(2)]
    ones = g.ones
    allocs = []; blocks = []; smf = []
    vNEG, vSelLo, vSelHi = E["NEG"], E["SelLo"], E["SelHi"]
    for b in range(4):
        qt = b + 1
        Sa, Sb, Pp, O, Dn = (V.alloc(4) for _ in range(5))
        v = [V.alloc() for _ in range(4)]
        m, mt, X1, X2 = (V.alloc() for _ in range(4))
        allocs += [(Sa, 4), (Sb, 4), (Pp, 4), (O, 4), (Dn, 4)] + [(x, 1) for x in v + [m, mt, X1, X2]]
        va0, va1 = (s_fa0, s_fa1) if b == 0 else (s_va0, s_va1)
        smf += [m16k16(Sa, Kp[qt-1], Qp[qt], "0"), m16k16(Sb, Kp[qt], Qp[qt], "0")]
        s = [f"v_cndmask_b32 v{v[0]}, v{Sa}, v{Sa+1}, {sp(s_odd)}",
             f"v_cndmask_b32 v{v[1]}, v{Sa+2}, v{Sa+3}, {sp(s_odd)}",
             f"v_cndmask_b32 v{v[2]}, v{Sb}, v{Sb+1}, {sp(s_odd)}",
             f"v_cndmask_b32 v{v[3]}, v{Sb+2}, v{Sb+3}, {sp(s_odd)}",
             f"v_cndmask_b32 v{v[0]}, v{vNEG}, v{v[0]}, {sp(va0)}",
             f"v_cndmask_b32 v{v[1]}, v{vNEG}, v{v[1]}, {sp(va1)}",
             f"v_cndmask_b32 v{v[2]}, v{vNEG}, v{v[2]}, {sp(s_vb0)}",
             f"v_cndmask_b32 v{v[3]}, v{vNEG}, v{v[3]}, {sp(s_vb1)}",
             f"v_max3_f32 v{m}, v{v[0]}, v{v[1]}, v{v[2]}",
             f"v_max_f32 v{m}, v{m}, v{v[3]}",
             f"v_mov_b32 v{mt}, v{m}",
             f"v_permlane32_swap_b32 v{m}, v{mt}",
             f"v_max_f32 v{m}, v{m}, v{mt}",
             f"v_mov_b32 v{mt}, v{m}",
             f"v_permlane16_swap_b32 v{m}, v{mt}",
             f"v_max_f32 v{m}, v{m}, v{mt}",
             f"v_mul_f32 v{m}, v{cq[qt]}, v{m}"]
        s += [f"v_fma_f32 v{v[k]}, v{v[k]}, v{cq[qt]}, -v{m}" for k in range(4)]
        s += [f"v_exp_f32 v{v[k]}, v{v[k]}" for k in range(4)]
        s += [f"v_cvt_pk_bf16_f32 v{X1}, v{v[0]}, v{v[1]}",
              f"v_cvt_pk_bf16_f32 v{X2}, v{v[2]}, v{v[3]}",
              f"v_perm_b32 v{Pp}, v{X1}, v{X1}, v{vSelLo}",
              f"v_perm_b32 v{Pp+1}, v{X1}, v{X1}, v{vSelHi}",
              f"v_perm_b32 v{Pp+2}, v{X2}, v{X2}, v{vSelLo}",
              f"v_perm_b32 v{Pp+3}, v{X2}, v{X2}, v{vSelHi}",
              m16k32(Dn, vr(ones, 4), vr(Pp, 4), "0"),
              m16k32(O, vr(Vp + 2*(qt-1), 4), vr(Pp, 4), "0"),
              f"v_rcp_f32 v{Dn}, v{Dn}"]
        s += [f"v_mul_f32 v{O+r}, v{Dn}, v{O+r}" for r in range(4)]
        s += [f"v_cvt_pk_bf16_f32 v{O}, v{O}, v{O+1}", f"v_cvt_pk_bf16_f32 v{O+1}, v{O+2}, v{O+3}"]
        so = f"s{s_k32}" if (b >> 1) else "0"
        off = f" offset:{(b & 1) * 256}" if (b & 1) else ""
        s += [T(f"buffer_store_dwordx2 {vr(O,2)}, v{E['O']}, {srd(sWS)}, {so} offen{off} sc1", "ost")]
        blocks.append(s)
    seq, _ = weave(smf, {}, vst, cap=4)
    p.add(seq)
    p.add(zipmerge(*blocks))
    for r, n in allocs: V.free(r, n)
    for t in range(1, 5): V.free(Qp[t], 2); V.free(cq[t])
    for t in range(5): V.free(Kp[t], 2); V.free(Vv[t], 4); V.free(RB[t], 4)
    V.free(Vp, 10); V.free(vNEG); V.free(vSelLo); V.free(vSelHi); V.free(E["O"])
    items = p.items
    if g.cfg.stop_after >= 2:
        items = insert_dma(items, wo_piece(g, 2) + w1_dma(g, 0, range(6)), i_start, i_mid)
    p0.add(items)

def get_nonce(p, g):
    p(f"v_readfirstlane_b32 s{s_nonce}, v{g.vEp}")
    p(f"v_readfirstlane_b32 s{s_nonce+1}, v{g.vEp+1}")
    p(f"s_add_u32 s{s_nonce}, s{s_nonce}, 2")
    p(f"s_or_b32 s{s_nonce}, s{s_nonce}, 1")
    p(f"v_mov_b32 v{g.vEp}, s{s_nonce}")
    p(f"v_mov_b32 v{g.vEp+1}, s{s_nonce+1}")

def signal(p, g, ph, tags):
    p.wait_vm(tags); p.wait_lgkm0()
    p("s_barrier")
    p(f"s_cmp_eq_u32 s{s_w}, 0")
    p(f"s_cselect_b64 exec, 1, 0")
    p(f"buffer_store_dwordx2 {vr(g.vEp,2)}, v{g.vMyFl}, {srd(sWS)}, 0 offen offset:{ph*128}", f"flagA{ph}")
    p("s_mov_b64 exec, -1")

def publish_b(g, ph):
    return [f"s_cmp_eq_u32 s{s_w}, 0", f"s_cselect_b64 exec, 1, 0",
            T(f"buffer_store_dwordx2 {vr(g.vEp,2)}, v{g.vMyFl}, {srd(sWS)}, 0 offen offset:{384 + ph*128} sc1", f"flagB{ph}"),
            "s_mov_b64 exec, -1"]

def wait_flags(p, g, ph, eight):
    V = g.V
    a = V.alloc(2); va = V.alloc()
    L = f"{ph}"; mask = 0xff if eight else 0xffff
    if eight:
        p(f"s_and_b32 s{s_a}, s{s_i16}, 8")
        p(f"s_lshl_b32 s{s_a}, s{s_a}, 3")
        p(f"v_add_u32 v{va}, s{s_a}, v{g.vFl}")
    else:
        p(f"v_mov_b32 v{va}, v{g.vFl}")
    p(f"s_mov_b32 s{s_cnt}, 0")
    p(f"s_mov_b64 exec, {mask}")
    p.label(f"L_poll{L}")
    p(f"buffer_load_dwordx2 {vr(a,2)}, v{va}, {srd(sWS)}, 0 offen offset:{ph*128} sc1")
    p("s_waitcnt vmcnt(0)")
    p(f"v_cmp_ne_u64 vcc, {sp(s_nonce)}, {vr(a,2)}")
    p(f"s_cbranch_vccz L_ok{L}")
    p.side_begin()
    p(f"s_add_u32 s{s_cnt}, s{s_cnt}, 1")
    p(f"s_cmp_lt_u32 s{s_cnt}, {KPOLL}")
    p(f"s_cbranch_scc1 L_poll{L}")
    p(f"s_cmp_eq_u32 s{s_cnt}, {KPOLL}")
    p(f"s_cbranch_scc0 L_pub{L}")
    p(f"s_cmp_eq_u32 s{s_w}, 0")
    p(f"s_cselect_b64 exec, 1, 0")
    p(f"buffer_store_dwordx2 {vr(g.vEp,2)}, v{g.vMyFl}, {srd(sWS)}, 0 offen offset:{384 + ph*128} sc1")
    p(f"s_mov_b64 exec, {mask}")
    p.label(f"L_pub{L}")
    p(f"buffer_load_dwordx2 {vr(a,2)}, v{va}, {srd(sWS)}, 0 offen offset:{384 + ph*128} sc1")
    p("s_waitcnt vmcnt(0)")
    p(f"v_cmp_ne_u64 vcc, {sp(s_nonce)}, {vr(a,2)}")
    p(f"s_cbranch_vccz L_ok{L}")
    p(f"s_cmp_lt_u32 s{s_cnt}, 0x80000")
    p(f"s_cbranch_scc1 L_poll{L}")
    p.side_end()
    p.label(f"L_ok{L}")
    p("s_mov_b64 exec, -1")
    V.free(a, 2); V.free(va)

def tr_base(p, dst, natural, tmp):
    t0, t1 = tmp
    p(f"v_bfe_u32 v{t0}, v0, 2, 2")
    p(f"v_lshrrev_b32 v{t1}, 5, v0")
    p(f"v_lshl_add_u32 v{t0}, v{t1}, {3 if natural else 2}, v{t0}")
    p(f"v_lshlrev_b32 v{t0}, 7, v{t0}")
    p(f"v_bfe_u32 v{t1}, v0, 3, 1")
    p(f"v_lshl_add_u32 v{t0}, v{t1}, 6, v{t0}")
    p(f"v_bfe_u32 v{t1}, v0, 4, 1")
    p(f"v_lshl_add_u32 v{t0}, v{t1}, 5, v{t0}")
    p(f"v_and_b32 v{t1}, 3, v0")
    p(f"v_lshl_add_u32 v{dst}, v{t1}, 3, v{t0}")

def phase2(p, g):
    V = g.V
    p.add(fifo_pairs(w1_dma(g, 0, range(6, 16))))
    get_nonce(p, g)
    vWa = [V.alloc() for _ in range(3)]; vWb = [V.alloc() for _ in range(3)]; vO = V.alloc()
    t0, t1 = V.alloc(), V.alloc()
    tr_base(p, t0, True, (t0, t1))
    p(f"s_lshl_b32 s{s_b}, s{s_nh}, 6")
    p(f"v_xor_b32 v{t0}, s{s_b}, v{t0}")
    for k, (base, stride) in enumerate(((L_WA, 12288), (L_WB, 12288), (L_WC, 8192))):
        p(f"s_mul_i32 s{s_a}, s{s_nh}, {stride}"); p(f"s_add_u32 s{s_a}, s{s_a}, {base}")
        p(f"v_add_u32 v{vWa[k]}, s{s_a}, v{t0}")
        p(f"v_xor_b32 v{vWb[k]}, 64, v{vWa[k]}")
    p(f"s_lshl_b32 s{s_a}, s{s_rt}, 16"); p(f"s_lshl_b32 s{s_b}, s{s_sh}, 15"); p(f"s_add_u32 s{s_a}, s{s_a}, s{s_b}")
    p(f"s_lshl_b32 s{s_b}, s{s_nh}, 14"); p(f"s_add_u32 s{s_a}, s{s_a}, s{s_b}")
    p(f"v_lshlrev_b32 v{t0}, 4, v0")
    p(f"v_add_u32 v{vO}, s{s_a}, v{t0}")
    vE, vE2, vH, vS = V.alloc(), V.alloc(), V.alloc(), V.alloc()
    p(f"s_lshl_b32 s{s_a}, s{s_w}, 12"); p(f"s_add_u32 s{s_a}, s{s_a}, {L_EX2}"); p(f"v_add_u32 v{vE}, s{s_a}, v{t0}")
    p(f"s_xor_b32 s{s_a}, s{s_w}, 2"); p(f"s_lshl_b32 s{s_a}, s{s_a}, 12"); p(f"s_add_u32 s{s_a}, s{s_a}, {L_EX2}"); p(f"v_add_u32 v{vE2}, s{s_a}, v{t0}")
    p(f"s_lshl_b32 s{s_a}, s{s_rt}, 1"); p(f"s_add_u32 s{s_a}, s{s_a}, s{s_sh}")
    p(f"s_lshl_b32 s{s_b}, s{s_a}, 15"); p(f"s_lshl_b32 s{s_c}, s{s_j}, 12"); p(f"s_add_u32 s{s_b}, s{s_b}, s{s_c}")
    p(f"s_lshl_b32 s{s_c}, s{s_nh}, 11"); p(f"s_add_u32 s{s_b}, s{s_b}, s{s_c}"); p(f"s_add_u32 s{s_b}, s{s_b}, {WS_H}")
    p(f"v_add_u32 v{vH}, s{s_b}, v{t0}")
    p(f"s_lshl_b32 s{s_b}, s{s_a}, 12"); p(f"s_lshl_b32 s{s_c}, s{s_j}, 9"); p(f"s_add_u32 s{s_b}, s{s_b}, s{s_c}")
    p(f"s_lshl_b32 s{s_c}, s{s_nh}, 8"); p(f"s_add_u32 s{s_b}, s{s_b}, s{s_c}"); p(f"s_add_u32 s{s_b}, s{s_b}, {WS_ST}")
    p(f"v_lshlrev_b32 v{t1}, 3, v0"); p(f"v_add_u32 v{vS}, s{s_b}, v{t1}")
    V.free(t0); V.free(t1)
    signal(p, g, 0, ["ost", "wo"])
    stamp(p, g, 4)
    WF = [V.alloc(8), V.alloc(8), V.alloc(8)]
    def reads(ks):
        b = WF[ks % 3]
        k = 0 if ks < 6 else (1 if ks < 12 else 2)
        o = (ks - (0, 6, 12)[k]) * 2048
        return [f"ds_read_b64_tr_b16 {vr(b + 4*u + 2*rd, 2)}, v{(vWa, vWb)[u][k]} offset:{o + rd*512}" for u in range(2) for rd in range(2)]
    p.add(reads(0)); p.add(reads(1))
    wait_flags(p, g, 0, True)
    stamp(p, g, 5)
    OF = V.alloc(64)
    so = ["0", f"s{s_4k}", f"s{s_8k}", f"s{s_12k}"]
    def load(ks):
        off = f" offset:{(ks & 3) * 1024}" if ks & 3 else ""
        return f"buffer_load_dwordx4 {vr(OF+4*ks,4)}, v{vO}, {srd(sWS)}, {so[ks >> 2]} offen{off} sc1"
    D = 8
    for ks in range(D): p(load(ks))
    acc = [V.alloc(16), V.alloc(16)]
    for ks in range(16):
        b = WF[ks % 3]
        m = [m32(vr(acc[u], 16), vr(b + 4*u, 4), vr(OF + 4*ks, 4), "0" if ks == 0 else vr(acc[u], 16)) for u in range(2)]
        f = reads(ks + 2) if ks + 2 < 16 else []
        l = [load(ks + D)] if ks + D < 16 else []
        p.add([m[0]] + l + f[:2] + [m[1]] + f[2:])
    for b in WF: V.free(b, 8)
    V.free(OF, 64); V.free(vO)
    for r in vWa + vWb: V.free(r)
    p.add(publish_b(g, 0))
    p.wait_lgkm0(); p("s_barrier")
    stamp(p, g, 6)
    q = Prog()
    for k in range(4): q(f"ds_write_b128 v{vE}, {vr(acc[1]+4*k,4)} offset:{k*1024}")
    A = acc[0]
    t = V.alloc(4)
    for k in range(8):
        x = g.xres + k
        q(f"v_lshlrev_b32 v{t + (k&1)*2}, 16, v{x}")
        q(f"v_and_b32 v{t + (k&1)*2 + 1}, 0xffff0000, v{x}")
        q(f"v_pk_add_f32 {vr(A + 2*k, 2)}, {vr(A + 2*k, 2)}, {vr(t + (k&1)*2, 2)}")
    n1 = len(q.items)
    q.wait_lgkm0(); q("s_barrier")
    for k in range(4): q(f"ds_read_b128 {vr(acc[1]+4*k,4)}, v{vE2} offset:{k*1024}")
    for k in range(8):
        q(f"v_pk_add_f32 {vr(A + 2*k, 2)}, {vr(A + 2*k, 2)}, {vr(acc[1] + 2*k, 2)}")
    V.free(t, 4); V.free(acc[1], 16); V.free(vE); V.free(vE2)
    hp = g.xres
    for k in range(8): q(f"v_cvt_pk_bf16_f32 v{hp+k}, v{A+2*k}, v{A+2*k+1}")
    V.free(A, 16)
    q(f"buffer_store_dwordx4 {vr(hp,4)}, v{vH}, {srd(sWS)}, 0 offen sc1", "hst")
    q(f"buffer_store_dwordx4 {vr(hp+4,4)}, v{vH}, {srd(sWS)}, 0 offen offset:1024 sc1", "hst")
    SQ = V.alloc(2); t = V.alloc(2)
    q(f"v_mov_b32 v{SQ}, 0"); q(f"v_mov_b32 v{SQ+1}, 0")
    for k in range(8):
        q(f"v_dot2c_f32_bf16 v{SQ}, v{hp+k}, v{g.ones}")
        q(f"v_dot2c_f32_bf16 v{SQ+1}, v{hp+k}, v{hp+k}")
    q(f"v_mov_b32 v{t}, v{SQ}"); q(f"v_mov_b32 v{t+1}, v{SQ+1}")
    q(f"v_permlane32_swap_b32 v{SQ}, v{t}"); q(f"v_permlane32_swap_b32 v{SQ+1}, v{t+1}")
    q(f"v_add_f32 v{SQ}, v{SQ}, v{t}"); q(f"v_add_f32 v{SQ+1}, v{SQ+1}, v{t+1}")
    q("s_mov_b32 exec_hi, 0")
    q(f"buffer_store_dwordx2 {vr(SQ,2)}, v{vS}, {srd(sWS)}, 0 offen sc1", "hst")
    q("s_mov_b64 exec, -1")
    V.free(vH); V.free(vS); V.free(SQ, 2); V.free(t, 2)
    p.add(insert_dma(q.items, w1_dma(g, 1, range(8)), 0, n1))
    p.add(fifo_pairs(w1_dma(g, 1, range(8, 16))))
    g.hp = hp
    stamp(p, g, 7)

def phase3(p, g):
    V = g.V
    vW = [V.alloc() for _ in range(4)]
    t0, t1 = V.alloc(), V.alloc()
    tr_base(p, vW[0], False, (t0, t1))
    p(f"v_xor_b32 v{vW[1]}, 64, v{vW[0]}")
    p(f"v_add_u32 v{vW[2]}, 65536, v{vW[0]}")
    p(f"v_add_u32 v{vW[3]}, 65536, v{vW[1]}")
    g.vTrD = V.alloc()
    p(f"v_mov_b32 v{g.vTrD}, v{vW[0]}")
    vC = V.alloc()
    p(f"s_lshl_b32 s{s_a}, s{s_sh}, 6"); p(f"s_lshl_b32 s{s_b}, s{s_nh}, 16")
    p(f"v_xor_b32 v{vC}, s{s_a}, v{vW[0]}"); p(f"v_add_u32 v{vC}, s{s_b}, v{vC}")
    sel = V.alloc(4)
    p(f"v_lshrrev_b32 v{t0}, 4, v0"); p(f"v_xor_b32 v{t0}, v{t0}, v0"); p(f"v_and_b32 v{t0}, 1, v{t0}")
    p(f"v_cmp_eq_u32 vcc, 0, v{t0}")
    p(f"v_mov_b32 v{t1}, 0")
    for r in range(4): p(f"v_cndmask_b32 v{sel+r}, v{t1}, v{g.ones}, vcc")
    vH, vS, vH1, vCw, vCr = (V.alloc() for _ in range(5))
    p(f"s_lshl_b32 s{s_a}, s{s_R}, 2"); p(f"s_add_u32 s{s_a}, s{s_a}, s{s_w}")
    p(f"s_lshl_b32 s{s_b}, s{s_a}, 15"); p(f"s_add_u32 s{s_b}, s{s_b}, {WS_H}")
    p(f"v_lshlrev_b32 v{t1}, 4, v0"); p(f"v_add_u32 v{vH}, s{s_b}, v{t1}")
    p(f"s_mul_i32 s{s_b}, s{s_a}, 114688"); p(f"s_lshl_b32 s{s_c}, s{s_i16}, 13")
    p(f"s_add_u32 s{s_b}, s{s_b}, s{s_c}"); p(f"s_add_u32 s{s_b}, s{s_b}, {WS_H1}")
    p(f"v_add_u32 v{vH1}, s{s_b}, v{t1}")
    p(f"s_lshl_b32 s{s_b}, s{s_a}, 12"); p(f"s_add_u32 s{s_b}, s{s_b}, {WS_ST}")
    p(f"v_and_b32 v{t1}, 31, v0"); p(f"v_lshlrev_b32 v{t1}, 3, v{t1}")
    p(f"v_lshrrev_b32 v{vS}, 5, v0"); p(f"v_lshl_add_u32 v{vS}, v{vS}, 8, v{t1}"); p(f"v_add_u32 v{vS}, s{s_b}, v{vS}")
    p(f"v_and_b32 v{t0}, 15, v0"); p(f"v_lshlrev_b32 v{t0}, 2, v{t0}"); p(f"s_lshl_b32 s{s_a}, s{s_w}, 7"); p(f"s_add_u32 s{s_a}, s{s_a}, {L_M}")
    p(f"v_add_u32 v{vCw}, s{s_a}, v{t0}")
    p(f"v_and_b32 v{t0}, 31, v0"); p(f"v_lshlrev_b32 v{t0}, 2, v{t0}"); p(f"v_add_u32 v{vCr}, {L_M}, v{t0}")
    signal(p, g, 1, ["hst", "w1a", "w1b"])
    stamp(p, g, 8)
    csacc = V.alloc(4); CF = [V.alloc(4) for _ in range(5)]
    def cr(ks): return [f"ds_read_b64_tr_b16 {vr(CF[ks % 5] + 2*rd, 2)}, v{vC} offset:{ks*2048 + rd*1024}" for rd in range(2)]
    for ks in range(4): p.add(cr(ks))
    for ks in range(32):
        p(m16k32(csacc, vr(sel, 4), vr(CF[ks % 5], 4), "0" if ks == 0 else vr(csacc, 4)))
        if ks + 4 < 32: p.add(cr(ks + 4))
    for b in CF: V.free(b, 4)
    V.free(sel, 4); V.free(vC)
    p(f"ds_write_b32 v{vCw}, v{csacc}")
    p(f"ds_write_b32 v{vCw}, v{csacc+1} offset:64")
    V.free(csacc, 4); V.free(vCw)
    for u in range(3): p.add(fifo_pairs(w2_dma(g, u)))
    p.wait_lgkm0(); p("s_barrier")
    CA = [V.alloc(4) for _ in range(4)]
    csv = V.alloc(4)
    for nt in range(4): p(f"ds_read_b32 v{csv+nt}, v{vCr} offset:{nt*128}")
    V.free(vCr)
    for nt in range(4):
        p(f"v_cvt_pk_bf16_f32 v{CA[nt]}, v{csv+nt}, v{csv+nt}")
        p(f"v_lshl_or_b32 v{CA[nt]+2}, v{g.vB1+nt}, 16, v{g.vB1+nt}")
        p(f"v_and_b32 v{t0}, 0xffff0000, v{CA[nt]}")
        p(f"v_mov_b32 v{CA[nt]+3}, 0")
        p(f"v_sub_f32 v{t1}, v{csv+nt}, v{t0}")
        p(f"v_cvt_pk_bf16_f32 v{CA[nt]+1}, v{t1}, v{t1}")
    V.free(csv, 4); V.free(g.vB1, 4)
    acc = [V.alloc(16) for _ in range(4)]
    WF = [V.alloc(4) for _ in range(6)]
    def rd(nt, ks, buf): return [f"ds_read_b64_tr_b16 {vr(buf + 2*r, 2)}, v{vW[nt]} offset:{ks*2048 + r*1024}" for r in range(2)]
    p(f"s_cmp_ge_u32 s{s_i16}, 14")
    p("s_cbranch_scc1 L_idle3")
    p.side_begin()
    p.add(rd(0, 0, WF[0]) + rd(1, 0, WF[1]) + rd(0, 1, WF[2]) + rd(1, 1, WF[3]))
    wait_flags(p, g, 1, False)
    stamp(p, g, 9)
    ST = V.alloc(16)
    def aload(ks):
        off = f" offset:{(ks & 3)*1024}" if ks & 3 else ""
        pre = [f"s_mov_b32 s{s_so}, {(ks >> 2) * 4096}"] if (ks & 3) == 0 else []
        return pre + [f"buffer_load_dwordx4 {ar(4*ks)}, v{vH}, {srd(sWS)}, s{s_so} offen{off} sc1"]
    D = 6
    for ks in range(2): p.add(aload(ks))
    for q in range(8):
        p(f"buffer_load_dwordx2 {vr(ST+2*q,2)}, v{vS}, {srd(sWS)}, 0 offen offset:{q*512} sc1")
    for ks in range(2, D): p.add(aload(ks))
    S, Qq = ST, ST + 1
    BM = V.alloc(4); K1, K2, sd, rs = V.alloc(), V.alloc(), V.alloc(), V.alloc()
    U = [V.alloc() for _ in range(8)]
    u0, u1, u2, u3 = U[:4]
    st = []
    for q in range(1, 8):
        st += [f"v_add_f32 v{S}, v{S}, v{ST+2*q}", f"v_add_f32 v{Qq}, v{Qq}, v{ST+2*q+1}"]
    st += [f"v_mov_b32 v{u0}, v{S}", f"v_mov_b32 v{u1}, v{Qq}", f"v_mov_b32 v{BM+3}, 0",
           f"v_permlane32_swap_b32 v{S}, v{u0}", f"v_permlane32_swap_b32 v{Qq}, v{u1}",
           f"v_add_f32 v{S}, v{S}, v{u0}", f"v_add_f32 v{Qq}, v{Qq}, v{u1}",
           f"v_mul_f32 v{u0}, {fl(1/512)}, v{S}",
           f"v_mul_f32 v{u1}, {fl(1/512)}, v{Qq}",
           f"v_add_f32 v{u1}, {fl(1e-5)}, v{u1}",
           f"v_fma_f32 v{u1}, -v{u0}, v{u0}, v{u1}",
           f"v_rsq_f32 v{rs}, v{u1}",
           f"v_mul_f32 v{u0}, -0.5, v{u0}",
           f"v_mul_f32 v{sd}, v{u1}, v{rs}",
           f"v_mul_f32 v{K1}, {fl(C1)}, v{rs}",
           f"v_mul_f32 v{u1}, v{rs}, v{rs}",
           f"v_mul_f32 v{u1}, v{u1}, v{rs}",
           f"v_mul_f32 v{K2}, {fl(C2)}, v{u1}"]
    st += split_hi_lo(u0, BM, u2, u3, True)
    st += [f"v_mul_f32 v{u0}, 0.5, v{sd}"]
    st += split_hi_lo(u0, BM + 2, u2, u3, False)
    def act(ks): return ar(4*ks)
    m = []; fixed = {}
    for ks in range(32):
        b0, b1 = WF[(2*ks) % 6], WF[(2*ks + 1) % 6]
        m.append(m32(vr(acc[0], 16), vr(b0, 4), act(ks), "0" if ks == 0 else vr(acc[0], 16)))
        m.append(m32(vr(acc[1], 16), vr(b1, 4), act(ks), "0" if ks == 0 else vr(acc[1], 16)))
        f0, f1 = [], []
        if ks + D < 32: f0 += aload(ks + D)
        if ks + 2 < 32:
            f0 += rd(0, ks + 2, WF[(2*ks + 4) % 6]); f1 += rd(1, ks + 2, WF[(2*ks + 5) % 6])
        fixed[2*ks] = f0; fixed[2*ks + 1] = f1
    seq, _ = weave(m, fixed, st, cap=5, start=8)
    p.add(seq)
    for ks in range(4): p.add(rd(2, ks, WF[ks % 6]))
    for nt in range(2): p(m32(vr(acc[nt], 16), vr(CA[nt], 4), vr(BM, 4), vr(acc[nt], 16)))
    p("s_barrier")
    p.add(publish_b(g, 1))
    stamp(p, g, 10)
    def gelu(nt):
        A = acc[nt]; ops = []
        for blk in range(2):
            rs_ = [A + 8*blk + i for i in range(8)]
            ops += [f"v_mul_f32 v{U[i]}, v{rs_[i]}, v{rs_[i]}" for i in range(8)]
            ops += [f"v_fma_f32 v{U[i]}, v{U[i]}, v{K2}, v{K1}" for i in range(8)]
            ops += [f"v_mul_f32 v{U[i]}, v{rs_[i]}, v{U[i]}" for i in range(8)]
            ops += [f"v_exp_f32 v{U[i]}, v{U[i]}" for i in range(8)]
            ops += [f"v_fma_f32 v{U[i]}, v{U[i]}, v{sd}, v{sd}" for i in range(8)]
            ops += [f"v_rcp_f32 v{U[i]}, v{U[i]}" for i in range(8)]
            ops += [f"v_mul_f32 v{rs_[i]}, v{rs_[i]}, v{U[i]}" for i in range(8)]
            ops += [f"v_cvt_pk_bf16_f32 v{A + 8*blk + k}, v{rs_[2*k]}, v{rs_[2*k+1]}" for k in range(4)]
            idx = 2*nt + blk
            so = f"s{s_4k}" if idx >= 4 else "0"
            off = f" offset:{(idx & 3)*1024}" if idx & 3 else ""
            ops.append(T(f"buffer_store_dwordx4 {vr(A + 8*blk, 4)}, v{vH1}, {srd(sWS)}, {so} offen{off} sc1", "h1st"))
        return ops
    def single_pass(nt, fifo, nxt):
        m = []; fixed = {}
        for ks in range(32):
            m.append(m32(vr(acc[nt], 16), vr(WF[ks % 6], 4), act(ks), "0" if ks == 0 else vr(acc[nt], 16)))
            if ks + 4 < 32: fixed[ks] = rd(nt, ks + 4, WF[(ks + 4) % 6])
            elif nxt is not None: fixed[ks] = rd(nxt, ks + 4 - 32, WF[(ks + 4) % 6])
        seq, rem = weave(m, fixed, fifo, cap=6, tail=False)
        p.add(seq)
        return rem
    w2a = []
    for u in range(3, 11): w2a += w2_dma(g, u)
    g0 = gelu(0); g1 = gelu(1)
    f0 = insert_dma(g0, w2a[:8], 0, len(g0)); f1 = insert_dma(g1, w2a[8:], 0, len(g1))
    rem = single_pass_ring(p, 2, 3, f0 + f1, acc, WF, rd, act, CA, BM, 0)
    rem = single_pass_ring(p, 3, None, rem, acc, WF, rd, act, CA, BM, 32)
    p.add(rem)
    p("s_barrier")
    stamp(p, g, 11)
    w2b = []
    for u in range(11, 19): w2b += w2_dma(g, u)
    g2 = gelu(2); g3 = gelu(3)
    p.add(insert_dma(g2, w2b[:8], 0, len(g2)))
    p.add(g3)
    p.add(fifo_pairs(w2b[8:]))
    p.wait_vm(["h1st"])
    for b in WF: V.free(b, 4)
    for b in acc: V.free(b, 16)
    V.free(ST, 16); V.free(BM, 4)
    for r in [K1, K2, sd, rs] + U: V.free(r)
    p.side_end()
    p.label("L_merge3")
    q = Prog()
    q.label("L_idle3")
    q.add(publish_b(g, 1))
    for u in range(3, 19): q.add(fifo_pairs(w2_dma(g, u)))
    q("s_waitcnt vmcnt(8)")
    q("s_branch L_merge3")
    g.tail_blocks.append(q)
    for b in CA: V.free(b, 4)
    V.free(t0); V.free(t1)
    for r in vW + [vH, vS, vH1]: V.free(r)

def single_pass_ring(p, nt, nxt, fifo, acc, WF, rd, act, CA, BM, ring0):
    m = []; fixed = {}
    for ks in range(32):
        m.append(m32(vr(acc[nt], 16), vr(WF[(ring0 + ks) % 6], 4), act(ks), "0" if ks == 0 else vr(acc[nt], 16)))
        if ks + 4 < 32: fixed[ks] = rd(nt, ks + 4, WF[(ring0 + ks + 4) % 6])
        elif nxt is not None: fixed[ks] = rd(nxt, ks + 4 - 32, WF[(ring0 + ks + 4) % 6])
    m.append(m32(vr(acc[nt], 16), vr(CA[nt], 4), vr(BM, 4), vr(acc[nt], 16)))
    seq, rem = weave(m, fixed, fifo, cap=6, tail=False)
    p.add(seq)
    return rem

def phase4(p, g):
    V = g.V
    p.items.append(("assume_vm", [f"w2_{u}" for u in range(15, 19) for _ in range(2)]))
    signal(p, g, 2, [])
    stamp(p, g, 12)
    acc = [V.alloc(16) for _ in range(4)]
    t = V.alloc(4)
    for q in range(8):
        p(f"v_lshlrev_b32 v{acc[0]+2*q}, 16, v{g.hp+q}")
        p(f"v_and_b32 v{acc[0]+2*q+1}, 0xffff0000, v{g.hp+q}")
        p(f"v_lshlrev_b32 v{t}, 16, v{g.vB2+q}")
        p(f"v_and_b32 v{t+1}, 0xffff0000, v{g.vB2+q}")
        p(f"v_pk_add_f32 {vr(acc[0]+2*q,2)}, {vr(acc[0]+2*q,2)}, {vr(t,2)}")
    V.free(t, 4); V.free(g.vB2, 8); V.free(g.hp, 8)
    vR = [[V.alloc(), V.alloc()] for _ in range(3)]
    p(f"s_lshl_b32 s{s_a}, s{s_nh}, 6")
    p(f"v_xor_b32 v{g.vTrD}, s{s_a}, v{g.vTrD}")
    for grp, sb in enumerate((s_b0, s_b1, s_b2)):
        p(f"v_add_u32 v{vR[grp][0]}, s{sb}, v{g.vTrD}")
        p(f"v_xor_b32 v{vR[grp][1]}, 64, v{g.vTrD}")
        p(f"v_add_u32 v{vR[grp][1]}, s{sb}, v{vR[grp][1]}")
    V.free(g.vTrD)
    vA = [V.alloc(), V.alloc()]; t1 = V.alloc()
    p(f"v_lshlrev_b32 v{t1}, 4, v0")
    for a_ in range(2):
        p(f"s_xor_b32 s{s_a}, s{s_sh}, {a_}")
        p(f"s_lshl_b32 s{s_b}, s{s_rt}, 1"); p(f"s_add_u32 s{s_a}, s{s_a}, s{s_b}")
        p(f"s_mul_i32 s{s_a}, s{s_a}, 114688")
        p(f"s_mul_i32 s{s_b}, s{s_w}, {28*1024}"); p(f"s_add_u32 s{s_a}, s{s_a}, s{s_b}")
        p(f"s_add_u32 s{s_a}, s{s_a}, {WS_H1}")
        p(f"v_add_u32 v{vA[a_]}, s{s_a}, v{t1}")
    vE, vP, vOut = V.alloc(), [V.alloc() for _ in range(3)], V.alloc()
    p(f"v_add_u32 v{vE}, s{s_b1}, v{t1}")
    for u in range(1, 4):
        p(f"s_xor_b32 s{s_a}, s{s_w}, {u}"); p(f"s_lshl_b32 s{s_a}, s{s_a}, 14"); p(f"v_add_u32 v{vP[u-1]}, s{s_a}, v{t1}")
    p(f"s_lshl_b32 s{s_a}, s{s_rt}, 6"); p(f"s_lshl_b32 s{s_b}, s{s_sh}, 5"); p(f"s_add_u32 s{s_a}, s{s_a}, s{s_b}")
    p(f"s_lshl_b32 s{s_a}, s{s_a}, 10")
    p(f"s_lshl_b32 s{s_b}, s{s_j}, 7"); p(f"s_add_u32 s{s_a}, s{s_a}, s{s_b}")
    p(f"s_lshl_b32 s{s_b}, s{s_nh}, 6"); p(f"s_add_u32 s{s_a}, s{s_a}, s{s_b}")
    p(f"v_and_b32 v{vOut}, 31, v0"); p(f"v_lshlrev_b32 v{vOut}, 10, v{vOut}")
    p(f"v_lshrrev_b32 v{t1}, 5, v0"); p(f"v_lshl_add_u32 v{vOut}, v{t1}, 4, v{vOut}"); p(f"v_add_u32 v{vOut}, s{s_a}, v{vOut}")
    V.free(t1)
    WF = [V.alloc(8) for _ in range(3)]
    def reads(u):
        grp, off = w2_slot(u if u < 19 else u - 19)
        b = WF[u % 3]
        return [f"ds_read_b64_tr_b16 {vr(b + 4*bb + 2*r, 2)}, v{vR[grp][bb]} offset:{off + r*1024}" for bb in range(2) for r in range(2)]
    p.add(reads(0)); p.add(reads(1))
    wait_flags(p, g, 2, False)
    stamp(p, g, 13)
    def loads(u):
        out = []
        if (u & 3) == 0: out.append(f"s_mov_b32 s{s_so2}, {(u >> 2) * 4096}")
        off = f" offset:{(u & 3)*1024}" if u & 3 else ""
        for a_ in range(2):
            out.append(T(f"buffer_load_dwordx4 {ar(8*u+4*a_)}, v{vA[a_]}, {srd(sWS)}, s{s_so2} offen{off} sc1", f"h1_{u}"))
        return out
    D = 4
    for u in range(D): p.add(loads(u))
    for u in range(28):
        b = WF[u % 3]
        m = []
        for bb in range(2):
            for a_ in range(2):
                d = vr(acc[2*bb + a_], 16)
                first = (u == 0 and 2*bb + a_ != 0)
                m.append(m32(d, vr(b + 4*bb, 4), ar(8*u + 4*a_), "0" if first else d))
        ld = loads(u + D) if u + D < 28 else []
        rd_ = ([("wait_vm", [f"w2_{u+2}"])] + reads(u + 2)) if u + 2 < 28 else []
        dm = fifo_pairs(w2_dma(g, u - 1 + 19)) if (u >= 1 and u - 1 + 19 < 28) else []
        seq = [m[0]] + ld[:-1] + [m[1]] + ld[-1:] + rd_ + [m[2]] + dm[:3] + [m[3]] + dm[3:]
        p.add(seq)
    for b in WF: V.free(b, 8)
    for g_ in vR:
        for r in g_: V.free(r)
    for r in vA: V.free(r)
    stamp(p, g, 14)
    for u in range(1, 4):
        for q in range(4): p(f"ds_write_b128 v{vE}, {vr(acc[u]+4*q,4)} offset:{(u-1)*4096 + q*1024}")
    p.add(publish_b(g, 2))
    p.wait_lgkm0(); p("s_barrier")
    for u in range(1, 4):
        for q in range(4): p(f"ds_read_b128 {vr(acc[u]+4*q,4)}, v{vP[u-1]} offset:{(u-1)*4096 + q*1024}")
    A = acc[0]
    for u in range(1, 4):
        for q in range(8): p(f"v_pk_add_f32 {vr(A+2*q,2)}, {vr(A+2*q,2)}, {vr(acc[u]+2*q,2)}")
    for q in range(8): p(f"v_cvt_pk_bf16_f32 v{A+q}, v{A+2*q}, v{A+2*q+1}")
    for q in (0, 2):
        p(f"v_permlane32_swap_b32 v{A+2*q}, v{A+2*q+2}")
        p(f"v_permlane32_swap_b32 v{A+2*q+1}, v{A+2*q+3}")
    p(f"buffer_store_dwordx4 {vr(A,4)}, v{vOut}, {srd(sOUT)}, 0 offen")
    p(f"buffer_store_dwordx4 {vr(A+4,4)}, v{vOut}, {srd(sOUT)}, 0 offen offset:32")
    p(f"s_lshl_b32 s{s_a}, s{s_R}, 10"); p(f"s_add_u32 s{s_a}, s{s_a}, {WS_FL}")
    p(f"v_mov_b32 v{vE}, s{s_a}")
    p(f"s_or_b32 s{s_b}, s{s_i16}, s{s_w}")
    p(f"s_cmp_eq_u32 s{s_b}, 0")
    p("s_cselect_b64 exec, 1, 0")
    p(f"buffer_store_dwordx2 {vr(g.vEp,2)}, v{vE}, {srd(sWS)}, 0 offen offset:768")
    p("s_mov_b64 exec, -1")
    V.free(vE); V.free(vOut)
    for r in vP: V.free(r)
    for b in acc: V.free(b, 16)

def build(cfg):
    g = G(); g.cfg = cfg; g.tail_blocks = []
    g.V = V = Pool(1, 256)
    V.take(1, 1)
    g.vdummy = V.take(255, 1)
    if cfg.stamps: g.vstamp = V.take(254, 1)
    g.ones = V.alloc(4)
    p = Prog()
    prologue(p, g)
    if cfg.stamps:
        p(f"v_mov_b32 v{g.vstamp}, 0")
        p(f"s_memrealtime {sp(s_stamp)}"); p("s_waitcnt lgkmcnt(0)")
        p(f"v_writelane_b32 v{g.vstamp}, s{s_stamp}, 16")
        stamp(p, g, 0)
    if cfg.touch0: touch0_addresses(p, g)
    p1_addresses(p, g)
    if cfg.stamps >= 2: stamp(p, g, 18)
    p("s_waitcnt lgkmcnt(0)")
    if cfg.stamps >= 2: stamp(p, g, 19)
    p.add(make_srd(sX, 4, 2048*512*2)); p.add(make_srd(sWQ, 6, 512*1536*2)); p.add(make_srd(sWO, 8, 512*512*2))
    if cfg.touch0:
        for bit, (sr, nl) in enumerate(((sX, 17), (sWQ, 12), (sWO, 4))):
            if cfg.touch0 & (1 << bit):
                if cfg.tmask: p(f"s_mov_b64 exec, {(1 << nl) - 1}")
                p(f"buffer_load_dword v{g.vdummy}, v{g.vT[bit]}, {srd(sr)}, 0 offen", "touch0")
        if cfg.tmask: p("s_mov_b64 exec, -1")
        for r in g.vT: V.free(r)
    setup = setup_ops(g)
    burst = dma_x(g, 0) + dma_w(g, 0) + dma_w(g, 1)
    if not cfg.small: burst += dma_x(g, 1) + dma_w(g, 2)
    if cfg.xall: burst += dma_x(g, 2) + dma_x(g, 3)
    seps = list(setup)
    per = -(-len(seps) // (len(burst) - 4))
    p.add(pairs_with_sep(burst, seps, per - 1))
    if cfg.stamps >= 2: stamp(p, g, 20)
    p.add(seps)
    phase1(p, g)
    phase1_epilogue(p, g)
    stamp(p, g, 3)
    if cfg.stop_after >= 2: phase2(p, g)
    if cfg.stop_after >= 3: phase3(p, g)
    if cfg.stop_after >= 4: phase4(p, g)
    if cfg.stamps:
        p("s_waitcnt vmcnt(0)")
        stamp(p, g, 15)
        p(f"s_memrealtime {sp(s_stamp)}"); p("s_waitcnt lgkmcnt(0)")
        p(f"v_writelane_b32 v{g.vstamp}, s{s_stamp}, 17")
        p(f"s_lshl_b32 s{s_t0}, s2, 2"); p(f"s_add_u32 s{s_t0}, s{s_t0}, s{s_w}")
        p(f"s_lshl_b32 s{s_t0}, s{s_t0}, 8"); p(f"s_add_u32 s{s_t0}, s{s_t0}, {WS_DBG}")
        p(f"v_lshlrev_b32 v1, 2, v0"); p(f"v_add_u32 v1, s{s_t0}, v1")
        p(f"buffer_store_dword v{g.vstamp}, v1, {srd(sWS)}, 0 offen")
    p.label("L_end")
    p("s_endpgm")
    items, stats = finalize(p)
    body = render(items)
    for q in g.tail_blocks:
        it2, _ = finalize(q)
        body += render(it2)
    body += "L_code_end:\n    s_endpgm\n"
    hdr = open("cdna_kernels/" + NAME + ".s.ref").read().split("; Override launch geometry")[0]
    out = hdr
    out += "; Override launch geometry by editing the next line (default: block=256,\n"
    out += f"; @launch grid=(256,1,1) block=(256,1,1) lds={LDS_SIZE}\n"
    out += '.amdgcn_target "amdgcn-amd-amdhsa--gfx950"\n.text\n'
    out += f".globl {KNAME}\n.p2align 8\n.type {KNAME},@function\n{KNAME}:\n"
    out += body
    out += f'''.section .rodata,"a"
.p2align 6
.amdhsa_kernel {KNAME}
  .amdhsa_next_free_vgpr 512
  .amdhsa_next_free_sgpr 102
  .amdhsa_accum_offset 256
  .amdhsa_group_segment_fixed_size 0
  .amdhsa_kernarg_size 88
  .amdhsa_user_sgpr_count 2
  .amdhsa_user_sgpr_kernarg_segment_ptr 1
  .amdhsa_system_sgpr_workgroup_id_x 1
.end_amdhsa_kernel
'''
    stats["ninstr"] = sum(1 for i in items if i.kind not in ("none", "label")); stats["vhigh"] = V.high
    return out, stats

if __name__ == "__main__":
    cfg = Cfg()
    outp = sys.argv[1]
    for a in sys.argv[2:]:
        k, v = a.split("=")
        setattr(cfg, k, int(v))
    s, st = build(cfg)
    open(outp, "w").write(s)
    print(st)
```

```python
import re

REG_RE = re.compile(r'^(-|abs\()?\s*([vas])(?:\[(\d+):(\d+)\]|(\d+))\)?$')

def parse_reg(tok):
    t = tok.strip()
    if t in ("vcc", "exec", "m0", "scc"):
        return [(t, 0)]
    if t in ("vcc_lo", "vcc_hi"):
        return [("vcc", 0)]
    if t in ("exec_lo", "exec_hi"):
        return [("exec", 0)]
    m = REG_RE.match(t)
    if not m:
        return []
    k = m.group(2)
    if m.group(3) is not None:
        return [(k, i) for i in range(int(m.group(3)), int(m.group(4)) + 1)]
    return [(k, int(m.group(5)))]

def split_ops(s):
    ops, depth, cur = [], 0, ""
    for ch in s:
        if ch in "[(": depth += 1
        if ch in "])": depth -= 1
        if ch == "," and depth == 0:
            ops.append(cur.strip()); cur = ""
        else:
            cur += ch
    if cur.strip(): ops.append(cur.strip())
    return ops

TRANS = ("v_exp_f32", "v_log_f32", "v_rcp_f32", "v_rsq_f32", "v_sqrt_f32", "v_sin_f32", "v_cos_f32")

class Ins:
    __slots__ = ("text", "mn", "ops", "mods", "defs", "uses", "kind", "tag", "passes", "srcc", "srcab", "sdata", "comment")
    def __init__(self, text, tag=None):
        self.text = text.strip()
        self.tag = tag
        self.defs, self.uses = set(), set()
        self.kind = "other"
        self.passes = 0
        self.srcc = set(); self.srcab = set(); self.sdata = set()
        t = self.text.split(";")[0].strip()
        if not t or t.endswith(":") or t.startswith("."):
            self.mn = ""; self.ops = []; self.mods = ""
            self.kind = "label" if t.endswith(":") else "none"
            return
        parts = t.split(None, 1)
        self.mn = mn = parts[0]
        rest = parts[1] if len(parts) > 1 else ""
        ops = split_ops(rest)
        self.mods = ""
        if ops:
            last = ops[-1].split()
            if len(last) > 1 and not mn.startswith("s_waitcnt"):
                ops[-1] = last[0]; self.mods = " ".join(last[1:])
        self.ops = ops
        R = [parse_reg(o) for o in ops]
        D, U = self.defs, self.uses
        def d(i): D.update(R[i])
        def u(*idx):
            for i in idx:
                if i < len(R): U.update(R[i])
        n = len(ops)
        if mn.startswith("v_mfma"):
            self.kind = "mfma"
            self.passes = 8 if "32x32" in mn else 4
            d(0); u(1, 2, 3)
            self.srcab = set(R[1]) | set(R[2]); self.srcc = set(R[3])
        elif mn.startswith("ds_read") or mn.startswith("ds_bpermute") or mn.startswith("ds_swizzle"):
            self.kind = "ds"; d(0); u(*range(1, n))
        elif mn.startswith("ds_write"):
            self.kind = "ds"; u(*range(n))
            for i in range(1, n): self.sdata.update(R[i])
        elif mn.startswith("buffer_load") or mn.startswith("global_load"):
            self.kind = "vm"
            if "lds" in self.mods.split() or mn.startswith("global_load_lds"):
                u(*range(n)); U.add(("m0", 0)); self.kind = "vmdma"
            else:
                d(0); u(*range(1, n))
        elif mn.startswith("buffer_store") or mn.startswith("global_store"):
            self.kind = "vmst"; u(*range(n))
            di = 0 if mn.startswith("buffer_store") else 1
            if "x4" in mn or "x3" in mn: self.sdata = set(R[di])
        elif mn.startswith("buffer_atomic") or mn.startswith("global_atomic"):
            self.kind = "vm"; u(*range(n))
            if "sc0" in self.mods.split(): d(0)
        elif mn in ("buffer_wbl2", "buffer_inv"):
            self.kind = "vmst"
        elif mn.startswith("s_load") or mn.startswith("s_memtime") or mn.startswith("s_memrealtime"):
            self.kind = "smem"; d(0); u(*range(1, n))
        elif mn == "s_waitcnt":
            self.kind = "wait"
        elif mn == "s_nop":
            self.kind = "nop"
        elif mn == "s_barrier":
            self.kind = "barrier"
        elif mn.startswith("s_cbranch") or mn == "s_branch" or mn == "s_endpgm":
            self.kind = "branch"
            if "vcc" in mn: U.add(("vcc", 0))
            if "scc" in mn: U.add(("scc", 0))
            if "exec" in mn: U.add(("exec", 0))
        elif mn.startswith("s_cmp") or mn.startswith("s_bitcmp"):
            self.kind = "salu"; u(*range(n)); D.add(("scc", 0))
        elif mn in ("s_sleep", "s_setprio"):
            self.kind = "salu"
        elif mn.startswith("s_"):
            self.kind = "salu"; d(0); u(*range(1, n))
            if mn.startswith(("s_add", "s_sub", "s_and", "s_or", "s_xor", "s_lshl", "s_lshr", "s_ashr", "s_min", "s_max", "s_andn2", "s_not", "s_bfe", "s_abs")):
                D.add(("scc", 0))
            if mn.startswith(("s_cselect", "s_addc", "s_subb")): U.add(("scc", 0))
            if "saveexec" in mn: D.add(("exec", 0)); U.add(("exec", 0))
        elif mn.startswith("v_"):
            self.kind = "valu"
            if mn.startswith("v_cmp"):
                d(0); u(*range(1, n))
            elif mn.startswith(("v_readfirstlane", "v_readlane")):
                d(0); u(*range(1, n))
            elif mn.startswith("v_permlane"):
                d(0); d(1); u(0, 1)
            elif mn.startswith(("v_fmac", "v_dot2c", "v_writelane")) or "_dpp" in mn:
                d(0); u(*range(n))
            elif mn.startswith(("v_add_co", "v_sub_co", "v_addc_co", "v_subb_co")):
                d(0); d(1); u(*range(2, n))
            elif mn.startswith("v_cndmask"):
                d(0); u(*range(1, n))
                if n == 3: U.add(("vcc", 0))
            else:
                d(0); u(*range(1, n))
            if mn.startswith(TRANS): self.kind = "trans"
        else:
            raise Exception("unknown instruction: " + text)

    def is_valu(self): return self.kind in ("valu", "trans")

class Prog:
    def __init__(self):
        self.items = []
    def __call__(self, text, tag=None):
        for l in text.split("\n"):
            l = l.strip()
            if l: self.items.append(Ins(l, tag))
        return self
    def add(self, lst):
        for x in lst:
            if isinstance(x, str): self(x)
            elif isinstance(x, tuple) and x and x[0] == "I": self(x[1], x[2])
            else: self.items.append(x)
    def label(self, name): self.items.append(Ins(name + ":"))
    def raw(self, text):
        i = Ins(""); i.text = text; i.kind = "none"; self.items.append(i)
    def comment(self, text): self.raw("; " + text)
    def wait_vm(self, tag): self.items.append(("wait_vm", tag))
    def wait_lgkm0(self): self.items.append(("wait_lgkm0",))
    def opt_begin(self): self.items.append(("opt_begin",))
    def opt_end(self): self.items.append(("opt_end",))
    def side_begin(self): self.items.append(("side_begin",))
    def side_end(self): self.items.append(("side_end",))

def T(text, tag):
    return ("I", text, tag)

def insert_waits(items):
    out = []
    vm, lg = [], []
    stack = []
    stats = {"vmmax": 0}
    optdepth = 0
    def younger(i):
        return sum(1 for o in vm[i+1:] if not o.get("opt"))
    def emit_wait(nvm=None, nlg=None, drop_to=None):
        parts = []
        if nvm is not None:
            nvm = min(nvm, 62); parts.append(f"vmcnt({nvm})")
            if drop_to is not None: del vm[:drop_to + 1]
            else: del vm[:max(0, len(vm) - nvm)]
        if nlg is not None:
            nlg = min(nlg, 14); parts.append(f"lgkmcnt({nlg})"); del lg[:max(0, len(lg) - nlg)]
        out.append(Ins("s_waitcnt " + " ".join(parts)))
    for it in items:
        if isinstance(it, tuple):
            if it[0] == "wait_vm":
                tags = it[1] if isinstance(it[1], (list, set, tuple)) else [it[1]]
                idx = max([i for i, o in enumerate(vm) if o["tag"] in tags], default=-1)
                if idx >= 0: emit_wait(nvm=younger(idx), drop_to=idx)
            elif it[0] == "wait_lgkm0":
                if lg: emit_wait(nlg=0)
            elif it[0] == "opt_begin": optdepth += 1
            elif it[0] == "opt_end": optdepth -= 1
            elif it[0] == "assume_vm":
                vm[:] = [{"defs": set(), "tag": t, "kind": "vmdma", "id": -k} for k, t in enumerate(it[1], 1)]
            elif it[0] == "side_begin":
                stack.append(([dict(o) for o in vm], [dict(o) for o in lg]))
            elif it[0] == "side_end":
                svm, slg = stack.pop()
                assert all(any(o["id"] == p["id"] for p in slg) or not o["defs"] for o in lg), "side region left lgkm loads outstanding"
                assert all(any(o["id"] == p["id"] for p in svm) or not o["defs"] for o in vm), "side region left vm loads outstanding"
                vm[:] = svm; lg[:] = slg
            continue
        ins = it
        if ins.kind == "wait":
            m = re.search(r"vmcnt\((\d+)\)", ins.text)
            if m:
                N = int(m.group(1))
                done = [i for i in range(len(vm)) if younger(i) >= N]
                if done: del vm[:max(done) + 1]
            m = re.search(r"lgkmcnt\((\d+)\)", ins.text)
            if m: del lg[:max(0, len(lg) - int(m.group(1)))]
            out.append(ins); continue
        touched = ins.defs | ins.uses
        if touched:
            nvm = nlg = None
            isvm = ins.kind in ("vm",)
            isds = ins.kind == "ds"
            vidx = None
            for i, o in enumerate(vm):
                if o["defs"] & ins.uses or (o["defs"] & ins.defs and not isvm):
                    nvm = younger(i); vidx = i
            smem_pending = any(o["kind"] == "smem" for o in lg)
            for i, o in enumerate(lg):
                if o["defs"] & ins.uses or (o["defs"] & ins.defs and not (isds and o["kind"] == "ds")):
                    nlg = 0 if smem_pending else len(lg) - 1 - i
            if nvm is not None or nlg is not None: emit_wait(nvm, nlg, vidx)
        out.append(ins)
        if ins.kind in ("vm", "vmdma", "vmst"):
            vm.append({"defs": set(ins.defs) if ins.kind == "vm" else set(), "tag": ins.tag, "kind": ins.kind, "id": id(ins), "opt": optdepth > 0})
            stats["vmmax"] = max(stats["vmmax"], len(vm))
        elif ins.kind in ("ds", "smem"):
            lg.append({"defs": set(ins.defs), "tag": ins.tag, "kind": ins.kind, "id": id(ins)})
    return out, stats

def only_v(s): return {r for r in s if r[0] in ("v", "a")}
def only_s(s): return {r for r in s if r[0] in ("s", "vcc")}

def required_gap(p, c):
    g = 0
    pv = only_v(p.defs)
    if p.is_valu():
        if c.kind == "mfma" and pv & c.uses: g = max(g, 2)
        if p.kind == "trans" and c.kind in ("valu",) and pv & c.uses: g = max(g, 1)
        if c.mn.startswith("v_permlane") and pv & c.uses: g = max(g, 2)
        if "_dpp" in c.mn and pv & c.uses: g = max(g, 2)
        if c.mn.startswith(("v_readlane", "v_readfirstlane")) and pv & c.uses: g = max(g, 1)
        ps = only_s(p.defs)
        if ps:
            if c.is_valu() and ps & c.uses: g = max(g, 4 if c.mn.startswith(("v_readlane", "v_writelane")) else 2)
            if c.kind in ("vm", "vmdma", "vmst") and ps & c.uses: g = max(g, 5)
            if c.kind == "salu" and ps & c.uses: g = max(g, 1)
    if p.kind == "mfma":
        P = p.passes
        if c.kind == "mfma":
            if pv & c.srcab: g = max(g, P + 4)
            ov = pv & c.srcc
            if ov:
                if not (only_v(c.srcc) == pv and c.passes == P): g = max(g, P + 2)
            if pv & only_v(c.defs) and not (only_v(c.defs) == pv and c.passes == P and ov): g = max(g, P + 2)
        elif c.is_valu():
            if pv & (c.uses | c.defs): g = max(g, P + 4)
        elif c.kind in ("ds", "vm", "vmdma", "vmst"):
            if pv & (c.uses | c.defs): g = max(g, P + 4)
        if c.is_valu() and only_v(p.srcc) & c.defs: g = max(g, P - 1)
    if p.kind == "salu" and ("m0", 0) in p.defs and c.kind == "vmdma": g = max(g, 1)
    if p.kind in ("vmst",) and p.sdata:
        if c.is_valu() and p.sdata & c.defs: g = max(g, 2)
        elif p.sdata & c.defs: g = max(g, 1)
    return g

def insert_nops(items):
    out = []
    hist = []
    stack = []
    WINDOW = 20
    nnops = 0
    for it in items:
        if isinstance(it, tuple):
            if it[0] == "side_begin": stack.append([[i, d] for i, d in hist])
            elif it[0] == "side_end":
                saved = stack.pop()
                ids = {id(i): k for k, (i, d) in enumerate(hist)}
                for i, d in saved:
                    d2 = d + 1
                    if id(i) in ids: hist[ids[id(i)]][1] = min(hist[ids[id(i)]][1], d2)
                    else: hist.append([i, d2])
            continue
        ins = it
        if ins.kind in ("none", "label"):
            out.append(ins); continue
        need = 0
        for p, d in hist:
            g = required_gap(p, ins)
            if g > d: need = max(need, g - d)
        while need > 0:
            k = min(need, 16)
            out.append(Ins(f"s_nop {k-1}")); nnops += k
            for h in hist: h[1] += k
            need -= k
        out.append(ins)
        st = 1
        if ins.kind == "nop": st = int(ins.ops[0]) + 1
        for h in hist: h[1] += st
        hist = [h for h in hist if h[1] < WINDOW]
        if ins.kind in ("valu", "trans", "mfma", "salu", "vmst"): hist.append([ins, 0])
    return out, nnops

def finalize(prog):
    items = []
    marks = []
    w, stats = insert_waits_keep(prog.items)
    o, nn = insert_nops(w)
    stats["nops"] = nn
    last = None
    for i in o:
        if isinstance(i, tuple) or i.kind in ("none",): continue
        if i.kind == "label": last = None; continue
        if ("scc", 0) in i.uses:
            assert last is None or last.mn.startswith("s_cmp"), f"SCC consumer '{i.text}' fed by '{last.text}'"
        if ("scc", 0) in i.defs: last = i
    return o, stats

def insert_waits_keep(items):
    res = []
    chunk_out = []
    class Mark(Ins):
        pass
    seq = []
    for it in items:
        seq.append(it)
        if isinstance(it, tuple) and it[0] in ("side_begin", "side_end"):
            m = Ins(""); m.kind = "none"; m.text = "@@" + it[0]; seq.append(m)
    out, stats = insert_waits(seq)
    for o in out:
        if o.kind == "none" and o.text.startswith("@@"): res.append((o.text[2:],))
        else: res.append(o)
    return res, stats

def render(items):
    lines = []
    for i in items:
        if i.kind == "label": lines.append(i.text)
        elif i.kind == "none": lines.append(i.text)
        else: lines.append("    " + i.text)
    return "\n".join(lines) + "\n"

def interleave(main, fillers, per_gap):
    out = []
    fi = 0
    for i, m in enumerate(main):
        out.append(m)
        n = per_gap(i) if callable(per_gap) else per_gap
        for _ in range(n):
            if fi < len(fillers): out.append(fillers[fi]); fi += 1
    out.extend(fillers[fi:])
    return out

def spread(main, fillers, start=0, end=None):
    end = len(main) if end is None else end
    n = end - start
    out = list(main[:start])
    k = 0
    for i in range(n):
        out.append(main[start + i])
        tgt = (len(fillers) * (i + 1)) // n
        while k < tgt: out.append(fillers[k]); k += 1
    out.extend(main[end:])
    return out

def zipmerge(*streams):
    out = []
    idx = [0] * len(streams)
    left = sum(len(s) for s in streams)
    while left:
        for k, s in enumerate(streams):
            if idx[k] < len(s): out.append(s[idx[k]]); idx[k] += 1; left -= 1
    return out

class Pool:
    def __init__(self, lo, hi):
        self.free_ = set(range(lo, hi)); self.lo, self.hi = lo, hi; self.high = 0
    def alloc(self, n=1, align=None):
        if align is None: align = 2 if n > 1 else 1
        for b in range(self.lo, self.hi):
            if b % align: continue
            if all((b + i) in self.free_ for i in range(n)):
                for i in range(n): self.free_.discard(b + i)
                self.high = max(self.high, b + n)
                return b
        raise Exception(f"pool exhausted (n={n}, free={len(self.free_)})")
    def take(self, b, n):
        for i in range(n):
            assert (b + i) in self.free_, f"reg {b+i} busy"
            self.free_.discard(b + i)
        self.high = max(self.high, b + n)
        return b
    def free(self, b, n=1):
        for i in range(n):
            assert (b + i) not in self.free_, f"double free {b+i}"
            self.free_.add(b + i)


def spread_pairs(main, pairs, start=0, end=None):
    end = len(main) if end is None else end
    def txt(x):
        if isinstance(x, tuple): return x[1] if x[0] == "I" else ""
        return x.text if isinstance(x, Ins) else x
    full = True; okpos = set()
    for i, x in enumerate(main):
        t = txt(x).strip()
        wr = t.startswith(("s_mov_b64 exec", "s_cselect_b64 exec", "s_mov_b32 exec", "s_and_saveexec"))
        if full and not wr and t and not t.startswith((";", "s_barrier")): okpos.add(i)
        if wr: full = t.endswith("exec, -1")
    pos = [i for i in range(start, end) if i in okpos]
    n = len(pos)
    out = []
    k = 0
    assign = {}
    for q in range(len(pairs)):
        assign.setdefault(pos[min(n - 1, (q * n) // len(pairs))], []).append(pairs[q])
    for i, m in enumerate(main):
        if i in assign:
            lst = assign[i]
            out.extend(lst[0][0]); out.append(m); out.extend(lst[0][1])
            for pre, post in lst[1:]:
                out.extend(pre); out.extend(post)
        else:
            out.append(m)
    return out


def cost(x):
    if isinstance(x, list): return sum(cost(y) for y in x)
    if isinstance(x, tuple):
        if x[0] == "I": t = x[1]
        else: return 0
    elif isinstance(x, Ins): t = x.text
    else: t = x
    mn = t.split()[0]
    if mn.startswith(TRANS) or mn.startswith("v_permlane"): return 2
    return 1

def weave(main, fixed=None, fifo=None, cap=2, start=0, tail=True):
    fixed = fixed or {}
    fifo = list(fifo or [])
    out = []
    k = 0
    for i, m in enumerate(main):
        out.append(m)
        used = 0
        for f in fixed.get(i, []):
            out.append(f); used += cost(f)
        c = cap(i) if callable(cap) else cap
        if i >= start:
            while k < len(fifo) and (used + cost(fifo[k]) <= c or (isinstance(fifo[k], list) and used < c)):
                if isinstance(fifo[k], list): out.extend(fifo[k])
                else: out.append(fifo[k])
                used += cost(fifo[k]); k += 1
    rem = fifo[k:]
    if tail:
        for r in rem:
            if isinstance(r, list): out.extend(r)
            else: out.append(r)
        rem = []
    return out, rem


def atomize_scc(ops):
    out = []; i = 0
    while i < len(ops):
        o = ops[i]
        if isinstance(o, str) and o.startswith("s_cmp"):
            grp = [o]; i += 1
            while i < len(ops) and isinstance(ops[i], str) and ops[i].startswith("s_cselect"):
                grp.append(ops[i]); i += 1
            out.append(grp)
        else:
            out.append(o); i += 1
    return out
```

```python
import sys, math, struct
from core import *

NAME = "sequential_preLN__sliding_local_dilated__dense_activation_gelu__prompt"
KNAME = NAME + "_kernel"

FS      = 2048
WS_O    = 0
WS_H    = 4 << 20
WS_ST   = 8 << 20
WS_FL   = 9 << 20
WS_H1   = 10 << 20
WS_DBG  = 25 << 20
WS_SIZE = 26 << 20
FA0, FB0, FEP = 0, 512, 896

def f2u(x): return struct.unpack("<I", struct.pack("<f", x))[0]
def hx(x): return hex(x & 0xffffffff)
def fl(x): return hx(f2u(x))
C1 = -2.0 * math.sqrt(2.0 / math.pi) * math.log2(math.e)
C2 = C1 * 0.044715

sX, sWQ, sWO, sW1, sW2, sWS, sOUT = 28, 32, 36, 40, 44, 48, 52
sB1, sB2 = 14, 18
s_w, s_xg, s_j, s_rt, s_i16, s_R = 56, 57, 58, 59, 60, 61
s_t0, s_t1, s_t2, s_t3 = 62, 63, 64, 65
s_wl, s_xl0, s_xl2 = 66, 67, 68
s_nh, s_sh, s_i16c = 69, 70, 71
s_cw = 72
s_xs = (80, 85, 90)
s_m1, s_m2, s_m3, s_diag = 72, 74, 76, 78
s_odd, s_va0, s_va1, s_vb0, s_vb1, s_fa0, s_fa1 = 80, 82, 84, 86, 88, 90, 92
s_nonce = 94
s_k32 = 96
s_c4 = 97
s_sv = 98
s_rot = 99
s_stamp = 100
s_a, s_b, s_c, s_d = 4, 5, 6, 7
s_so, s_so2 = 8, 9
s_4k, s_8k, s_12k = 10, 11, 12
s_woG = 13
s_cnt = 16
s_woC = 17
s_b0, s_b1, s_b2, s_wg = 20, 21, 22, 23
s_woAl, s_woCl = 24, 25
def srd(n): return f"s[{n}:{n+3}]"
def sp(n): return f"s[{n}:{n+1}]"
def vr(a, n=1): return f"v{a}" if n == 1 else f"v[{a}:{a+n-1}]"
def ar(a, n=4): return f"a[{a}:{a+n-1}]"

def mask64(fn):
    m = 0
    for l in range(64):
        if fn(l): m |= 1 << l
    return m
def set_mask(s, m):
    return [f"s_mov_b32 s{s}, {hx(m & 0xffffffff)}", f"s_mov_b32 s{s+1}, {hx(m >> 32)}"]

L_X = 0; L_R = 81920; L_M = 159744
L_WA = 131072; L_WB = 81920; L_WC = 106496
L_EX2 = 131072; L_S = 131072
LDS_SIZE = 163840
KPOLL = 64

class Cfg:
    stop_after = 4
    stamps = 0
    rotate = 4
    codepf = 1
    touch = 1
    jshift = 0
    w1a_early = 8
    d3 = 14
    d4 = 7
    capB = 6
    capC = 8
    pktail = 1
    u16 = 1
    crem = 40
    stage = 0
    g1c = 1
    touch_at = 9
    touch_step = 1
    touch_wo = 5
    burst = 0
    latevm = 9
    rt = 0
class G: pass

def stamp(p, g, idx):
    if not g.cfg.stamps: return
    p(f"s_mem{'real' if g.cfg.rt else ''}time {sp(s_stamp)}")
    p("s_waitcnt lgkmcnt(0)")
    p(f"v_writelane_b32 v{g.vstamp}, s{s_stamp}, {idx}")

def make_srd(s, base, nbytes):
    return [f"s_mov_b32 s{s}, s{base}", f"s_and_b32 s{s+1}, s{base+1}, 0xffff",
            f"s_mov_b32 s{s+2}, {nbytes}", f"s_mov_b32 s{s+3}, 0x00020000"]

def frag_lane(p, dst, tmp):
    p(f"v_add_u32 v{tmp}, 40, v0"); p(f"v_bfe_u32 v{tmp}, v{tmp}, 6, 1"); p(f"v_lshlrev_b32 v{tmp}, 7, v{tmp}")
    p(f"v_lshl_add_u32 v{dst}, v0, 4, v{tmp}")

def soff_for(idx):
    so = ["0", f"s{s_4k}", f"s{s_8k}", f"s{s_12k}"][idx >> 1]
    return so, (f" offset:{FS}" if idx & 1 else "")

def m16k32(d, A, B, c): return f"v_mfma_f32_16x16x32_bf16 {vr(d,4)}, {A}, {B}, {c}"
def m16k16(d, A, B, c): return f"v_mfma_f32_16x16x16_bf16 {vr(d,4)}, {vr(A,2)}, {vr(B,2)}, {c}"
def m32(d, A, B, c): return f"v_mfma_f32_32x32x16_bf16 {d}, {A}, {B}, {c}"

def prologue(p, g):
    cfg, V = g.cfg, g.V
    p("s_cmp_ge_u32 s2, 256")
    p("s_cbranch_scc1 L_end")
    p("s_load_dwordx16 s[4:19], s[0:1], 0")
    p("s_load_dwordx4 s[20:23], s[0:1], 64")
    p("s_load_dwordx2 s[24:25], s[0:1], 80")
    p("s_getpc_b64 s[26:27]")
    p.label("L_pc")
    p("v_lshrrev_b32 v1, 6, v0")
    p("v_and_b32 v0, 63, v0")
    p(f"v_readfirstlane_b32 s{s_w}, v1")
    p(f"s_lshr_b32 s{s_t0}, s2, 3")
    if cfg.codepf:
        p(f"s_lshl_b32 s{s_t1}, s{s_t0}, 2")
        p(f"s_add_u32 s{s_t1}, s{s_t1}, s{s_w}")
        p(f"s_lshl_b32 s{s_t1}, s{s_t1}, 8")
        p("v_lshlrev_b32 v1, 2, v0")
        p(f"v_add_u32 v1, s{s_t1}, v1")
        p(f"s_mov_b32 s{s_t1}, L_code_end-L_pc-4")
        p(f"v_min_u32 v1, s{s_t1}, v1")
        p(f"global_load_dword v{g.vdummy}, v1, s[26:27]")
    p(f"s_and_b32 s{s_xg}, s2, 7")
    if cfg.jshift:
        p(f"s_add_u32 s{s_j}, s{s_t0}, {cfg.jshift}"); p(f"s_and_b32 s{s_j}, s{s_j}, 7")
        p(f"s_and_b32 s{s_i16}, s{s_t0}, 8"); p(f"s_or_b32 s{s_i16}, s{s_i16}, s{s_j}")
    else:
        p(f"s_and_b32 s{s_j}, s{s_t0}, 7")
        p(f"s_and_b32 s{s_i16}, s{s_t0}, 15")
    p(f"s_lshr_b32 s{s_c4}, s{s_t0}, 3")
    p(f"s_lshl_b32 s{s_rt}, s{s_xg}, 2")
    p(f"s_add_u32 s{s_rt}, s{s_rt}, s{s_c4}")
    p(f"s_lshr_b32 s{s_R}, s{s_rt}, 1")
    p(f"s_lshr_b32 s{s_nh}, s{s_w}, 1"); p(f"s_and_b32 s{s_sh}, s{s_w}, 1")
    if cfg.rotate == 2:
        p(f"s_lshl_b32 s{s_rot}, s{s_c4}, 1"); p(f"s_add_u32 s{s_rot}, s{s_rot}, s{s_j}"); p(f"s_add_u32 s{s_rot}, s{s_rot}, s{s_xg}")
        p(f"s_and_b32 s{s_rot}, s{s_rot}, 7")
    elif cfg.rotate == 3:
        p(f"s_lshl_b32 s{s_rot}, s{s_c4}, 1"); p(f"s_add_u32 s{s_rot}, s{s_rot}, s{s_xg}")
        p(f"s_and_b32 s{s_rot}, s{s_rot}, 7")
    elif cfg.rotate == 4:
        p(f"s_lshl_b32 s{s_rot}, s{s_c4}, 1"); p(f"s_cmp_eq_u32 s{s_j}, 3"); p(f"s_cselect_b32 s{s_rot}, s{s_rot}, 0")
        p(f"s_add_u32 s{s_rot}, s{s_rot}, s{s_xg}"); p(f"s_and_b32 s{s_rot}, s{s_rot}, 7")
    elif cfg.rotate == 1: p(f"s_mov_b32 s{s_rot}, s{s_xg}")
    else: p(f"s_mov_b32 s{s_rot}, 0")
    rot = f"s{s_rot}"
    for i in range(8):
        p(f"s_add_u32 s{s_t0}, {rot}, {i}")
        p(f"s_and_b32 s{s_t0}, s{s_t0}, 7")
        p(f"s_mul_i32 s{s_cw+i}, s{s_t0}, 196608")

def xgroup_sregs(gi, st):
    b = s_xs[st]; P = s_t2
    o = [f"s_lshr_b32 s{s_t3}, s{s_j}, 1"]
    if gi == 0: o += [f"s_mov_b32 s{P}, 0"]
    elif gi == 1: o += [f"s_max_u32 s{P}, s{s_t3}, 1"]
    elif gi == 2: o += [f"s_cmp_le_u32 s{s_t3}, 1", f"s_cselect_b32 s{P}, 2, 1"]
    else: o += [f"s_cmp_eq_u32 s{s_t3}, 3", f"s_cselect_b32 s{P}, 2, 3"]
    o += [f"s_mul_i32 s{s_t3}, s{P}, 20480",
          f"s_add_u32 s{b}, s{s_xl0}, s{s_t3}", f"s_add_u32 s{b+1}, s{s_xl2}, s{s_t3}",
          f"s_lshl_b32 s{P}, s{P}, 1", f"s_add_u32 s{P}, s{P}, s{s_rot}",
          f"s_and_b32 s{s_t3}, s{P}, 7", f"s_lshl_b32 s{b+2}, s{s_t3}, 7",
          f"s_add_u32 s{P}, s{P}, 1", f"s_and_b32 s{s_t3}, s{P}, 7", f"s_lshl_b32 s{b+3}, s{s_t3}, 7",
          f"s_cmp_eq_u32 s{s_nh}, 0", f"s_cselect_b32 s{b+4}, s{b+2}, s{b+3}"]
    return o

def p1_addresses(p, g):
    V = g.V
    a = g.p1a = {k: V.alloc() for k in ["Wd0", "Wd1", "X0", "X1", "X2", "Xr0", "Xr1", "Ow0", "Ow1", "Hal", "Wr", "Wr2"]}
    t0, t1, t2, t3, t4 = t = [V.alloc() for _ in range(5)]
    p(f"v_lshrrev_b32 v{t0}, 3, v0")
    p(f"s_lshl_b32 s{s_t0}, s{s_w}, 4")
    p(f"v_add_u32 v{t1}, s{s_t0}, v{t0}")
    p(f"v_mul_u32_u24 v{t1}, 3072, v{t1}")
    p(f"v_bfe_u32 v{t2}, v0, 1, 2")
    p(f"v_bfe_u32 v{t3}, v0, 4, 1")
    p(f"v_xor_b32 v{t2}, v{t2}, v{t3}")
    p(f"v_lshlrev_b32 v{t2}, 5, v{t2}")
    p(f"v_and_b32 v{t3}, 1, v0")
    p(f"v_lshlrev_b32 v{t3}, 4, v{t3}")
    p(f"v_add3_u32 v{t1}, v{t1}, v{t2}, v{t3}")
    p(f"s_lshl_b32 s{s_t1}, s{s_j}, 7")
    p(f"v_add_u32 v{a['Wd0']}, s{s_t1}, v{t1}")
    p(f"v_xor_b32 v{a['Wd1']}, 64, v{a['Wd0']}")
    p(f"v_add_u32 v{a['Wd1']}, {8*3072}, v{a['Wd1']}")
    p(f"s_lshl_b32 s{s_wl}, s{s_w}, 11")
    p(f"s_add_u32 s{s_wl}, s{s_wl}, {L_R}")
    p(f"s_lshl_b32 s{s_t1}, s{s_sh}, 2")
    p(f"v_lshrrev_b32 v{t1}, 4, v0")
    p(f"v_add_u32 v{t1}, s{s_t1}, v{t1}")
    p(f"v_and_b32 v{t2}, 7, v0")
    p(f"v_xor_b32 v{t1}, v{t1}, v{t2}")
    p(f"v_lshlrev_b32 v{t1}, 4, v{t1}")
    p(f"v_lshl_add_u32 v{t1}, v{t0}, 10, v{t1}")
    p(f"s_lshl_b32 s{s_t1}, s{s_rt}, 6")
    p(f"s_lshl_b32 s{s_t2}, s{s_w}, 3")
    p(f"s_add_u32 s{s_t2}, s{s_t1}, s{s_t2}")
    p(f"s_sub_i32 s{s_t3}, s{s_t2}, 16")
    p(f"s_max_i32 s{s_t3}, s{s_t3}, 0")
    p(f"s_lshl_b32 s{s_t3}, s{s_t3}, 10")
    p(f"v_add_u32 v{a['X0']}, s{s_t3}, v{t1}")
    p(f"s_add_u32 s{s_t3}, s{s_t2}, 16")
    p(f"s_lshl_b32 s{s_t3}, s{s_t3}, 10")
    p(f"v_add_u32 v{a['X1']}, s{s_t3}, v{t1}")
    p(f"s_lshl_b32 s{s_t2}, s{s_sh}, 3")
    p(f"s_add_u32 s{s_t3}, s{s_t1}, s{s_t2}")
    p(f"s_add_u32 s{s_t3}, s{s_t3}, 48")
    p(f"s_lshl_b32 s{s_t3}, s{s_t3}, 10")
    p(f"v_add_u32 v{a['X2']}, s{s_t3}, v{t1}")
    p(f"s_lshl_b32 s{s_xl0}, s{s_w}, 10")
    p(f"s_mul_i32 s{s_xl2}, s{s_nh}, 10240")
    p(f"s_lshl_b32 s{s_t2}, s{s_sh}, 10")
    p(f"s_add_u32 s{s_xl2}, s{s_xl2}, s{s_t2}")
    p(f"s_add_u32 s{s_xl2}, s{s_xl2}, 8192")
    p(f"v_and_b32 v{t0}, 15, v0")
    p(f"v_lshrrev_b32 v{t1}, 4, v0")
    p(f"v_lshrrev_b32 v{t2}, 1, v{t0}")
    p(f"v_xor_b32 v{t2}, v{t2}, v{t1}")
    p(f"v_lshlrev_b32 v{t2}, 4, v{t2}")
    p(f"v_lshl_add_u32 v{a['Xr0']}, v{t0}, 7, v{t2}")
    p(f"v_xor_b32 v{a['Xr1']}, 64, v{a['Xr0']}")
    p(f"s_add_u32 s{s_t2}, s{s_w}, 1")
    p(f"s_lshl_b32 s{s_t2}, s{s_t2}, 11")
    p(f"v_add_u32 v{a['Ow0']}, s{s_t2}, v{a['Xr0']}")
    p(f"v_add_u32 v{a['Ow1']}, s{s_t2}, v{a['Xr1']}")
    p(f"s_lshl_b32 s{s_t2}, s{s_sh}, 6")
    p(f"v_xor_b32 v{a['Hal']}, s{s_t2}, v{a['Xr0']}")
    p(f"s_mul_i32 s{s_t2}, s{s_nh}, 10240")
    p(f"v_add_u32 v{a['Hal']}, s{s_t2}, v{a['Hal']}")
    p(f"v_lshrrev_b32 v{t2}, 2, v{t0}")
    p(f"v_lshl_add_u32 v{t2}, v{t1}, 3, v{t2}")
    p(f"v_lshlrev_b32 v{t2}, 7, v{t2}")
    p(f"v_bfe_u32 v{t3}, v0, 3, 1")
    p(f"v_bfe_u32 v{t4}, v0, 4, 1")
    p(f"v_lshl_add_u32 v{t3}, v{t4}, 1, v{t3}")
    p(f"v_xor_b32 v{t3}, s{s_w}, v{t3}")
    p(f"v_lshl_add_u32 v{t2}, v{t3}, 5, v{t2}")
    p(f"v_and_b32 v{t3}, 3, v0")
    p(f"v_lshl_add_u32 v{t2}, v{t3}, 3, v{t2}")
    p(f"v_add_u32 v{a['Wr']}, {L_R}, v{t2}")
    p(f"v_add_u32 v{a['Wr2']}, 49152, v{a['Wr']}")
    for r in t: V.free(r)

def dma_w(g, i):
    a = g.p1a; out = []
    slot = i % 3
    for X in range(3):
        for e in range(2):
            off = f" offset:{X*1024}" if X else ""
            out.append((f"s_add_u32 m0, s{s_wl}, {slot*24576 + X*7168 + e*1024}",
                        T(f"buffer_load_dwordx4 v{a['Wd%d' % e]}, {srd(sWQ)}, s{s_cw+i} offen{off} lds", f"W{i}")))
    return out

def dma_x(g, gi, st):
    a = g.p1a; b = s_xs[st]; tag = f"G{gi}"
    out = []
    for ii in range(2):
        out.append((f"s_add_u32 m0, s{b}, {L_X + ii*10240}", T(f"buffer_load_dwordx4 v{a['X0']}, {srd(sX)}, s{b+2+ii} offen lds", tag)))
        out.append((f"s_add_u32 m0, s{b}, {L_X + ii*10240 + 4096}", T(f"buffer_load_dwordx4 v{a['X1']}, {srd(sX)}, s{b+2+ii} offen lds", tag)))
    out.append((f"s_mov_b32 m0, s{b+1}", T(f"buffer_load_dwordx4 v{a['X2']}, {srd(sX)}, s{b+4} offen lds", tag)))
    return out

def pairs_with_sep(pairs, seps, after=2):
    out = []
    for pre, dma in pairs:
        pre = pre if isinstance(pre, list) else [pre]
        out += pre
        if len(pre) == 1 and seps: out.append(seps.pop(0))
        out.append(dma)
        for _ in range(after):
            if seps: out.append(seps.pop(0))
    return out

def fifo_pairs(pairs):
    out = []
    for pre, dma in pairs:
        out += pre if isinstance(pre, list) else [pre]
        out += dma if isinstance(dma, list) else [dma]
    return out

def dma_group(regs, sr, m0expr, soexpr, n, tag, so):
    pre = [m0expr, soexpr]
    out = []
    for e in range(n):
        off = f" offset:{e*1024}" if e else ""
        ins = T(f"buffer_load_dwordx4 v{regs[e]}, {srd(sr)}, s{so} offen{off} lds", tag)
        out.append((pre if e == 0 else [], ins))
    return out

def wo_piece(g, which):
    out = []
    if which < 2:
        for q0, n in ((0, 4), (4, 2)):
            out += dma_group(g.vW2e, sWO, f"s_add_u32 m0, s{s_woAl}, {(L_WA, L_WB)[which] - L_WA + q0*1024}",
                             f"s_add_u32 s{s_so}, s{s_woG}, {which*96*1024 + q0*8192}", n, "wo", s_so)
    else:
        out += dma_group(g.vW2e, sWO, f"s_mov_b32 m0, s{s_woCl}", f"s_mov_b32 s{s_so}, s{s_woC}", 4, "wo", s_so)
    return out

def w1_dma(g, half, us):
    out = []
    us = list(us)
    for u0 in us[::4]:
        out += dma_group(g.vW1e, sW1, f"s_add_u32 m0, s{s_b1}, {half*65536 + u0*1024}", f"s_mov_b32 s{s_so2}, {u0*8*3584 + half*128}", 4,
                         "w1a" if half == 0 else "w1b", s_so2)
    return out

def w2_slot(s):
    if s < 3: return (0, s * 2048)
    if s < 11: return (1, (s - 3) * 2048)
    return (2, (s - 11) * 2048)

def w2_dma_to(g, u, slot, n=1):
    grp, off = w2_slot(slot)
    sb = (s_b0, s_b1, s_b2)[grp]
    res = dma_group(g.vW2e, sW2, f"s_add_u32 m0, s{sb}, {off}", f"s_add_u32 s{s_so}, s{s_wg}, {16*u*1024}", 2*n, None, s_so)
    return [(pre, T(ins[1], f"w2_{u + e//2}")) for e, (pre, ins) in enumerate(res)]

def w2_range(g, u0, slot0, count):
    out = []
    for k_ in range(0, count, 2): out += w2_dma_to(g, u0 + k_, slot0 + k_, min(2, count - k_))
    return out

def setup_ops(g):
    V = g.V; cfg = g.cfg
    p = Prog()
    for s, b, n in ((sWS, 24, WS_SIZE), (sWO, 8, 512*512*2), (sW1, 12, 512*1792*2), (sW2, 16, 1792*512*2), (sOUT, 20, 2048*512*2)):
        p.add(make_srd(s, b, n))
    p(f"s_lshr_b32 s{s_a}, s{s_i16}, 3"); p(f"s_mul_i32 s{s_a}, s{s_a}, 7"); p(f"s_add_u32 s{s_i16c}, s{s_a}, s{s_j}")
    p(f"s_add_u32 s{s_a}, s{s_j}, 4"); p(f"s_lshr_b32 s{s_a}, s{s_a}, 3")
    p(f"s_sub_u32 s{s_i16c}, s{s_i16c}, s{s_a}")
    p(f"s_mov_b32 s{s_4k}, 4096"); p(f"s_mov_b32 s{s_8k}, 8192"); p(f"s_mov_b32 s{s_12k}, 12288"); p(f"s_mov_b32 s{s_k32}, 65536")
    p(f"s_lshl_b32 s{s_woG}, s{s_nh}, 8"); p(f"s_mul_i32 s{s_a}, s{s_sh}, 48"); p(f"s_add_u32 s{s_woG}, s{s_woG}, s{s_a}"); p(f"s_lshl_b32 s{s_woG}, s{s_woG}, 10")
    p(f"s_lshl_b32 s{s_woC}, s{s_nh}, 8"); p(f"s_lshl_b32 s{s_a}, s{s_sh}, 5"); p(f"s_add_u32 s{s_woC}, s{s_woC}, s{s_a}"); p(f"s_add_u32 s{s_woC}, s{s_woC}, 192"); p(f"s_lshl_b32 s{s_woC}, s{s_woC}, 10")
    p(f"s_mul_i32 s{s_woAl}, s{s_w}, 6144"); p(f"s_add_u32 s{s_woAl}, s{s_woAl}, {L_WA}")
    p(f"s_lshl_b32 s{s_woCl}, s{s_w}, 12"); p(f"s_add_u32 s{s_woCl}, s{s_woCl}, {L_WC}")
    p(f"s_mul_i32 s{s_b0}, s{s_w}, 7168"); p(f"s_add_u32 s{s_b0}, s{s_b0}, {L_S}")
    p(f"s_lshl_b32 s{s_b1}, s{s_w}, 14"); p(f"s_add_u32 s{s_b2}, s{s_b1}, 65536")
    p(f"s_mul_i32 s{s_wg}, s{s_w}, {448*1024}")
    g.vW1e = [V.alloc() for _ in range(4)]; g.vW2e = [V.alloc() for _ in range(4)]
    g.vW1d, g.vW2d = g.vW1e[0], g.vW2e[0]
    t0, t1, t2 = V.alloc(), V.alloc(), V.alloc()
    p(f"v_and_b32 v{t0}, 7, v0")
    p(f"v_lshrrev_b32 v{t1}, 2, v{t0}")
    p(f"v_bfe_u32 v{t2}, v0, 4, 1")
    p(f"v_xor_b32 v{t1}, v{t1}, v{t2}")
    p(f"v_and_b32 v{t0}, 3, v{t0}")
    p(f"v_lshl_add_u32 v{t0}, v{t1}, 2, v{t0}")
    p(f"v_lshlrev_b32 v{t0}, 4, v{t0}")
    p(f"v_lshrrev_b32 v{t1}, 3, v0")
    p(f"v_lshl_add_u32 v{t2}, v{t1}, 10, v{t0}")
    p(f"s_lshl_b32 s{s_a}, s{s_j}, 7")
    p(f"v_add_u32 v{g.vW2d}, s{s_a}, v{t2}")
    p(f"v_mul_u32_u24 v{t1}, 3584, v{t1}")
    p(f"v_add_u32 v{t1}, v{t1}, v{t0}")
    p(f"s_mul_i32 s{s_a}, s{s_w}, {16*8*3584}")
    p(f"s_lshl_b32 s{s_b}, s{s_i16c}, 8")
    p(f"s_add_u32 s{s_a}, s{s_a}, s{s_b}")
    p(f"v_add_u32 v{g.vW1d}, s{s_a}, v{t1}")
    for e in range(1, 4):
        p(f"v_add_u32 v{g.vW1e[e]}, {e*(8*3584 - 1024)}, v{g.vW1d}")
        p(f"v_add_u32 v{g.vW2e[e]}, {e*(8192 - 1024)}, v{g.vW2d}")
    g.vFl = V.alloc(); g.vMyFl = V.alloc(); g.vEp = V.alloc(2)
    p(f"s_lshl_b32 s{s_a}, s{s_R}, 10")
    p(f"s_add_u32 s{s_a}, s{s_a}, {WS_FL}")
    p(f"v_and_b32 v{t0}, 15, v0")
    p(f"v_lshlrev_b32 v{t0}, 3, v{t0}")
    p(f"v_add_u32 v{g.vFl}, s{s_a}, v{t0}")
    p(f"s_lshl_b32 s{s_b}, s{s_i16}, 3")
    p(f"s_add_u32 s{s_b}, s{s_b}, s{s_a}")
    p(f"v_mov_b32 v{g.vMyFl}, s{s_b}")
    late = g.late_vm = []; g.late_regs = []
    def keep():
        r = V.alloc(); g.late_regs.append(r); return r
    r = keep()
    p(f"v_mov_b32 v{r}, s{s_a}")
    late.append(T(f"buffer_load_dwordx2 {vr(g.vEp,2)}, v{r}, {srd(sWS)}, 0 offen offset:{FEP} sc1", "ep"))
    r = keep()
    p(f"v_min_u32 v{r}, 2, v0")
    p(f"v_lshlrev_b32 v{r}, 7, v{r}")
    p(f"v_add_u32 v{r}, s{s_a}, v{r}")
    late.append(T(f"buffer_load_dword v{g.vdummy}, v{r}, {srd(sWS)}, 0 offen", "warm"))
    g.vB1 = V.alloc(4); g.vB2 = V.alloc(8)
    g.touches = {}
    if cfg.touch:
        ra, rb, rc = keep(), keep(), keep()
        p(f"s_lshl_b32 s{s_a}, s2, 2"); p(f"s_add_u32 s{s_a}, s{s_a}, s{s_w}")
        p(f"v_lshlrev_b32 v{rc}, 4, v0")
        p(f"s_mul_i32 s{s_b}, s{s_a}, 1792"); p(f"v_add_u32 v{rb}, s{s_b}, v{rc}")
        p(f"s_lshl_b32 s{s_b}, s{s_a}, 9"); p(f"v_add_u32 v{ra}, s{s_b}, v{rc}")
        p(f"v_mov_b32 v{t2}, 0x7ffffff0")
        p(f"v_cmp_gt_u32 vcc, 32, v0"); p(f"v_add_u32 v{rc}, 1024, v{rb}"); p(f"s_nop 0"); p(f"v_cndmask_b32 v{ra}, v{t2}, v{ra}, vcc")
        p(f"v_cmp_gt_u32 vcc, 48, v0"); p(f"s_nop 1"); p(f"v_cndmask_b32 v{rc}, v{t2}, v{rc}, vcc")
        D4 = vr(g.vdummy, 4)
        def tl(sr, r): return [T(f"buffer_load_dwordx4 {D4}, v{r}, {srd(sr)}, 0 offen", "touch")]
        t = cfg.touch_at
        st_ = cfg.touch_step
        g.touches = {}
        for q_, ops_ in enumerate((tl(sW1, rb), tl(sW1, rc), tl(sW2, rb), tl(sW2, rc))): g.touches.setdefault(t + q_*st_, []).extend(ops_)
        g.touches.setdefault(cfg.touch_wo, []).extend(tl(sWO, ra))
    r = keep()
    p(f"v_and_b32 v{r}, 31, v0")
    p(f"v_lshlrev_b32 v{r}, 1, v{r}")
    p(f"s_lshl_b32 s{s_a}, s{s_i16c}, 8")
    p(f"v_add_u32 v{r}, s{s_a}, v{r}")
    for nt in range(4):
        late.append(T(f"global_load_ushort v{g.vB1+nt}, v{r}, {sp(sB1)} offset:{nt*64}", "b1"))
    r = keep()
    p(f"v_lshrrev_b32 v{r}, 5, v0")
    p(f"v_lshlrev_b32 v{r}, 3, v{r}")
    p(f"s_lshl_b32 s{s_a}, s{s_j}, 7")
    p(f"s_lshl_b32 s{s_b}, s{s_nh}, 6")
    p(f"s_add_u32 s{s_a}, s{s_a}, s{s_b}")
    p(f"v_add_u32 v{r}, s{s_a}, v{r}")
    for q in range(4):
        late.append(T(f"global_load_dwordx2 {vr(g.vB2+2*q,2)}, v{r}, {sp(sB2)} offset:{q*16}", "b2"))
    E = g.e1 = {}
    for k in ("NEG", "SelLo", "SelHi", "C512", "A1", "A2", "A3", "O", "O1"): E[k] = V.alloc()
    E["C8"] = V.alloc(2); E["XR"] = V.alloc(4)
    p(f"v_mov_b32 v{E['NEG']}, 0xff800000")
    p(f"v_and_b32 v{t0}, 1, v0")
    p(f"v_cmp_eq_u32 vcc, 1, v{t0}")
    p(f"v_mov_b32 v{E['SelLo']}, 0x0c0c0100"); p(f"v_mov_b32 v{t1}, 0x01000c0c")
    p(f"v_cndmask_b32 v{E['SelLo']}, v{E['SelLo']}, v{t1}, vcc")
    p(f"v_mov_b32 v{E['SelHi']}, 0x0c0c0302"); p(f"v_mov_b32 v{t1}, 0x03020c0c")
    p(f"v_cndmask_b32 v{E['SelHi']}, v{E['SelHi']}, v{t1}, vcc")
    p(f"v_mov_b32 v{E['C512']}, {fl(1/512)}")
    p(f"v_mov_b32 v{E['C8']}, 0x3e003e00"); p(f"v_mov_b32 v{E['C8']+1}, 0x3e003e00")
    p(f"v_and_b32 v{E['A3']}, 15, v0"); p(f"v_lshlrev_b32 v{E['A3']}, 3, v{E['A3']}"); p(f"v_add_u32 v{E['A3']}, {L_M}, v{E['A3']}")
    p(f"s_add_u32 s{s_a}, s{s_w}, 1"); p(f"s_lshl_b32 s{s_a}, s{s_a}, 7"); p(f"v_add_u32 v{E['A1']}, s{s_a}, v{E['A3']}")
    p(f"s_lshl_b32 s{s_a}, s{s_w}, 7"); p(f"s_add_u32 s{s_a}, s{s_a}, 1024"); p(f"v_add_u32 v{E['A2']}, s{s_a}, v{E['A3']}")
    p(f"v_and_b32 v{t0}, 15, v0"); p(f"v_bfe_u32 v{t1}, v0, 5, 1"); p(f"v_mul_u32_u24 v{t1}, 640, v{t1}")
    p(f"v_lshl_add_u32 v{t1}, v{t0}, 4, v{t1}"); p(f"v_bfe_u32 v{t2}, v0, 4, 1"); p(f"v_lshl_add_u32 v{t1}, v{t2}, 3, v{t1}")
    p(f"s_lshl_b32 s{s_a}, s{s_j}, 2"); p(f"s_add_u32 s{s_a}, s{s_a}, s{s_w}"); p(f"s_lshl_b32 s{s_a}, s{s_a}, 11")
    p(f"s_lshl_b32 s{s_b}, s{s_rt}, 17"); p(f"s_add_u32 s{s_a}, s{s_a}, s{s_b}")
    p(f"v_add_u32 v{E['O']}, s{s_a}, v{t1}")
    p(f"v_bfe_u32 v{t0}, v0, 3, 1"); p(f"v_bfe_u32 v{t2}, v0, 5, 1"); p(f"v_xor_b32 v{t2}, 1, v{t2}"); p(f"v_and_b32 v{t0}, v{t0}, v{t2}")
    p(f"v_lshlrev_b32 v{t0}, 7, v{t0}"); p(f"v_add_u32 v{t0}, 256, v{t0}"); p(f"v_add_u32 v{E['O1']}, v{E['O']}, v{t0}")
    p(f"s_lshl_b32 s{s_a}, s{s_sh}, 5"); p(f"s_add_u32 s{s_a}, s{s_a}, 16")
    p(f"v_and_b32 v{t0}, 31, v0"); p(f"v_add_u32 v{t0}, s{s_a}, v{t0}")
    p(f"v_bfe_u32 v{t1}, v{t0}, 1, 3")
    p(f"s_lshl_b32 s{s_b}, s{s_nh}, 2"); p(f"v_xor_b32 v{t1}, s{s_b}, v{t1}")
    p(f"s_sub_u32 s{s_c}, s{s_j}, s{s_rot}"); p(f"s_and_b32 s{s_c}, s{s_c}, 7")
    p(f"s_mul_i32 s{s_c}, s{s_c}, 10240")
    p(f"v_lshrrev_b32 v{t2}, 5, v0"); p(f"v_lshlrev_b32 v{t2}, 3, v{t2}")
    p(f"v_lshl_add_u32 v{t2}, v{t0}, 7, v{t2}"); p(f"v_add_u32 v{t2}, s{s_c}, v{t2}")
    for q in range(4):
        p(f"v_xor_b32 v{t0}, {q}, v{t1}")
        p(f"v_lshl_add_u32 v{E['XR']+q}, v{t0}, 4, v{t2}")
    for r in (t0, t1, t2): V.free(r)
    for r in range(4): p(f"v_mov_b32 v{g.ones+r}, 0x3f803f80")
    return p.items

def phase1(p, g):
    V = g.V; a = g.p1a; ones = g.ones
    FB = [V.alloc(36), V.alloc(36)]
    def fx(b, t): return FB[b] + 4 * t
    def fw(b, X): return FB[b] + 24 + 4 * X
    hal = V.alloc(4)
    Q = {t: V.alloc(4) for t in range(1, 5)}
    K = {t: V.alloc(4) for t in range(5)}
    Vv = {t: V.alloc(4) for t in range(5)}
    cs = [V.alloc(4) for _ in range(3)]
    sumO, gramO, sumH, gramH = (V.alloc(4) for _ in range(4))
    g.xres = xres = V.alloc(8)
    E = g.e1

    def reads(n):
        i, s_ = n >> 1, n & 1
        b = n & 1
        xo = (i * 10240 if i < 6 else (i - 6) * 10240)
        slot = i % 3
        wreg, wo = (a['Wr'], slot * 24576) if slot < 2 else (a['Wr2'], 0)
        xr, ow = a['Xr%d' % s_], a['Ow%d' % s_]
        def wr(X): return [f"ds_read_b64_tr_b16 {vr(fw(b, X) + 2*rd, 2)}, v{wreg} offset:{wo + X*8192 + s_*4096 + rd*512}" for rd in range(2)]
        out = wr(1)
        out += [f"ds_read_b128 {vr(fx(b, t), 4)}, v{xr} offset:{xo + t*2048}" for t in range(5)]
        out += wr(2) + wr(0)
        out += [f"ds_read_b128 {vr(fx(b, 5), 4)}, v{ow} offset:{xo}"]
        return out
    O4 = vr(ones, 4)
    def mf(d, A, B, first): return m16k32(d, A, B, "0" if first else vr(d, 4))
    def mfmas(n):
        b = n & 1; f = n == 0
        x = lambda t: vr(fx(b, t), 4); w = lambda X: vr(fw(b, X), 4)
        out = [mf(K[t], w(1), x(t), f) for t in range(5)]
        out.append(mf(cs[1], O4, w(1), f))
        out += [mf(Vv[t], x(t), w(2), f) for t in range(5)]
        out.append(mf(cs[2], O4, w(2), f))
        out += [mf(Q[t], w(0), x(t), f) for t in range(1, 5)]
        out.append(mf(cs[0], O4, w(0), f))
        out.append(mf(sumO, O4, x(5), f))
        out.append(mf(gramO, x(5), x(5), f))
        return out
    masks = []
    masks += set_mask(s_m1, mask64(lambda l: (l & 3) == 1)) + set_mask(s_m2, mask64(lambda l: (l & 3) == 2)) + set_mask(s_m3, mask64(lambda l: (l & 3) == 3))
    masks += set_mask(s_diag, mask64(lambda l: (l >> 4) == ((l & 15) >> 2))) + set_mask(s_odd, mask64(lambda l: l & 1))
    masks += set_mask(s_va0, mask64(lambda l: 4*(l >> 4) + (l & 1) >= (l & 15) + 2))
    masks += set_mask(s_va1, mask64(lambda l: 4*(l >> 4) + (l & 1) + 2 >= (l & 15) + 2))
    masks += set_mask(s_vb0, mask64(lambda l: 4*(l >> 4) + (l & 1) <= (l & 15)))
    masks += set_mask(s_vb1, mask64(lambda l: 4*(l >> 4) + (l & 1) + 2 <= (l & 15)))
    masks += [f"s_cmp_eq_u32 s{s_rt}, 0", f"s_cselect_b64 {sp(s_fa0)}, 0, {sp(s_va0)}", f"s_cselect_b64 {sp(s_fa1)}, 0, {sp(s_va1)}"]

    p.wait_vm(["G0", "W0"]); p("s_barrier")
    stamp(p, g, 1)
    p.add(reads(0))
    for n in range(16):
        i, s_ = n >> 1, n & 1
        if s_ == 1 and i < 7:
            tags = [f"W{i+1}"] + {1: ["G1", "G2"], 3: ["G3"]}.get(i, [])
            p.wait_lgkm0(); p.wait_vm(tags); p("s_barrier")
            if g.cfg.stamps >= 2: stamp(p, g, 22 + i)
        else:
            p.wait_lgkm0()
        m = mfmas(n)
        rd = []
        if n == 11: rd += [f"v_add_u32 v{a[k]}, 61440, v{a[k]}" for k in ("Xr0", "Xr1", "Ow0", "Ow1")]
        if n < 15: rd += reads(n + 1)
        if n % 4 == 2:
            pr = n // 4
            if pr == 3: rd.append(f"v_add_u32 v{a['Hal']}, 61440, v{a['Hal']}")
            rd.append(f"ds_read_b128 {vr(hal,4)}, v{a['Hal']} offset:{pr * 20480 if pr < 3 else 0}")
        if n % 4 == 3:
            m.append(mf(sumH, O4, vr(hal, 4), n == 3)); m.append(mf(gramH, vr(hal, 4), vr(hal, 4), n == 3))
        dm = []
        if s_ == 1 and i + 3 < 8: dm = dma_w(g, i + 3)
        if n == 0:
            if g.cfg.burst == 0: dm = dma_x(g, 2, 2) + dma_w(g, 2)
            if g.cfg.burst == 1: dm = dma_w(g, 1) + dma_w(g, 2) + dma_x(g, 2, 2)
            if g.cfg.burst == 2: dm = dma_w(g, 1) + dma_x(g, 1, 1) + dma_w(g, 2)
        if n == 1 and g.cfg.burst == 2: dm = dma_x(g, 2, 2) + dm
        if n == 2: dm = dma_x(g, 3, 0)
        if n == 11 and g.cfg.stop_after >= 2: dm = wo_piece(g, 0)
        if n == 13 and g.cfg.stop_after >= 2: dm = wo_piece(g, 1)
        extra = []
        if n == 1: extra = xgroup_sregs(3, 0)
        if n == g.cfg.latevm + 1:
            extra = extra + list(g.late_vm)
        if n == 12: extra = extra + masks[:16]
        if n == 14:
            extra = masks[16:] + [f"ds_read_b64 {vr(xres + 2*q, 2)}, v{E['XR']+q} offset:{L_X}" for q in range(4)]
        fixed = {}
        for k, r in enumerate(rd): fixed.setdefault(min(k, len(m) - 4), []).append(r)
        ng = len(m) - 1
        for k, (pre, dma) in enumerate(dm):
            gk = min(ng - 1, (k * (ng - 1)) // max(1, len(dm) - (0 if len(dm) < ng else 1)))
            fixed.setdefault(gk, []).extend(pre if isinstance(pre, list) else [pre])
            fixed.setdefault(gk + 1, []).insert(0, dma)
        if g.cfg.touch and n in g.touches: fixed.setdefault(len(m) - 2, []).extend(g.touches[n])
        seq, _ = weave(m, fixed, atomize_scc(extra), cap=2)
        p.add(seq)
    g.p1 = dict(Q=Q, K=K, V=Vv, cs=cs, sumO=sumO, gramO=gramO, sumH=sumH, gramH=gramH)
    V.free(FB[0], 36); V.free(FB[1], 36); V.free(hal, 4); V.free(E["XR"], 4)
    for k in a: V.free(a[k])
    for r in g.late_regs: V.free(r)

def split_hi_lo(val, dst, t0, t1, dup):
    o = [f"v_cvt_pk_bf16_f32 v{t0}, v{val}, v{val}",
         f"v_and_b32 v{t0}, 0xffff0000, v{t0}",
         f"v_sub_f32 v{t1}, v{val}, v{t0}",
         f"v_cvt_pk_bf16_f32 v{dst}, v{t0}, v{t1}"]
    if dup: o.append(f"v_mov_b32 v{dst+1}, v{dst}")
    return o

def insert_dma(items, pairs, b, e):
    return spread_pairs(items, [(pre if isinstance(pre, list) else [pre], [dma]) for pre, dma in pairs], b, e)

def dma_fifo(pairs):
    out = []
    for pre, dma in pairs:
        pre = pre if isinstance(pre, list) else [pre]
        out += pre + [dma]
    return out

def phase1_epilogue(p0, g):
    V = g.V; P = g.p1; E = g.e1
    Q, K, Vv, cs = P["Q"], P["K"], P["V"], P["cs"]
    p = Prog()
    p.wait_lgkm0(); p("s_barrier")
    stamp(p, g, 2)
    i_start = len(p.items)
    PO, PH = V.alloc(2), V.alloc(2)
    for (dst, sm, gr) in ((PO, P["sumO"], P["gramO"]), (PH, P["sumH"], P["gramH"])):
        p(f"v_cndmask_b32 v{dst+1}, v{gr}, v{gr+1}, {sp(s_m1)}")
        p(f"v_mov_b32 v{dst}, v{sm}")
        p(f"v_cndmask_b32 v{dst+1}, v{dst+1}, v{gr+2}, {sp(s_m2)}")
        p(f"v_cndmask_b32 v{dst+1}, v{dst+1}, v{gr+3}, {sp(s_m3)}")
    p(f"s_mov_b64 exec, {sp(s_diag)}")
    p(f"ds_write_b64 v{E['A1']}, {vr(PO,2)}")
    p(f"ds_write_b64 v{E['A2']}, {vr(PH,2)}")
    p("s_mov_b64 exec, -1")
    for k in ("sumO", "gramO", "sumH", "gramH"): V.free(P[k], 4)
    V.free(PO, 2); V.free(PH, 2); V.free(E["A1"]); V.free(E["A2"])
    CA = [V.alloc(2) for _ in range(3)]
    tA, tB = V.alloc(), V.alloc()
    for X in range(3):
        p(f"v_cvt_pk_bf16_f32 v{CA[X]}, v{cs[X]}, v{cs[X]}")
        p(f"v_and_b32 v{tA}, 0xffff0000, v{CA[X]}")
        p(f"v_sub_f32 v{tB}, v{cs[X]}, v{tA}")
        p(f"v_cvt_pk_bf16_f32 v{CA[X]+1}, v{tB}, v{tB}")
    for X in range(3): V.free(cs[X], 4)
    p.wait_lgkm0(); p("s_barrier")
    ST = {t: V.alloc(2) for t in range(1, 5)}
    HP = [V.alloc(2) for _ in range(4)]
    for u in range(4): p(f"ds_read_b64 {vr(HP[u],2)}, v{E['A3']} offset:{1024 + u*128}")
    for t in range(1, 5): p(f"ds_read_b64 {vr(ST[t],2)}, v{E['A3']} offset:{t*128}")
    V.free(E["A3"])
    p(f"v_pk_add_f32 {vr(HP[0],2)}, {vr(HP[0],2)}, {vr(HP[1],2)}")
    p(f"v_pk_add_f32 {vr(HP[2],2)}, {vr(HP[2],2)}, {vr(HP[3],2)}")
    p(f"v_pk_add_f32 {vr(HP[0],2)}, {vr(HP[0],2)}, {vr(HP[2],2)}")
    ST[0] = HP[0]
    for u in range(1, 4): V.free(HP[u], 2)
    BM = {t: V.alloc(2) for t in range(5)}
    RS = {t: V.alloc(2) for t in range(5)}
    rstd = {t: V.alloc(2) for t in range(5)}
    streams = []; tmps = []
    for t in (1, 2, 3, 4, 0):
        a0, a1, a2, a3 = (V.alloc() for _ in range(4)); tmps += [a0, a1, a2, a3]
        sm, sq = ST[t], ST[t] + 1
        s = [f"v_mul_f32 v{a0}, {fl(-1/2048)}, v{sm}",
             f"v_fmaak_f32 v{a1}, v{sq}, v{E['C512']}, {fl(1e-5)}",
             f"v_mul_f32 v{a2}, v{E['C512']}, v{sm}",
             f"v_fma_f32 v{a1}, -v{a2}, v{a2}, v{a1}",
             f"v_rsq_f32 v{rstd[t]}, v{a1}"]
        s += split_hi_lo(a0, BM[t], a2, a3, True)
        s += split_hi_lo(rstd[t], RS[t], a2, a3, True)
        streams.append(s)
    p.add(zipmerge(*streams))
    for r in tmps: V.free(r)
    for t in range(5): V.free(ST[t], 2)
    V.free(E["C512"])
    RB = {t: V.alloc(4) for t in range(5)}
    for t in range(5): p(m16k16(K[t], CA[1], BM[t], vr(K[t], 4)))
    for t in range(1, 5): p(m16k16(Q[t], CA[0], BM[t], vr(Q[t], 4)))
    for t in range(5): p(m16k16(RB[t], RS[t], E["C8"], "0"))
    for t in range(5): p(m16k16(Vv[t], BM[t], CA[2], vr(Vv[t], 4)))
    for X in range(3): V.free(CA[X], 2)
    V.free(tA); V.free(tB); V.free(E["C8"], 2)
    for t in range(5): V.free(BM[t], 2); V.free(RS[t], 2)
    cq = {t: V.alloc() for t in range(1, 5)}
    for t in range(1, 5): p(f"v_mul_f32 v{cq[t]}, {fl(0.25*math.log2(math.e))}, v{rstd[t]}")
    Qp = {t: V.alloc(2) for t in range(1, 5)}
    Kp = {t: V.alloc(2) for t in range(5)}
    Vp = V.alloc(10)
    st = []
    for t in range(5):
        s = [f"v_mul_f32 v{K[t]+r}, v{rstd[t]}, v{K[t]+r}" for r in range(4)]
        s += [f"v_cvt_pk_bf16_f32 v{Kp[t]+h}, v{K[t]+2*h}, v{K[t]+2*h+1}" for h in range(2)]
        if t >= 1: s += [f"v_cvt_pk_bf16_f32 v{Qp[t]+h}, v{Q[t]+2*h}, v{Q[t]+2*h+1}" for h in range(2)]
        st.append(s)
    p.add(zipmerge(*st))
    i_mid = len(p.items)
    for t in range(5): V.free(K[t], 4); V.free(rstd[t], 2)
    for t in range(1, 5): V.free(Q[t], 4)
    vst = []
    for t in range(5):
        vst += [f"v_mul_f32 v{Vv[t]+r}, v{RB[t]+r}, v{Vv[t]+r}" for r in range(4)]
        vst += [f"v_cvt_pk_bf16_f32 v{Vp+2*t+h}, v{Vv[t]+2*h}, v{Vv[t]+2*h+1}" for h in range(2)]
    ones = g.ones
    allocs = []; blocks = []; smf = []
    vNEG, vSelLo, vSelHi = E["NEG"], E["SelLo"], E["SelHi"]
    for b in range(4):
        qt = b + 1
        Sa, Sb, Pp, O, Dn = (V.alloc(4) for _ in range(5))
        v = [V.alloc() for _ in range(4)]
        m, mt, X1, X2 = (V.alloc() for _ in range(4))
        allocs += [(Sa, 4), (Sb, 4), (Pp, 4), (O, 4), (Dn, 4)] + [(x, 1) for x in v + [m, mt, X1, X2]]
        va0, va1 = (s_fa0, s_fa1) if b == 0 else (s_va0, s_va1)
        smf += [m16k16(Sa, Kp[qt-1], Qp[qt], "0"), m16k16(Sb, Kp[qt], Qp[qt], "0")]
        s = [f"v_cndmask_b32 v{v[0]}, v{Sa}, v{Sa+1}, {sp(s_odd)}",
             f"v_cndmask_b32 v{v[1]}, v{Sa+2}, v{Sa+3}, {sp(s_odd)}",
             f"v_cndmask_b32 v{v[2]}, v{Sb}, v{Sb+1}, {sp(s_odd)}",
             f"v_cndmask_b32 v{v[3]}, v{Sb+2}, v{Sb+3}, {sp(s_odd)}",
             f"v_cndmask_b32 v{v[0]}, v{vNEG}, v{v[0]}, {sp(va0)}",
             f"v_cndmask_b32 v{v[1]}, v{vNEG}, v{v[1]}, {sp(va1)}",
             f"v_cndmask_b32 v{v[2]}, v{vNEG}, v{v[2]}, {sp(s_vb0)}",
             f"v_cndmask_b32 v{v[3]}, v{vNEG}, v{v[3]}, {sp(s_vb1)}",
             f"v_max3_f32 v{m}, v{v[0]}, v{v[1]}, v{v[2]}",
             f"v_max_f32 v{m}, v{m}, v{v[3]}",
             f"v_mov_b32 v{mt}, v{m}",
             f"v_permlane32_swap_b32 v{m}, v{mt}",
             f"v_max_f32 v{m}, v{m}, v{mt}",
             f"v_mov_b32 v{mt}, v{m}",
             f"v_permlane16_swap_b32 v{m}, v{mt}",
             f"v_max_f32 v{m}, v{m}, v{mt}",
             f"v_mul_f32 v{m}, v{cq[qt]}, v{m}"]
        s += [f"v_fma_f32 v{v[k]}, v{v[k]}, v{cq[qt]}, -v{m}" for k in range(4)]
        s += [f"v_exp_f32 v{v[k]}, v{v[k]}" for k in range(4)]
        s += [f"v_cvt_pk_bf16_f32 v{X1}, v{v[0]}, v{v[1]}",
              f"v_cvt_pk_bf16_f32 v{X2}, v{v[2]}, v{v[3]}",
              f"v_perm_b32 v{Pp}, v{X1}, v{X1}, v{vSelLo}",
              f"v_perm_b32 v{Pp+1}, v{X1}, v{X1}, v{vSelHi}",
              f"v_perm_b32 v{Pp+2}, v{X2}, v{X2}, v{vSelLo}",
              f"v_perm_b32 v{Pp+3}, v{X2}, v{X2}, v{vSelHi}",
              m16k32(Dn, vr(ones, 4), vr(Pp, 4), "0"),
              m16k32(O, vr(Vp + 2*(qt-1), 4), vr(Pp, 4), "0"),
              f"v_rcp_f32 v{Dn}, v{Dn}"]
        s += [f"v_mul_f32 v{O+r}, v{Dn}, v{O+r}" for r in range(4)]
        s += [f"v_cvt_pk_bf16_f32 v{O}, v{O}, v{O+1}", f"v_cvt_pk_bf16_f32 v{O+1}, v{O+2}, v{O+3}"]
        so = f"s{s_k32}" if (b >> 1) else "0"
        s += [T(f"buffer_store_dwordx2 {vr(O,2)}, v{E['O1' if (b & 1) else 'O']}, {srd(sWS)}, {so} offen sc1", "ost")]
        blocks.append(s)
    seq, _ = weave(smf, {}, vst, cap=4)
    p.add(seq)
    p.add(zipmerge(*blocks))
    for r, n in allocs: V.free(r, n)
    for t in range(1, 5): V.free(Qp[t], 2); V.free(cq[t])
    for t in range(5): V.free(Kp[t], 2); V.free(Vv[t], 4); V.free(RB[t], 4)
    V.free(Vp, 10); V.free(vNEG); V.free(vSelLo); V.free(vSelHi); V.free(E["O"]); V.free(E["O1"])
    items = p.items
    if g.cfg.stop_after >= 2:
        items = insert_dma(items, wo_piece(g, 2) + w1_dma(g, 0, range(g.cfg.w1a_early)), i_start, i_mid)
    p0.add(items)

def get_nonce(p, g):
    p(f"v_readfirstlane_b32 s{s_nonce}, v{g.vEp}")
    p(f"v_readfirstlane_b32 s{s_nonce+1}, v{g.vEp+1}")
    p(f"s_add_u32 s{s_nonce}, s{s_nonce}, 2")
    p(f"s_or_b32 s{s_nonce}, s{s_nonce}, 1")
    p(f"v_mov_b32 v{g.vEp}, s{s_nonce}")
    p(f"v_mov_b32 v{g.vEp+1}, s{s_nonce+1}")

def signal(p, g, ph, tags):
    p.wait_vm(tags); p.wait_lgkm0()
    p("s_barrier")
    p(f"s_cmp_eq_u32 s{s_w}, 0")
    p(f"s_cselect_b64 exec, 1, 0")
    p(f"buffer_store_dwordx2 {vr(g.vEp,2)}, v{g.vMyFl}, {srd(sWS)}, 0 offen offset:{ph*128}", f"flagA{ph}")
    p("s_mov_b64 exec, -1")

def publish_b(g, ph):
    return [f"s_cmp_eq_u32 s{s_w}, 0", f"s_cselect_b64 exec, 1, 0",
            T(f"buffer_store_dwordx2 {vr(g.vEp,2)}, v{g.vMyFl}, {srd(sWS)}, 0 offen offset:{FB0 + ph*128} sc1", f"flagB{ph}"),
            "s_mov_b64 exec, -1"]

def wait_flags(p, g, ph, eight):
    V = g.V
    a = V.alloc(2); va = V.alloc()
    L = f"{ph}"; mask = 0xff if eight else 0xffff
    if eight:
        p(f"s_and_b32 s{s_a}, s{s_i16}, 8")
        p(f"s_lshl_b32 s{s_a}, s{s_a}, 3")
        p(f"v_add_u32 v{va}, s{s_a}, v{g.vFl}")
    else:
        p(f"v_mov_b32 v{va}, v{g.vFl}")
    p(f"s_mov_b32 s{s_cnt}, 0")
    p(f"s_mov_b64 exec, {mask}")
    p.label(f"L_poll{L}")
    p(f"buffer_load_dwordx2 {vr(a,2)}, v{va}, {srd(sWS)}, 0 offen offset:{ph*128} sc1")
    p("s_waitcnt vmcnt(0)")
    p(f"v_cmp_ne_u64 vcc, {sp(s_nonce)}, {vr(a,2)}")
    p(f"s_cbranch_vccz L_ok{L}")
    p.side_begin()
    p(f"s_add_u32 s{s_cnt}, s{s_cnt}, 1")
    p(f"s_cmp_lt_u32 s{s_cnt}, {KPOLL}")
    p(f"s_cbranch_scc1 L_poll{L}")
    p(f"s_cmp_eq_u32 s{s_cnt}, {KPOLL}")
    p(f"s_cbranch_scc0 L_pub{L}")
    p(f"s_cmp_eq_u32 s{s_w}, 0")
    p(f"s_cselect_b64 exec, 1, 0")
    p(f"buffer_store_dwordx2 {vr(g.vEp,2)}, v{g.vMyFl}, {srd(sWS)}, 0 offen offset:{FB0 + ph*128} sc1")
    p(f"s_mov_b64 exec, {mask}")
    p.label(f"L_pub{L}")
    p(f"buffer_load_dwordx2 {vr(a,2)}, v{va}, {srd(sWS)}, 0 offen offset:{FB0 + ph*128} sc1")
    p("s_waitcnt vmcnt(0)")
    p(f"v_cmp_ne_u64 vcc, {sp(s_nonce)}, {vr(a,2)}")
    p(f"s_cbranch_vccz L_ok{L}")
    p(f"s_cmp_lt_u32 s{s_cnt}, 0x80000")
    p(f"s_cbranch_scc1 L_poll{L}")
    p.side_end()
    p.label(f"L_ok{L}")
    p("s_mov_b64 exec, -1")
    V.free(a, 2); V.free(va)

def tr_base(p, dst, natural, tmp):
    t0, t1 = tmp
    p(f"v_bfe_u32 v{t0}, v0, 2, 2")
    p(f"v_lshrrev_b32 v{t1}, 5, v0")
    p(f"v_lshl_add_u32 v{t0}, v{t1}, {3 if natural else 2}, v{t0}")
    p(f"v_lshlrev_b32 v{t0}, 7, v{t0}")
    p(f"v_bfe_u32 v{t1}, v0, 3, 1")
    p(f"v_lshl_add_u32 v{t0}, v{t1}, 6, v{t0}")
    p(f"v_bfe_u32 v{t1}, v0, 4, 1")
    p(f"v_lshl_add_u32 v{t0}, v{t1}, 5, v{t0}")
    p(f"v_and_b32 v{t1}, 3, v0")
    p(f"v_lshl_add_u32 v{dst}, v{t1}, 3, v{t0}")

def phase2(p, g):
    V = g.V; cfg = g.cfg
    p.add(fifo_pairs(w1_dma(g, 0, range(cfg.w1a_early, 16))))
    get_nonce(p, g)
    vWa = [V.alloc() for _ in range(3)]; vWb = [V.alloc() for _ in range(3)]; vO = V.alloc()
    t0, t1 = V.alloc(), V.alloc()
    tr_base(p, t0, True, (t0, t1))
    p(f"s_lshl_b32 s{s_b}, s{s_nh}, 6")
    p(f"v_xor_b32 v{t0}, s{s_b}, v{t0}")
    for k, (base, stride) in enumerate(((L_WA, 12288), (L_WB, 12288), (L_WC, 8192))):
        p(f"s_mul_i32 s{s_a}, s{s_nh}, {stride}"); p(f"s_add_u32 s{s_a}, s{s_a}, {base}")
        p(f"v_add_u32 v{vWa[k]}, s{s_a}, v{t0}")
        p(f"v_xor_b32 v{vWb[k]}, 64, v{vWa[k]}")
    p(f"s_lshl_b32 s{s_a}, s{s_rt}, 17"); p(f"s_lshl_b32 s{s_b}, s{s_sh}, 16"); p(f"s_add_u32 s{s_a}, s{s_a}, s{s_b}")
    p(f"s_lshl_b32 s{s_b}, s{s_nh}, 15"); p(f"s_add_u32 s{s_a}, s{s_a}, s{s_b}")
    vFL = V.alloc()
    frag_lane(p, vFL, t0)
    p(f"v_add_u32 v{vO}, s{s_a}, v{vFL}")
    p(f"v_lshlrev_b32 v{t0}, 4, v0")
    vE, vE2, vH, vS = V.alloc(), V.alloc(), V.alloc(), V.alloc()
    p(f"s_lshl_b32 s{s_a}, s{s_w}, 12"); p(f"s_add_u32 s{s_a}, s{s_a}, {L_EX2}"); p(f"v_add_u32 v{vE}, s{s_a}, v{t0}")
    p(f"s_xor_b32 s{s_a}, s{s_w}, 2"); p(f"s_lshl_b32 s{s_a}, s{s_a}, 12"); p(f"s_add_u32 s{s_a}, s{s_a}, {L_EX2}"); p(f"v_add_u32 v{vE2}, s{s_a}, v{t0}")
    p(f"s_lshl_b32 s{s_a}, s{s_rt}, 1"); p(f"s_add_u32 s{s_a}, s{s_a}, s{s_sh}")
    p(f"s_lshl_b32 s{s_b}, s{s_a}, 16"); p(f"s_lshl_b32 s{s_c}, s{s_j}, 13"); p(f"s_add_u32 s{s_b}, s{s_b}, s{s_c}")
    p(f"s_lshl_b32 s{s_c}, s{s_nh}, 12"); p(f"s_add_u32 s{s_b}, s{s_b}, s{s_c}"); p(f"s_add_u32 s{s_b}, s{s_b}, {WS_H}")
    p(f"v_add_u32 v{vH}, s{s_b}, v{vFL}")
    p(f"s_lshl_b32 s{s_b}, s{s_a}, 13"); p(f"s_lshr_b32 s{s_c}, s{s_j}, 1"); p(f"s_lshl_b32 s{s_c}, s{s_c}, 11"); p(f"s_add_u32 s{s_b}, s{s_b}, s{s_c}")
    p(f"s_and_b32 s{s_c}, s{s_j}, 1"); p(f"s_lshl_b32 s{s_c}, s{s_c}, 3"); p(f"s_add_u32 s{s_b}, s{s_b}, s{s_c}"); p(f"s_add_u32 s{s_b}, s{s_b}, {WS_ST}")
    p(f"s_lshl_b32 s{s_c}, s{s_nh}, 5"); p(f"v_and_b32 v{t1}, 31, v0"); p(f"v_add_u32 v{t1}, s{s_c}, v{t1}")
    p(f"v_add_u32 v{vS}, 40, v{t1}"); p(f"v_bfe_u32 v{vS}, v{vS}, 6, 1"); p(f"v_lshlrev_b32 v{vS}, 7, v{vS}")
    p(f"v_lshl_add_u32 v{vS}, v{t1}, 4, v{vS}"); p(f"v_add_u32 v{vS}, s{s_b}, v{vS}")
    V.free(t0); V.free(t1)
    g.vFL = vFL
    signal(p, g, 0, ["ost", "wo"])
    stamp(p, g, 4)
    for ks in range(16):
        k = 0 if ks < 6 else (1 if ks < 12 else 2)
        o = (ks - (0, 6, 12)[k]) * 2048
        for u in range(2):
            for rd in range(2):
                p(f"ds_read_b64_tr_b16 {ar(8*ks + 4*u + 2*rd, 2)}, v{(vWa, vWb)[u][k]} offset:{o + rd*512}")
    for r in vWa + vWb: V.free(r)
    p.wait_lgkm0(); p("s_barrier")
    wait_flags(p, g, 0, True)
    stamp(p, g, 5)
    OF = V.alloc(64)
    for ks in range(16):
        if ks == 8: p(f"v_add_u32 v{vO}, {8*FS}, v{vO}")
        so, off = soff_for(ks & 7)
        p(f"buffer_load_dwordx4 {vr(OF+4*ks,4)}, v{vO}, {srd(sWS)}, {so} offen{off} sc1")
    acc = [V.alloc(16), V.alloc(16)]
    w1b = w1_dma(g, 1, range(16))
    for ks in range(16):
        m = [m32(vr(acc[u], 16), ar(8*ks + 4*u), vr(OF + 4*ks, 4), "0" if ks == 0 else vr(acc[u], 16)) for u in range(2)]
        pre, dma = w1b[ks]
        p.add([m[0]] + pre + [m[1], dma])
    V.free(OF, 64); V.free(vO)
    p.add(publish_b(g, 0))
    stamp(p, g, 6)
    q = Prog()
    for k in range(4): q(f"ds_write_b128 v{vE}, {vr(acc[1]+4*k,4)} offset:{k*1024}")
    A = acc[0]
    t = V.alloc(4)
    for k in range(8):
        x = g.xres + k
        q(f"v_lshlrev_b32 v{t + (k&1)*2}, 16, v{x}")
        q(f"v_and_b32 v{t + (k&1)*2 + 1}, 0xffff0000, v{x}")
        q(f"v_pk_add_f32 {vr(A + 2*k, 2)}, {vr(A + 2*k, 2)}, {vr(t + (k&1)*2, 2)}")
    q.wait_lgkm0(); q("s_barrier")
    for k in range(4): q(f"ds_read_b128 {vr(acc[1]+4*k,4)}, v{vE2} offset:{k*1024}")
    for k in range(8):
        q(f"v_pk_add_f32 {vr(A + 2*k, 2)}, {vr(A + 2*k, 2)}, {vr(acc[1] + 2*k, 2)}")
    V.free(t, 4); V.free(acc[1], 16); V.free(vE); V.free(vE2)
    hp = g.xres
    for k in range(8): q(f"v_cvt_pk_bf16_f32 v{hp+k}, v{A+2*k}, v{A+2*k+1}")
    V.free(A, 16)
    q(f"buffer_store_dwordx4 {vr(hp,4)}, v{vH}, {srd(sWS)}, 0 offen sc1", "hst")
    q(f"buffer_store_dwordx4 {vr(hp+4,4)}, v{vH}, {srd(sWS)}, 0 offen offset:{FS} sc1", "hst")
    SQ = V.alloc(2); t = V.alloc(2)
    q(f"v_mov_b32 v{SQ}, 0"); q(f"v_mov_b32 v{SQ+1}, 0")
    for k in range(8):
        q(f"v_dot2c_f32_bf16 v{SQ}, v{hp+k}, v{g.ones}")
        q(f"v_dot2c_f32_bf16 v{SQ+1}, v{hp+k}, v{hp+k}")
    q(f"v_mov_b32 v{t}, v{SQ}"); q(f"v_mov_b32 v{t+1}, v{SQ+1}")
    q(f"v_permlane32_swap_b32 v{SQ}, v{t}"); q(f"v_permlane32_swap_b32 v{SQ+1}, v{t+1}")
    q(f"v_add_f32 v{SQ}, v{SQ}, v{t}"); q(f"v_add_f32 v{SQ+1}, v{SQ+1}, v{t+1}")
    q("s_mov_b32 exec_hi, 0")
    q(f"buffer_store_dwordx2 {vr(SQ,2)}, v{vS}, {srd(sWS)}, 0 offen sc1", "hst")
    q("s_mov_b64 exec, -1")
    V.free(vH); V.free(vS); V.free(SQ, 2); V.free(t, 2)
    p.add(q.items)
    g.hp = hp
    stamp(p, g, 7)

NSTG = 8
def p4_read_bases(p, g):
    V = g.V
    g.vR = vR = [[V.alloc(), V.alloc()] for _ in range(3)]
    t = V.alloc()
    p(f"s_lshl_b32 s{s_a}, s{s_nh}, 6")
    p(f"v_xor_b32 v{t}, s{s_a}, v{g.vTrD}")
    for grp, sb in enumerate((s_b0, s_b1, s_b2)):
        p(f"v_add_u32 v{vR[grp][0]}, s{sb}, v{t}")
    p(f"v_xor_b32 v{t}, 64, v{t}")
    for grp, sb in enumerate((s_b0, s_b1, s_b2)):
        p(f"v_add_u32 v{vR[grp][1]}, s{sb}, v{t}")
    V.free(t)

def w2_reads(g, slot, dst):
    grp, off = w2_slot(slot)
    return [f"ds_read_b64_tr_b16 {dst(bb, r)}, v{g.vR[grp][bb]} offset:{off + r*1024}" for bb in range(2) for r in range(2)]

def phase3(p, g):
    V = g.V; cfg = g.cfg
    vW = [V.alloc() for _ in range(4)]
    t0, t1 = V.alloc(), V.alloc()
    tr_base(p, vW[0], False, (t0, t1))
    p(f"v_xor_b32 v{vW[1]}, 64, v{vW[0]}")
    p(f"v_add_u32 v{vW[2]}, 65536, v{vW[0]}")
    p(f"v_add_u32 v{vW[3]}, 65536, v{vW[1]}")
    g.vTrD = V.alloc()
    p(f"v_mov_b32 v{g.vTrD}, v{vW[0]}")
    p4_read_bases(p, g)
    V.free(g.vTrD)
    vC = V.alloc()
    p(f"s_lshl_b32 s{s_a}, s{s_sh}, 6"); p(f"s_lshl_b32 s{s_b}, s{s_nh}, 16")
    p(f"v_xor_b32 v{vC}, s{s_a}, v{vW[0]}"); p(f"v_add_u32 v{vC}, s{s_b}, v{vC}")
    sel = V.alloc(4)
    p(f"v_lshrrev_b32 v{t0}, 4, v0"); p(f"v_xor_b32 v{t0}, v{t0}, v0"); p(f"v_and_b32 v{t0}, 1, v{t0}")
    p(f"v_cmp_eq_u32 vcc, 0, v{t0}")
    p(f"v_mov_b32 v{t1}, 0")
    for r in range(4): p(f"v_cndmask_b32 v{sel+r}, v{t1}, v{g.ones}, vcc")
    vH, vS, vH1, vCw, vCr = (V.alloc() for _ in range(5))
    p(f"s_lshl_b32 s{s_a}, s{s_R}, 2"); p(f"s_add_u32 s{s_a}, s{s_a}, s{s_w}")
    p(f"s_lshl_b32 s{s_b}, s{s_a}, 16"); p(f"s_add_u32 s{s_b}, s{s_b}, {WS_H}")
    p(f"v_add_u32 v{vH}, s{s_b}, v{g.vFL}")
    p(f"s_mul_i32 s{s_b}, s{s_a}, {112*FS}"); p(f"s_lshl_b32 s{s_c}, s{s_i16c}, 14")
    p(f"s_add_u32 s{s_b}, s{s_b}, s{s_c}"); p(f"s_add_u32 s{s_b}, s{s_b}, {WS_H1}")
    p(f"v_add_u32 v{vH1}, s{s_b}, v{g.vFL}")
    p(f"s_lshl_b32 s{s_b}, s{s_a}, 13"); p(f"s_add_u32 s{s_b}, s{s_b}, {WS_ST}")
    p(f"v_add_u32 v{vS}, s{s_b}, v{g.vFL}")
    p(f"v_and_b32 v{t0}, 15, v0"); p(f"v_lshlrev_b32 v{t0}, 2, v{t0}"); p(f"s_lshl_b32 s{s_a}, s{s_w}, 7"); p(f"s_add_u32 s{s_a}, s{s_a}, {L_M}")
    p(f"v_add_u32 v{vCw}, s{s_a}, v{t0}")
    p(f"v_and_b32 v{t0}, 31, v0"); p(f"v_lshlrev_b32 v{t0}, 2, v{t0}"); p(f"v_add_u32 v{vCr}, {L_M}, v{t0}")
    signal(p, g, 1, ["hst", "w1a", "w1b"])
    stamp(p, g, 8)
    csacc = V.alloc(4); CF = [V.alloc(4) for _ in range(8)]
    def cr(ks): return [f"ds_read_b64_tr_b16 {vr(CF[ks % 8] + 2*rd, 2)}, v{vC} offset:{ks*2048 + rd*1024}" for rd in range(2)]
    for ks in range(6): p.add(cr(ks))
    for ks in range(32):
        if ks % 2 == 0: p(f"s_waitcnt lgkmcnt({8 if ks + 6 < 32 + 1 - 1 and ks <= 24 else max(0, 2 * (32 - ks - 2))})") if False else None
        p(m16k32(csacc, vr(sel, 4), vr(CF[ks % 8], 4), "0" if ks == 0 else vr(csacc, 4)))
        if ks + 6 < 32: p.add(cr(ks + 6))
    for b in CF: V.free(b, 4)
    V.free(sel, 4); V.free(vC)
    p(f"ds_write_b32 v{vCw}, v{csacc}")
    p(f"ds_write_b32 v{vCw}, v{csacc+1} offset:64")
    V.free(csacc, 4); V.free(vCw)
    p.wait_lgkm0(); p("s_barrier")
    CA = [V.alloc(4) for _ in range(4)]
    csv = V.alloc(4)
    for nt in range(4): p(f"ds_read_b32 v{csv+nt}, v{vCr} offset:{nt*128}")
    V.free(vCr)
    for nt in range(4):
        p(f"v_cvt_pk_bf16_f32 v{CA[nt]}, v{csv+nt}, v{csv+nt}")
        p(f"v_lshl_or_b32 v{CA[nt]+2}, v{g.vB1+nt}, 16, v{g.vB1+nt}")
        p(f"v_and_b32 v{t0}, 0xffff0000, v{CA[nt]}")
        p(f"v_mov_b32 v{CA[nt]+3}, 0")
        p(f"v_sub_f32 v{t1}, v{csv+nt}, v{t0}")
        p(f"v_cvt_pk_bf16_f32 v{CA[nt]+1}, v{t1}, v{t1}")
    V.free(csv, 4); V.free(g.vB1, 4)
    acc = [V.alloc(16) for _ in range(4)]
    WF = [V.alloc(4) for _ in range(6)]
    def rd(nt, ks, buf): return [f"ds_read_b64_tr_b16 {vr(buf + 2*r, 2)}, v{vW[nt]} offset:{ks*2048 + r*1024}" for r in range(2)]
    def rda(nt, ks): return [f"ds_read_b64_tr_b16 {ar(128 + 4*ks + 2*r, 2)}, v{vW[nt]} offset:{ks*2048 + r*1024}" for r in range(2)]
    p(f"s_cmp_eq_u32 s{s_j}, 3")
    p("s_cbranch_scc1 L_idle3")
    p.side_begin()
    p.add(rd(0, 0, WF[0]) + rd(1, 0, WF[1]) + rd(0, 1, WF[2]) + rd(1, 1, WF[3]))
    wait_flags(p, g, 1, False)
    stamp(p, g, 9)
    ST = V.alloc(16)
    def aload(ks):
        off = f" offset:{FS}" if ks & 1 else ""
        pre = [f"s_mov_b32 s{s_so}, {(ks >> 1) * 2 * FS}"] if (ks & 1) == 0 else []
        return pre + [f"buffer_load_dwordx4 {ar(4*ks)}, v{vH}, {srd(sWS)}, s{s_so} offen{off} sc1"]
    D = cfg.d3
    for ks in range(2): p.add(aload(ks))
    for q in range(4):
        so_, off_ = soff_for(q)
        p(f"buffer_load_dwordx4 {vr(ST+4*q,4)}, v{vS}, {srd(sWS)}, {so_} offen{off_} sc1")
    for ks in range(2, D): p.add(aload(ks))
    S, Qq = ST, ST + 1
    BM = V.alloc(4); KK = V.alloc(2); sdp = V.alloc(2); rs = V.alloc(); K1p = V.alloc(2)
    K2, K1, sd = KK, K1p, sdp
    U = V.alloc(16)
    u0, u1, u2, u3 = U, U + 1, U + 2, U + 3
    st = []
    for q in range(1, 8):
        st += [f"v_add_f32 v{S}, v{S}, v{ST+2*q}", f"v_add_f32 v{Qq}, v{Qq}, v{ST+2*q+1}"]
    st += [f"v_mov_b32 v{u0}, v{S}", f"v_mov_b32 v{u1}, v{Qq}", f"v_mov_b32 v{BM+3}, 0",
           f"v_permlane32_swap_b32 v{S}, v{u0}", f"v_permlane32_swap_b32 v{Qq}, v{u1}",
           f"v_add_f32 v{S}, v{S}, v{u0}", f"v_add_f32 v{Qq}, v{Qq}, v{u1}",
           f"v_mul_f32 v{u0}, {fl(1/512)}, v{S}",
           f"v_mul_f32 v{u1}, {fl(1/512)}, v{Qq}",
           f"v_add_f32 v{u1}, {fl(1e-5)}, v{u1}",
           f"v_fma_f32 v{u1}, -v{u0}, v{u0}, v{u1}",
           f"v_rsq_f32 v{rs}, v{u1}",
           f"v_mul_f32 v{u0}, -0.5, v{u0}",
           f"v_mul_f32 v{sd}, v{u1}, v{rs}",
           f"v_mul_f32 v{K1}, {fl(C1)}, v{rs}",
           f"v_mul_f32 v{u1}, v{rs}, v{rs}",
           f"v_mul_f32 v{u1}, v{u1}, v{rs}",
           f"v_mul_f32 v{K2}, {fl(C2)}, v{u1}"]
    st += split_hi_lo(u0, BM, u2, u3, True)
    st += [f"v_mul_f32 v{u0}, 0.5, v{sd}"]
    st += split_hi_lo(u0, BM + 2, u2, u3, False)
    def act(ks): return ar(4*ks)
    m = []; fixed = {}
    for ks in range(32):
        b0, b1 = WF[(2*ks) % 6], WF[(2*ks + 1) % 6]
        m.append(m32(vr(acc[0], 16), vr(b0, 4), act(ks), "0" if ks == 0 else vr(acc[0], 16)))
        m.append(m32(vr(acc[1], 16), vr(b1, 4), act(ks), "0" if ks == 0 else vr(acc[1], 16)))
        f0, f1 = [], []
        if ks + D < 32: f0 += aload(ks + D)
        if ks + 2 < 32:
            f0 += rd(0, ks + 2, WF[(2*ks + 4) % 6]); f1 += rd(1, ks + 2, WF[(2*ks + 5) % 6])
        f1 += rda(2, ks)
        fixed[2*ks] = f0; fixed[2*ks + 1] = f1
    seq, _ = weave(m, fixed, st, cap=5, start=8)
    p.add(seq)
    for nt in range(2): p(m32(vr(acc[nt], 16), vr(CA[nt], 4), vr(BM, 4), vr(acc[nt], 16)))
    p("s_barrier")
    stamp(p, g, 10)
    p.add(publish_b(g, 1))
    def gelu(nt, pk=False):
        A = acc[nt]; ops = []
        for blk in range(2):
            rs_ = [A + 8*blk + i for i in range(8)]
            Ub = U + 8*(blk & 1) if cfg.u16 else U
            if not pk:
                ops += [f"v_mul_f32 v{Ub+i}, v{rs_[i]}, v{rs_[i]}" for i in range(8)]
                ops += [f"v_fma_f32 v{Ub+i}, v{Ub+i}, v{K2}, v{K1}" for i in range(8)]
                ops += [f"v_mul_f32 v{Ub+i}, v{rs_[i]}, v{Ub+i}" for i in range(8)]
                ops += [f"v_exp_f32 v{Ub+i}, v{Ub+i}" for i in range(8)]
                ops += [f"v_fma_f32 v{Ub+i}, v{Ub+i}, v{sd}, v{sd}" for i in range(8)]
                ops += [f"v_rcp_f32 v{Ub+i}, v{Ub+i}" for i in range(8)]
                ops += [f"v_mul_f32 v{rs_[i]}, v{rs_[i]}, v{Ub+i}" for i in range(8)]
            else:
                P = lambda r: vr(r, 2)
                ops += [f"v_pk_mul_f32 {P(Ub+2*i)}, {P(rs_[2*i])}, {P(rs_[2*i])}" for i in range(4)]
                ops += [f"v_pk_fma_f32 {P(Ub+2*i)}, {P(Ub+2*i)}, {P(K2)}, {P(K1)} op_sel_hi:[1,0,0]" for i in range(4)]
                ops += [f"v_pk_mul_f32 {P(Ub+2*i)}, {P(rs_[2*i])}, {P(Ub+2*i)}" for i in range(4)]
                ops += [f"v_exp_f32 v{Ub+i}, v{Ub+i}" for i in range(8)]
                ops += [f"v_pk_fma_f32 {P(Ub+2*i)}, {P(Ub+2*i)}, {P(sd)}, {P(sd)} op_sel_hi:[1,0,0]" for i in range(4)]
                ops += [f"v_rcp_f32 v{Ub+i}, v{Ub+i}" for i in range(8)]
                ops += [f"v_pk_mul_f32 {P(rs_[2*i])}, {P(rs_[2*i])}, {P(Ub+2*i)}" for i in range(4)]
            ops += [f"v_cvt_pk_bf16_f32 v{A + 8*blk + k}, v{rs_[2*k]}, v{rs_[2*k+1]}" for k in range(4)]
            idx = 2*nt + blk
            so, off = soff_for(idx)
            ops.append(T(f"buffer_store_dwordx4 {vr(A + 8*blk, 4)}, v{vH1}, {srd(sWS)}, {so} offen{off} sc1", "h1st"))
        return ops
    if cfg.stage:
        for b in WF: V.free(b, 4)
        V.free(ST, 16)
        SG = g.SG = [V.alloc(8) for _ in range(NSTG)]
        g0, g1 = gelu(0), gelu(1)
        m = []; fixed = {}
        for ks in range(32):
            m.append(m32(vr(acc[2], 16), ar(128 + 4*ks), act(ks), "0" if ks == 0 else vr(acc[2], 16)))
            fixed[ks] = rda(3, ks)
        m.append(m32(vr(acc[2], 16), vr(CA[2], 4), vr(BM, 4), vr(acc[2], 16)))
        p.wait_lgkm0()
        seq, rem = weave(m, fixed, dma_fifo(w2_range(g, 19, 3, NSTG)) + g0 + g1, cap=cfg.capB, tail=False)
        p.add(seq)
        p.wait_lgkm0(); p("s_barrier")
        if cfg.stamps >= 2: stamp(p, g, 30)
        m = [m32(vr(acc[3], 16), ar(128 + 4*ks), act(ks), "0" if ks == 0 else vr(acc[3], 16)) for ks in range(32)]
        m.append(m32(vr(acc[3], 16), vr(CA[3], 4), vr(BM, 4), vr(acc[3], 16)))
        stg = [("wait_vm", [f"w2_{19 + k_}" for k_ in range(NSTG)])]
        for k_ in range(NSTG): stg += w2_reads(g, 3 + k_, lambda bb, r, k_=k_: vr(SG[k_] + 4*bb + 2*r, 2))
        nrem = cfg.crem
        fC = dma_fifo(w2_range(g, 11, 11, 8)) + rem[:nrem] + stg + rem[nrem:nrem + 8] + [("wait_lgkm0",)] + dma_fifo(w2_range(g, 3, 3, 8)) + rem[nrem + 8:]
        seq, rem = weave(m, {}, fC, cap=cfg.capC, tail=False)
        p.add(seq)
        stamp(p, g, 11)
        p.add(rem)
        p.add(gelu(2, pk=bool(cfg.pktail)))
        p.add(gelu(3, pk=bool(cfg.pktail)))
        p.wait_vm(["h1st"])
        for b in acc: V.free(b, 16)
        V.free(BM, 4); V.free(KK, 2); V.free(sdp, 2); V.free(K1p, 2); V.free(rs); V.free(U, 16)
    else:
        for b in WF: V.free(b, 4)
        V.free(ST, 16)
        g0 = gelu(0)
        m = []; fixed = {}
        for ks in range(32):
            m.append(m32(vr(acc[2], 16), ar(128 + 4*ks), act(ks), "0" if ks == 0 else vr(acc[2], 16)))
            fixed[ks] = rda(3, ks)
        m.append(m32(vr(acc[2], 16), vr(CA[2], 4), vr(BM, 4), vr(acc[2], 16)))
        def place_dma(fixed, pairs, g0_, step):
            for k_, (pre, dma) in enumerate(pairs):
                gk = g0_ + k_ * step
                fixed.setdefault(gk, []).extend(pre)
                fixed.setdefault(gk + 1, []).insert(0, dma)
        pb = w2_range(g, 0, 0, 3) + w2_range(g, 3, 3, 8)
        for k_, (pre, dma) in enumerate(pb):
            gk = (k_ * 31) // len(pb)
            fixed.setdefault(gk, []).extend(pre)
            fixed.setdefault(gk + 1, []).insert(0, dma)
        p.wait_lgkm0()
        seq, rem = weave(m, fixed, g0, cap=cfg.capB, tail=False)
        p.add(seq)
        p.wait_lgkm0(); p("s_barrier")
        if cfg.stamps >= 2: stamp(p, g, 30)
        m = [m32(vr(acc[3], 16), ar(128 + 4*ks), act(ks), "0" if ks == 0 else vr(acc[3], 16)) for ks in range(32)]
        m.append(m32(vr(acc[3], 16), vr(CA[3], 4), vr(BM, 4), vr(acc[3], 16)))
        fixed = {}
        place_dma(fixed, w2_range(g, 11, 11, 8), 0, 2)
        more = gelu(1) if cfg.g1c else []
        seq, rem = weave(m, fixed, rem + more, cap=cfg.capC, tail=False)
        p.add(seq)
        stamp(p, g, 11)
        p.add(rem)
        if not cfg.g1c: p.add(gelu(1, pk=True))
        p.add(gelu(2, pk=True)); p.add(gelu(3, pk=True))
        p.wait_vm(["h1st"])
        for b in acc: V.free(b, 16)
        V.free(BM, 4); V.free(KK, 2); V.free(sdp, 2); V.free(K1p, 2); V.free(rs); V.free(U, 16)
    p.side_end()
    p.label("L_merge3")
    q = Prog()
    q.label("L_idle3")
    q.add(publish_b(g, 1))
    if cfg.stage:
        q.add(fifo_pairs(w2_range(g, 19, 3, NSTG)))
        q.add(fifo_pairs(w2_range(g, 11, 11, 8)))
        q.wait_vm([f"w2_{19 + k_}" for k_ in range(NSTG)])
        for k_ in range(NSTG): q.add(w2_reads(g, 3 + k_, lambda bb, r, k_=k_: vr(g.SG[k_] + 4*bb + 2*r, 2)))
        q.wait_lgkm0()
        q.add(fifo_pairs(w2_range(g, 3, 3, 8)))
        q("s_waitcnt vmcnt(0)")
    else:
        q.add(fifo_pairs(w2_range(g, 0, 0, 3))); q.add(fifo_pairs(w2_range(g, 3, 3, 8))); q.add(fifo_pairs(w2_range(g, 11, 11, 8)))
        q("s_waitcnt vmcnt(0)")
    q("s_branch L_merge3")
    g.tail_blocks.append(q)
    for b in CA: V.free(b, 4)
    V.free(t0); V.free(t1)
    for r in vW + [vH, vS, vH1]: V.free(r)

def phase4(p, g):
    V = g.V; cfg = g.cfg
    p.items.append(("assume_vm", []))
    signal(p, g, 2, [])
    stamp(p, g, 12)
    acc = [V.alloc(16) for _ in range(4)]
    t = V.alloc(4)
    for q in range(8):
        p(f"v_lshlrev_b32 v{acc[0]+2*q}, 16, v{g.hp+q}")
        p(f"v_and_b32 v{acc[0]+2*q+1}, 0xffff0000, v{g.hp+q}")
        p(f"v_lshlrev_b32 v{t}, 16, v{g.vB2+q}")
        p(f"v_and_b32 v{t+1}, 0xffff0000, v{g.vB2+q}")
        p(f"v_pk_add_f32 {vr(acc[0]+2*q,2)}, {vr(acc[0]+2*q,2)}, {vr(t,2)}")
    V.free(t, 4); V.free(g.vB2, 8); V.free(g.hp, 8)
    vA = [V.alloc(), V.alloc()]; t1 = V.alloc()
    p(f"v_lshlrev_b32 v{t1}, 4, v0")
    for a_ in range(2):
        p(f"s_xor_b32 s{s_a}, s{s_sh}, {a_}")
        p(f"s_lshl_b32 s{s_b}, s{s_rt}, 1"); p(f"s_add_u32 s{s_a}, s{s_a}, s{s_b}")
        p(f"s_mul_i32 s{s_a}, s{s_a}, {112*FS}")
        p(f"s_mul_i32 s{s_b}, s{s_w}, {28*FS}"); p(f"s_add_u32 s{s_a}, s{s_a}, s{s_b}")
        p(f"s_add_u32 s{s_a}, s{s_a}, {WS_H1}")
        p(f"v_add_u32 v{vA[a_]}, s{s_a}, v{g.vFL}")
    V.free(g.vFL)
    vE, vP, vOut = V.alloc(), [V.alloc() for _ in range(3)], V.alloc()
    p(f"v_add_u32 v{vE}, s{s_b1}, v{t1}")
    for u in range(1, 4):
        p(f"s_xor_b32 s{s_a}, s{s_w}, {u}"); p(f"s_lshl_b32 s{s_a}, s{s_a}, 14"); p(f"v_add_u32 v{vP[u-1]}, s{s_a}, v{t1}")
    p(f"s_lshl_b32 s{s_a}, s{s_rt}, 6"); p(f"s_lshl_b32 s{s_b}, s{s_sh}, 5"); p(f"s_add_u32 s{s_a}, s{s_a}, s{s_b}")
    p(f"s_lshl_b32 s{s_a}, s{s_a}, 10")
    p(f"s_lshl_b32 s{s_b}, s{s_j}, 7"); p(f"s_add_u32 s{s_a}, s{s_a}, s{s_b}")
    p(f"s_lshl_b32 s{s_b}, s{s_nh}, 6"); p(f"s_add_u32 s{s_a}, s{s_a}, s{s_b}")
    p(f"v_and_b32 v{vOut}, 31, v0"); p(f"v_lshlrev_b32 v{vOut}, 10, v{vOut}")
    p(f"v_lshrrev_b32 v{t1}, 5, v0"); p(f"v_lshl_add_u32 v{vOut}, v{t1}, 4, v{vOut}"); p(f"v_add_u32 v{vOut}, s{s_a}, v{vOut}")
    V.free(t1)
    WF = [V.alloc(8) for _ in range(3)]
    if cfg.stage:
        lds_units = list(range(19)) + [27]
        slot_map = {u: (u if u < 19 else 0) for u in lds_units}
        stream = {1: w2_dma_to(g, 27, 0)}
    else:
        lds_units = list(range(28))
        slot_map = {u: (u if u < 19 else u - 19) for u in lds_units}
        stream = {2: w2_dma_to(g, 19, 0, 2), 3: w2_dma_to(g, 21, 2), 5: w2_dma_to(g, 22, 3, 2), 7: w2_dma_to(g, 24, 5, 2), 9: w2_dma_to(g, 26, 7, 2)}
    ring = {u: WF[i % 3] for i, u in enumerate(lds_units)}
    def reads(u): return w2_reads(g, slot_map[u], lambda bb, r: vr(ring[u] + 4*bb + 2*r, 2))
    p.add(reads(0)); p.add(reads(1))
    wait_flags(p, g, 2, False)
    stamp(p, g, 13)
    def hreg(u, a_): return 8*u + 4*a_
    def loads(u):
        out = []
        if (u & 1) == 0: out.append(f"s_mov_b32 s{s_so2}, {(u >> 1) * 2 * FS}")
        off = f" offset:{FS}" if u & 1 else ""
        for a_ in range(2):
            out.append(T(f"buffer_load_dwordx4 {ar(hreg(u, a_))}, v{vA[a_]}, {srd(sWS)}, s{s_so2} offen{off} sc1", f"h1_{u}"))
        return out
    D = cfg.d4
    for u in range(D): p.add(loads(u))
    nxt = {lds_units[i]: lds_units[i + 2] for i in range(len(lds_units) - 2)}
    for u in range(28):
        m = []
        for bb in range(2):
            A_ = vr(ring[u] + 4*bb, 4) if u in ring else vr(g.SG[u - 19] + 4*bb, 4)
            for a_ in range(2):
                d = vr(acc[2*bb + a_], 16)
                first = (u == 0 and 2*bb + a_ != 0)
                m.append(m32(d, A_, ar(hreg(u, a_)), "0" if first else d))
        ld = loads(u + D) if u + D < 28 else []
        rd_ = []
        if u in nxt:
            un = nxt[u]
            rd_ = [("wait_vm", [f"w2_{un}"])] + reads(un)
        dm = stream.get(u, [])
        pre = dm[0][0] if dm else []
        dmas = [d for _, d in dm]
        seq = [m[0]] + ld[:-1] + [m[1]] + ld[-1:] + rd_ + pre + [m[2]] + dmas[:2] + [m[3]] + dmas[2:]
        p.add(seq)
    for b in WF: V.free(b, 8)
    if cfg.stage:
        for b in g.SG: V.free(b, 8)
    for g_ in g.vR:
        for r in g_: V.free(r)
    for r in vA: V.free(r)
    stamp(p, g, 14)
    for u in range(1, 4):
        for q in range(4): p(f"ds_write_b128 v{vE}, {vr(acc[u]+4*q,4)} offset:{(u-1)*4096 + q*1024}")
    p.add(publish_b(g, 2))
    p.wait_lgkm0(); p("s_barrier")
    for u in range(1, 4):
        for q in range(4): p(f"ds_read_b128 {vr(acc[u]+4*q,4)}, v{vP[u-1]} offset:{(u-1)*4096 + q*1024}")
    A = acc[0]
    for u in range(1, 4):
        for q in range(8): p(f"v_pk_add_f32 {vr(A+2*q,2)}, {vr(A+2*q,2)}, {vr(acc[u]+2*q,2)}")
    for q in range(8): p(f"v_cvt_pk_bf16_f32 v{A+q}, v{A+2*q}, v{A+2*q+1}")
    for q in (0, 2):
        p(f"v_permlane32_swap_b32 v{A+2*q}, v{A+2*q+2}")
        p(f"v_permlane32_swap_b32 v{A+2*q+1}, v{A+2*q+3}")
    p(f"buffer_store_dwordx4 {vr(A,4)}, v{vOut}, {srd(sOUT)}, 0 offen")
    p(f"buffer_store_dwordx4 {vr(A+4,4)}, v{vOut}, {srd(sOUT)}, 0 offen offset:32")
    p(f"s_lshl_b32 s{s_a}, s{s_R}, 10"); p(f"s_add_u32 s{s_a}, s{s_a}, {WS_FL}")
    p(f"v_mov_b32 v{vE}, s{s_a}")
    p(f"s_or_b32 s{s_b}, s{s_i16}, s{s_w}")
    p(f"s_cmp_eq_u32 s{s_b}, 0")
    p("s_cselect_b64 exec, 1, 0")
    p(f"buffer_store_dwordx2 {vr(g.vEp,2)}, v{vE}, {srd(sWS)}, 0 offen offset:{FEP}")
    p("s_mov_b64 exec, -1")
    V.free(vE); V.free(vOut)
    for r in vP: V.free(r)
    for b in acc: V.free(b, 16)

def build(cfg):
    g = G(); g.cfg = cfg; g.tail_blocks = []
    g.V = V = Pool(1, 256)
    V.take(1, 1)
    g.vdummy = V.take(252, 4)
    if cfg.stamps: g.vstamp = V.take(251, 1)
    g.ones = V.alloc(4)
    p = Prog()
    prologue(p, g)
    if cfg.stamps:
        p(f"v_mov_b32 v{g.vstamp}, 0")
        p(f"s_memrealtime {sp(s_stamp)}"); p("s_waitcnt lgkmcnt(0)")
        p(f"v_writelane_b32 v{g.vstamp}, s{s_stamp}, 16")
        stamp(p, g, 0)
    p1_addresses(p, g)
    p.add(xgroup_sregs(0, 0)); p.add(xgroup_sregs(1, 1)); p.add(xgroup_sregs(2, 2))
    if cfg.stamps >= 2: stamp(p, g, 18)
    p("s_waitcnt lgkmcnt(0)")
    if cfg.stamps >= 2: stamp(p, g, 19)
    p.add(make_srd(sX, 4, 2048*512*2)); p.add(make_srd(sWQ, 6, 512*1536*2))
    setup = setup_ops(g)
    burst = dma_x(g, 0, 0) + dma_w(g, 0)
    if cfg.burst in (0, 1): burst += dma_x(g, 1, 1)
    if cfg.burst == 0: burst += dma_w(g, 1)
    seps = list(setup)
    per = -(-len(seps) // len(burst))
    p.add(pairs_with_sep(burst, seps, per - 1))
    if cfg.stamps >= 2: stamp(p, g, 20)
    p.add(seps)
    phase1(p, g)
    phase1_epilogue(p, g)
    stamp(p, g, 3)
    if cfg.stop_after >= 2: phase2(p, g)
    if cfg.stop_after >= 3: phase3(p, g)
    if cfg.stop_after >= 4: phase4(p, g)
    if cfg.stamps:
        p("s_waitcnt vmcnt(0)")
        stamp(p, g, 15)
        p(f"s_memrealtime {sp(s_stamp)}"); p("s_waitcnt lgkmcnt(0)")
        p(f"v_writelane_b32 v{g.vstamp}, s{s_stamp}, 17")
        p(f"s_lshl_b32 s{s_t0}, s2, 2"); p(f"s_add_u32 s{s_t0}, s{s_t0}, s{s_w}")
        p(f"s_lshl_b32 s{s_t0}, s{s_t0}, 8"); p(f"s_add_u32 s{s_t0}, s{s_t0}, {WS_DBG}")
        p(f"v_lshlrev_b32 v1, 2, v0"); p(f"v_add_u32 v1, s{s_t0}, v1")
        p(f"buffer_store_dword v{g.vstamp}, v1, {srd(sWS)}, 0 offen")
    p.label("L_end")
    p("s_endpgm")
    items, stats = finalize(p)
    body = render(items)
    for q in g.tail_blocks:
        it2, _ = finalize(q)
        body += render(it2)
    body += "L_code_end:\n    s_endpgm\n"
    hdr = open("cdna_kernels/" + NAME + ".s.ref").read().split("; Override launch geometry")[0]
    out = hdr
    out += "; Override launch geometry by editing the next line (default: block=256,\n"
    out += f"; @launch grid=(256,1,1) block=(256,1,1) lds={LDS_SIZE}\n"
    out += '.amdgcn_target "amdgcn-amd-amdhsa--gfx950"\n.text\n'
    out += f".globl {KNAME}\n.p2align 8\n.type {KNAME},@function\n{KNAME}:\n"
    out += body
    out += f'''.section .rodata,"a"
.p2align 6
.amdhsa_kernel {KNAME}
  .amdhsa_next_free_vgpr 512
  .amdhsa_next_free_sgpr 102
  .amdhsa_accum_offset 256
  .amdhsa_group_segment_fixed_size 0
  .amdhsa_kernarg_size 88
  .amdhsa_user_sgpr_count 2
  .amdhsa_user_sgpr_kernarg_segment_ptr 1
  .amdhsa_system_sgpr_workgroup_id_x 1
.end_amdhsa_kernel
'''
    stats["ninstr"] = sum(1 for i in items if i.kind not in ("none", "label")); stats["vhigh"] = V.high
    return out, stats

if __name__ == "__main__":
    cfg = Cfg()
    outp = sys.argv[1]
    for a in sys.argv[2:]:
        k, v = a.split("=")
        setattr(cfg, k, int(v))
    s, st = build(cfg)
    open(outp, "w").write(s)
    print(st)
```

```python
import sys, math, struct
from core import *

NAME = "sequential_preLN__sliding_local_dilated__dense_activation_gelu__prompt"
KNAME = NAME + "_kernel"

FS      = 2048
WS_O    = 0
WS_H    = 4 << 20
WS_ST   = 8 << 20
WS_FL   = 9 << 20
WS_H1   = 10 << 20
WS_DBG  = 25 << 20
WS_SIZE = 26 << 20
FA0, FB0, FEP = 0, 512, 896

def f2u(x): return struct.unpack("<I", struct.pack("<f", x))[0]
def hx(x): return hex(x & 0xffffffff)
def fl(x): return hx(f2u(x))
C1 = -2.0 * math.sqrt(2.0 / math.pi) * math.log2(math.e)
C2 = C1 * 0.044715

sX, sWQ, sWO, sW1, sW2, sWS, sOUT = 28, 32, 36, 40, 44, 48, 52
sB1, sB2 = 14, 18
s_w, s_xg, s_j, s_rt, s_i16, s_R = 56, 57, 58, 59, 60, 61
s_t0, s_t1, s_t2, s_t3 = 62, 63, 64, 65
s_wl, s_xl0, s_xl2 = 66, 67, 68
s_nh, s_sh, s_i16c = 69, 70, 71
s_cw = 72
s_xs = (80, 85, 90)
s_m1, s_m2, s_m3, s_diag = 72, 74, 76, 78
s_odd, s_va0, s_va1, s_vb0, s_vb1, s_fa0, s_fa1 = 80, 82, 84, 86, 88, 90, 92
s_nonce = 94
s_k32 = 96
s_c4 = 97
s_sv = 98
s_rot = 99
s_stamp = 100
s_a, s_b, s_c, s_d = 4, 5, 6, 7
s_so, s_so2 = 8, 9
s_4k, s_8k, s_12k = 10, 11, 12
s_woG = 13
s_cnt = 16
s_woC = 17
s_b0, s_b1, s_b2, s_wg = 20, 21, 22, 23
s_woAl, s_woCl = 24, 25
def srd(n): return f"s[{n}:{n+3}]"
def sp(n): return f"s[{n}:{n+1}]"
def vr(a, n=1): return f"v{a}" if n == 1 else f"v[{a}:{a+n-1}]"
def ar(a, n=4): return f"a[{a}:{a+n-1}]"

def mask64(fn):
    m = 0
    for l in range(64):
        if fn(l): m |= 1 << l
    return m
def set_mask(s, m):
    return [f"s_mov_b32 s{s}, {hx(m & 0xffffffff)}", f"s_mov_b32 s{s+1}, {hx(m >> 32)}"]

L_X = 0; L_R = 81920; L_M = 159744
L_WA = 131072; L_WB = 81920; L_WC = 106496
L_EX2 = 131072; L_S = 131072
LDS_SIZE = 163840
KPOLL = 64

class Cfg:
    stop_after = 4
    stamps = 0
    rotate = 4
    codepf = 1
    touch = 1
    endsleep = 0
    startsleep = 0
    jshift = 0
    w1a_early = 8
    d3 = 14
    d4 = 7
    capB = 6
    capC = 8
    pktail = 1
    u16 = 1
    crem = 40
    stage = 0
    g1c = 1
    touch_at = 9
    touch_step = 1
    touch_wo = 5
    burst = 0
    latevm = 9
    rt = 0
class G: pass

def stamp(p, g, idx):
    if not g.cfg.stamps: return
    p(f"s_mem{'real' if g.cfg.rt else ''}time {sp(s_stamp)}")
    p("s_waitcnt lgkmcnt(0)")
    p(f"v_writelane_b32 v{g.vstamp}, s{s_stamp}, {idx}")

def make_srd(s, base, nbytes):
    return [f"s_mov_b32 s{s}, s{base}", f"s_and_b32 s{s+1}, s{base+1}, 0xffff",
            f"s_mov_b32 s{s+2}, {nbytes}", f"s_mov_b32 s{s+3}, 0x00020000"]

def frag_lane(p, dst, tmp):
    p(f"v_add_u32 v{tmp}, 40, v0"); p(f"v_bfe_u32 v{tmp}, v{tmp}, 6, 1"); p(f"v_lshlrev_b32 v{tmp}, 7, v{tmp}")
    p(f"v_lshl_add_u32 v{dst}, v0, 4, v{tmp}")

def soff_for(idx):
    so = ["0", f"s{s_4k}", f"s{s_8k}", f"s{s_12k}"][idx >> 1]
    return so, (f" offset:{FS}" if idx & 1 else "")

def m16k32(d, A, B, c): return f"v_mfma_f32_16x16x32_bf16 {vr(d,4)}, {A}, {B}, {c}"
def m16k16(d, A, B, c): return f"v_mfma_f32_16x16x16_bf16 {vr(d,4)}, {vr(A,2)}, {vr(B,2)}, {c}"
def m32(d, A, B, c): return f"v_mfma_f32_32x32x16_bf16 {d}, {A}, {B}, {c}"

def prologue(p, g):
    cfg, V = g.cfg, g.V
    p("s_cmp_ge_u32 s2, 256")
    p("s_cbranch_scc1 L_end")
    p("s_load_dwordx16 s[4:19], s[0:1], 0")
    p("s_load_dwordx4 s[20:23], s[0:1], 64")
    p("s_load_dwordx2 s[24:25], s[0:1], 80")
    p("s_getpc_b64 s[26:27]")
    p.label("L_pc")
    p("v_lshrrev_b32 v1, 6, v0")
    p("v_and_b32 v0, 63, v0")
    p(f"v_readfirstlane_b32 s{s_w}, v1")
    p(f"s_lshr_b32 s{s_t0}, s2, 3")
    if cfg.codepf:
        p(f"s_lshl_b32 s{s_t1}, s{s_t0}, 2")
        p(f"s_add_u32 s{s_t1}, s{s_t1}, s{s_w}")
        p(f"s_lshl_b32 s{s_t1}, s{s_t1}, 8")
        p("v_lshlrev_b32 v1, 2, v0")
        p(f"v_add_u32 v1, s{s_t1}, v1")
        p(f"s_mov_b32 s{s_t1}, L_code_end-L_pc-4")
        p(f"v_min_u32 v1, s{s_t1}, v1")
        p(f"global_load_dword v{g.vdummy}, v1, s[26:27]")
    p(f"s_and_b32 s{s_xg}, s2, 7")
    if cfg.jshift:
        p(f"s_add_u32 s{s_j}, s{s_t0}, {cfg.jshift}"); p(f"s_and_b32 s{s_j}, s{s_j}, 7")
        p(f"s_and_b32 s{s_i16}, s{s_t0}, 8"); p(f"s_or_b32 s{s_i16}, s{s_i16}, s{s_j}")
    else:
        p(f"s_and_b32 s{s_j}, s{s_t0}, 7")
        p(f"s_and_b32 s{s_i16}, s{s_t0}, 15")
    p(f"s_lshr_b32 s{s_c4}, s{s_t0}, 3")
    p(f"s_lshl_b32 s{s_rt}, s{s_xg}, 2")
    p(f"s_add_u32 s{s_rt}, s{s_rt}, s{s_c4}")
    p(f"s_lshr_b32 s{s_R}, s{s_rt}, 1")
    p(f"s_lshr_b32 s{s_nh}, s{s_w}, 1"); p(f"s_and_b32 s{s_sh}, s{s_w}, 1")
    if cfg.rotate == 2:
        p(f"s_lshl_b32 s{s_rot}, s{s_c4}, 1"); p(f"s_add_u32 s{s_rot}, s{s_rot}, s{s_j}"); p(f"s_add_u32 s{s_rot}, s{s_rot}, s{s_xg}")
        p(f"s_and_b32 s{s_rot}, s{s_rot}, 7")
    elif cfg.rotate == 3:
        p(f"s_lshl_b32 s{s_rot}, s{s_c4}, 1"); p(f"s_add_u32 s{s_rot}, s{s_rot}, s{s_xg}")
        p(f"s_and_b32 s{s_rot}, s{s_rot}, 7")
    elif cfg.rotate == 4:
        p(f"s_lshl_b32 s{s_rot}, s{s_c4}, 1"); p(f"s_cmp_eq_u32 s{s_j}, 3"); p(f"s_cselect_b32 s{s_rot}, s{s_rot}, 0")
        p(f"s_add_u32 s{s_rot}, s{s_rot}, s{s_xg}"); p(f"s_and_b32 s{s_rot}, s{s_rot}, 7")
    elif cfg.rotate == 1: p(f"s_mov_b32 s{s_rot}, s{s_xg}")
    else: p(f"s_mov_b32 s{s_rot}, 0")
    rot = f"s{s_rot}"
    for i in range(8):
        p(f"s_add_u32 s{s_t0}, {rot}, {i}")
        p(f"s_and_b32 s{s_t0}, s{s_t0}, 7")
        p(f"s_mul_i32 s{s_cw+i}, s{s_t0}, 196608")

def xgroup_sregs(gi, st):
    b = s_xs[st]; P = s_t2
    o = [f"s_lshr_b32 s{s_t3}, s{s_j}, 1"]
    if gi == 0: o += [f"s_mov_b32 s{P}, 0"]
    elif gi == 1: o += [f"s_max_u32 s{P}, s{s_t3}, 1"]
    elif gi == 2: o += [f"s_cmp_le_u32 s{s_t3}, 1", f"s_cselect_b32 s{P}, 2, 1"]
    else: o += [f"s_cmp_eq_u32 s{s_t3}, 3", f"s_cselect_b32 s{P}, 2, 3"]
    o += [f"s_mul_i32 s{s_t3}, s{P}, 20480",
          f"s_add_u32 s{b}, s{s_xl0}, s{s_t3}", f"s_add_u32 s{b+1}, s{s_xl2}, s{s_t3}",
          f"s_lshl_b32 s{P}, s{P}, 1", f"s_add_u32 s{P}, s{P}, s{s_rot}",
          f"s_and_b32 s{s_t3}, s{P}, 7", f"s_lshl_b32 s{b+2}, s{s_t3}, 7",
          f"s_add_u32 s{P}, s{P}, 1", f"s_and_b32 s{s_t3}, s{P}, 7", f"s_lshl_b32 s{b+3}, s{s_t3}, 7",
          f"s_cmp_eq_u32 s{s_nh}, 0", f"s_cselect_b32 s{b+4}, s{b+2}, s{b+3}"]
    return o

def p1_addresses(p, g):
    V = g.V
    a = g.p1a = {k: V.alloc() for k in ["Wd0", "Wd1", "X0", "X1", "X2", "Xr0", "Xr1", "Ow0", "Ow1", "Hal", "Wr", "Wr2"]}
    t0, t1, t2, t3, t4 = t = [V.alloc() for _ in range(5)]
    p(f"v_lshrrev_b32 v{t0}, 3, v0")
    p(f"s_lshl_b32 s{s_t0}, s{s_w}, 4")
    p(f"v_add_u32 v{t1}, s{s_t0}, v{t0}")
    p(f"v_mul_u32_u24 v{t1}, 3072, v{t1}")
    p(f"v_bfe_u32 v{t2}, v0, 1, 2")
    p(f"v_bfe_u32 v{t3}, v0, 4, 1")
    p(f"v_xor_b32 v{t2}, v{t2}, v{t3}")
    p(f"v_lshlrev_b32 v{t2}, 5, v{t2}")
    p(f"v_and_b32 v{t3}, 1, v0")
    p(f"v_lshlrev_b32 v{t3}, 4, v{t3}")
    p(f"v_add3_u32 v{t1}, v{t1}, v{t2}, v{t3}")
    p(f"s_lshl_b32 s{s_t1}, s{s_j}, 7")
    p(f"v_add_u32 v{a['Wd0']}, s{s_t1}, v{t1}")
    p(f"v_xor_b32 v{a['Wd1']}, 64, v{a['Wd0']}")
    p(f"v_add_u32 v{a['Wd1']}, {8*3072}, v{a['Wd1']}")
    p(f"s_lshl_b32 s{s_wl}, s{s_w}, 11")
    p(f"s_add_u32 s{s_wl}, s{s_wl}, {L_R}")
    p(f"s_lshl_b32 s{s_t1}, s{s_sh}, 2")
    p(f"v_lshrrev_b32 v{t1}, 4, v0")
    p(f"v_add_u32 v{t1}, s{s_t1}, v{t1}")
    p(f"v_and_b32 v{t2}, 7, v0")
    p(f"v_xor_b32 v{t1}, v{t1}, v{t2}")
    p(f"v_lshlrev_b32 v{t1}, 4, v{t1}")
    p(f"v_lshl_add_u32 v{t1}, v{t0}, 10, v{t1}")
    p(f"s_lshl_b32 s{s_t1}, s{s_rt}, 6")
    p(f"s_lshl_b32 s{s_t2}, s{s_w}, 3")
    p(f"s_add_u32 s{s_t2}, s{s_t1}, s{s_t2}")
    p(f"s_sub_i32 s{s_t3}, s{s_t2}, 16")
    p(f"s_max_i32 s{s_t3}, s{s_t3}, 0")
    p(f"s_lshl_b32 s{s_t3}, s{s_t3}, 10")
    p(f"v_add_u32 v{a['X0']}, s{s_t3}, v{t1}")
    p(f"s_add_u32 s{s_t3}, s{s_t2}, 16")
    p(f"s_lshl_b32 s{s_t3}, s{s_t3}, 10")
    p(f"v_add_u32 v{a['X1']}, s{s_t3}, v{t1}")
    p(f"s_lshl_b32 s{s_t2}, s{s_sh}, 3")
    p(f"s_add_u32 s{s_t3}, s{s_t1}, s{s_t2}")
    p(f"s_add_u32 s{s_t3}, s{s_t3}, 48")
    p(f"s_lshl_b32 s{s_t3}, s{s_t3}, 10")
    p(f"v_add_u32 v{a['X2']}, s{s_t3}, v{t1}")
    p(f"s_lshl_b32 s{s_xl0}, s{s_w}, 10")
    p(f"s_mul_i32 s{s_xl2}, s{s_nh}, 10240")
    p(f"s_lshl_b32 s{s_t2}, s{s_sh}, 10")
    p(f"s_add_u32 s{s_xl2}, s{s_xl2}, s{s_t2}")
    p(f"s_add_u32 s{s_xl2}, s{s_xl2}, 8192")
    p(f"v_and_b32 v{t0}, 15, v0")
    p(f"v_lshrrev_b32 v{t1}, 4, v0")
    p(f"v_lshrrev_b32 v{t2}, 1, v{t0}")
    p(f"v_xor_b32 v{t2}, v{t2}, v{t1}")
    p(f"v_lshlrev_b32 v{t2}, 4, v{t2}")
    p(f"v_lshl_add_u32 v{a['Xr0']}, v{t0}, 7, v{t2}")
    p(f"v_xor_b32 v{a['Xr1']}, 64, v{a['Xr0']}")
    p(f"s_add_u32 s{s_t2}, s{s_w}, 1")
    p(f"s_lshl_b32 s{s_t2}, s{s_t2}, 11")
    p(f"v_add_u32 v{a['Ow0']}, s{s_t2}, v{a['Xr0']}")
    p(f"v_add_u32 v{a['Ow1']}, s{s_t2}, v{a['Xr1']}")
    p(f"s_lshl_b32 s{s_t2}, s{s_sh}, 6")
    p(f"v_xor_b32 v{a['Hal']}, s{s_t2}, v{a['Xr0']}")
    p(f"s_mul_i32 s{s_t2}, s{s_nh}, 10240")
    p(f"v_add_u32 v{a['Hal']}, s{s_t2}, v{a['Hal']}")
    p(f"v_lshrrev_b32 v{t2}, 2, v{t0}")
    p(f"v_lshl_add_u32 v{t2}, v{t1}, 3, v{t2}")
    p(f"v_lshlrev_b32 v{t2}, 7, v{t2}")
    p(f"v_bfe_u32 v{t3}, v0, 3, 1")
    p(f"v_bfe_u32 v{t4}, v0, 4, 1")
    p(f"v_lshl_add_u32 v{t3}, v{t4}, 1, v{t3}")
    p(f"v_xor_b32 v{t3}, s{s_w}, v{t3}")
    p(f"v_lshl_add_u32 v{t2}, v{t3}, 5, v{t2}")
    p(f"v_and_b32 v{t3}, 3, v0")
    p(f"v_lshl_add_u32 v{t2}, v{t3}, 3, v{t2}")
    p(f"v_add_u32 v{a['Wr']}, {L_R}, v{t2}")
    p(f"v_add_u32 v{a['Wr2']}, 49152, v{a['Wr']}")
    for r in t: V.free(r)

def dma_w(g, i):
    a = g.p1a; out = []
    slot = i % 3
    for X in range(3):
        for e in range(2):
            off = f" offset:{X*1024}" if X else ""
            out.append((f"s_add_u32 m0, s{s_wl}, {slot*24576 + X*7168 + e*1024}",
                        T(f"buffer_load_dwordx4 v{a['Wd%d' % e]}, {srd(sWQ)}, s{s_cw+i} offen{off} lds", f"W{i}")))
    return out

def dma_x(g, gi, st):
    a = g.p1a; b = s_xs[st]; tag = f"G{gi}"
    out = []
    for ii in range(2):
        out.append((f"s_add_u32 m0, s{b}, {L_X + ii*10240}", T(f"buffer_load_dwordx4 v{a['X0']}, {srd(sX)}, s{b+2+ii} offen lds", tag)))
        out.append((f"s_add_u32 m0, s{b}, {L_X + ii*10240 + 4096}", T(f"buffer_load_dwordx4 v{a['X1']}, {srd(sX)}, s{b+2+ii} offen lds", tag)))
    out.append((f"s_mov_b32 m0, s{b+1}", T(f"buffer_load_dwordx4 v{a['X2']}, {srd(sX)}, s{b+4} offen lds", tag)))
    return out

def pairs_with_sep(pairs, seps, after=2):
    out = []
    for pre, dma in pairs:
        pre = pre if isinstance(pre, list) else [pre]
        out += pre
        if len(pre) == 1 and seps: out.append(seps.pop(0))
        out.append(dma)
        for _ in range(after):
            if seps: out.append(seps.pop(0))
    return out

def fifo_pairs(pairs):
    out = []
    for pre, dma in pairs:
        out += pre if isinstance(pre, list) else [pre]
        out += dma if isinstance(dma, list) else [dma]
    return out

def dma_group(regs, sr, m0expr, soexpr, n, tag, so):
    pre = [m0expr, soexpr]
    out = []
    for e in range(n):
        off = f" offset:{e*1024}" if e else ""
        ins = T(f"buffer_load_dwordx4 v{regs[e]}, {srd(sr)}, s{so} offen{off} lds", tag)
        out.append((pre if e == 0 else [], ins))
    return out

def wo_piece(g, which):
    out = []
    if which < 2:
        for q0, n in ((0, 4), (4, 2)):
            out += dma_group(g.vW2e, sWO, f"s_add_u32 m0, s{s_woAl}, {(L_WA, L_WB)[which] - L_WA + q0*1024}",
                             f"s_add_u32 s{s_so}, s{s_woG}, {which*96*1024 + q0*8192}", n, "wo", s_so)
    else:
        out += dma_group(g.vW2e, sWO, f"s_mov_b32 m0, s{s_woCl}", f"s_mov_b32 s{s_so}, s{s_woC}", 4, "wo", s_so)
    return out

def w1_dma(g, half, us):
    out = []
    us = list(us)
    for u0 in us[::4]:
        out += dma_group(g.vW1e, sW1, f"s_add_u32 m0, s{s_b1}, {half*65536 + u0*1024}", f"s_mov_b32 s{s_so2}, {u0*8*3584 + half*128}", 4,
                         "w1a" if half == 0 else "w1b", s_so2)
    return out

def w2_slot(s):
    if s < 3: return (0, s * 2048)
    if s < 11: return (1, (s - 3) * 2048)
    return (2, (s - 11) * 2048)

def w2_dma_to(g, u, slot, n=1):
    grp, off = w2_slot(slot)
    sb = (s_b0, s_b1, s_b2)[grp]
    res = dma_group(g.vW2e, sW2, f"s_add_u32 m0, s{sb}, {off}", f"s_add_u32 s{s_so}, s{s_wg}, {16*u*1024}", 2*n, None, s_so)
    return [(pre, T(ins[1], f"w2_{u + e//2}")) for e, (pre, ins) in enumerate(res)]

def w2_range(g, u0, slot0, count):
    out = []
    for k_ in range(0, count, 2): out += w2_dma_to(g, u0 + k_, slot0 + k_, min(2, count - k_))
    return out

def setup_ops(g):
    V = g.V; cfg = g.cfg
    p = Prog()
    for s, b, n in ((sWS, 24, WS_SIZE), (sWO, 8, 512*512*2), (sW1, 12, 512*1792*2), (sW2, 16, 1792*512*2), (sOUT, 20, 2048*512*2)):
        p.add(make_srd(s, b, n))
    p(f"s_lshr_b32 s{s_a}, s{s_i16}, 3"); p(f"s_mul_i32 s{s_a}, s{s_a}, 7"); p(f"s_add_u32 s{s_i16c}, s{s_a}, s{s_j}")
    p(f"s_add_u32 s{s_a}, s{s_j}, 4"); p(f"s_lshr_b32 s{s_a}, s{s_a}, 3")
    p(f"s_sub_u32 s{s_i16c}, s{s_i16c}, s{s_a}")
    p(f"s_mov_b32 s{s_4k}, 4096"); p(f"s_mov_b32 s{s_8k}, 8192"); p(f"s_mov_b32 s{s_12k}, 12288"); p(f"s_mov_b32 s{s_k32}, 65536")
    p(f"s_lshl_b32 s{s_woG}, s{s_nh}, 8"); p(f"s_mul_i32 s{s_a}, s{s_sh}, 48"); p(f"s_add_u32 s{s_woG}, s{s_woG}, s{s_a}"); p(f"s_lshl_b32 s{s_woG}, s{s_woG}, 10")
    p(f"s_lshl_b32 s{s_woC}, s{s_nh}, 8"); p(f"s_lshl_b32 s{s_a}, s{s_sh}, 5"); p(f"s_add_u32 s{s_woC}, s{s_woC}, s{s_a}"); p(f"s_add_u32 s{s_woC}, s{s_woC}, 192"); p(f"s_lshl_b32 s{s_woC}, s{s_woC}, 10")
    p(f"s_mul_i32 s{s_woAl}, s{s_w}, 6144"); p(f"s_add_u32 s{s_woAl}, s{s_woAl}, {L_WA}")
    p(f"s_lshl_b32 s{s_woCl}, s{s_w}, 12"); p(f"s_add_u32 s{s_woCl}, s{s_woCl}, {L_WC}")
    p(f"s_mul_i32 s{s_b0}, s{s_w}, 7168"); p(f"s_add_u32 s{s_b0}, s{s_b0}, {L_S}")
    p(f"s_lshl_b32 s{s_b1}, s{s_w}, 14"); p(f"s_add_u32 s{s_b2}, s{s_b1}, 65536")
    p(f"s_mul_i32 s{s_wg}, s{s_w}, {448*1024}")
    g.vW1e = [V.alloc() for _ in range(4)]; g.vW2e = [V.alloc() for _ in range(4)]
    g.vW1d, g.vW2d = g.vW1e[0], g.vW2e[0]
    t0, t1, t2 = V.alloc(), V.alloc(), V.alloc()
    p(f"v_and_b32 v{t0}, 7, v0")
    p(f"v_lshrrev_b32 v{t1}, 2, v{t0}")
    p(f"v_bfe_u32 v{t2}, v0, 4, 1")
    p(f"v_xor_b32 v{t1}, v{t1}, v{t2}")
    p(f"v_and_b32 v{t0}, 3, v{t0}")
    p(f"v_lshl_add_u32 v{t0}, v{t1}, 2, v{t0}")
    p(f"v_lshlrev_b32 v{t0}, 4, v{t0}")
    p(f"v_lshrrev_b32 v{t1}, 3, v0")
    p(f"v_lshl_add_u32 v{t2}, v{t1}, 10, v{t0}")
    p(f"s_lshl_b32 s{s_a}, s{s_j}, 7")
    p(f"v_add_u32 v{g.vW2d}, s{s_a}, v{t2}")
    p(f"v_mul_u32_u24 v{t1}, 3584, v{t1}")
    p(f"v_add_u32 v{t1}, v{t1}, v{t0}")
    p(f"s_mul_i32 s{s_a}, s{s_w}, {16*8*3584}")
    p(f"s_lshl_b32 s{s_b}, s{s_i16c}, 8")
    p(f"s_add_u32 s{s_a}, s{s_a}, s{s_b}")
    p(f"v_add_u32 v{g.vW1d}, s{s_a}, v{t1}")
    for e in range(1, 4):
        p(f"v_add_u32 v{g.vW1e[e]}, {e*(8*3584 - 1024)}, v{g.vW1d}")
        p(f"v_add_u32 v{g.vW2e[e]}, {e*(8192 - 1024)}, v{g.vW2d}")
    g.vFl = V.alloc(); g.vMyFl = V.alloc(); g.vEp = V.alloc(2)
    p(f"s_lshl_b32 s{s_a}, s{s_R}, 10")
    p(f"s_add_u32 s{s_a}, s{s_a}, {WS_FL}")
    p(f"v_and_b32 v{t0}, 15, v0")
    p(f"v_lshlrev_b32 v{t0}, 3, v{t0}")
    p(f"v_add_u32 v{g.vFl}, s{s_a}, v{t0}")
    p(f"s_lshl_b32 s{s_b}, s{s_i16}, 3")
    p(f"s_add_u32 s{s_b}, s{s_b}, s{s_a}")
    p(f"v_mov_b32 v{g.vMyFl}, s{s_b}")
    late = g.late_vm = []; g.late_regs = []
    def keep():
        r = V.alloc(); g.late_regs.append(r); return r
    r = keep()
    p(f"v_mov_b32 v{r}, s{s_a}")
    late.append(T(f"buffer_load_dwordx2 {vr(g.vEp,2)}, v{r}, {srd(sWS)}, 0 offen offset:{FEP} sc1", "ep"))
    r = keep()
    p(f"v_min_u32 v{r}, 2, v0")
    p(f"v_lshlrev_b32 v{r}, 7, v{r}")
    p(f"v_add_u32 v{r}, s{s_a}, v{r}")
    late.append(T(f"buffer_load_dword v{g.vdummy}, v{r}, {srd(sWS)}, 0 offen", "warm"))
    g.vB1 = V.alloc(4); g.vB2 = V.alloc(8)
    g.touches = {}
    if cfg.touch:
        ra, rb, rc = keep(), keep(), keep()
        p(f"s_lshl_b32 s{s_a}, s2, 2"); p(f"s_add_u32 s{s_a}, s{s_a}, s{s_w}")
        p(f"v_lshlrev_b32 v{rc}, 4, v0")
        p(f"s_mul_i32 s{s_b}, s{s_a}, 1792"); p(f"v_add_u32 v{rb}, s{s_b}, v{rc}")
        p(f"s_lshl_b32 s{s_b}, s{s_a}, 9"); p(f"v_add_u32 v{ra}, s{s_b}, v{rc}")
        p(f"v_mov_b32 v{t2}, 0x7ffffff0")
        p(f"v_cmp_gt_u32 vcc, 32, v0"); p(f"v_add_u32 v{rc}, 1024, v{rb}"); p(f"s_nop 0"); p(f"v_cndmask_b32 v{ra}, v{t2}, v{ra}, vcc")
        p(f"v_cmp_gt_u32 vcc, 48, v0"); p(f"s_nop 1"); p(f"v_cndmask_b32 v{rc}, v{t2}, v{rc}, vcc")
        D4 = vr(g.vdummy, 4)
        def tl(sr, r): return [T(f"buffer_load_dwordx4 {D4}, v{r}, {srd(sr)}, 0 offen", "touch")]
        t = cfg.touch_at
        st_ = cfg.touch_step
        g.touches = {}
        for q_, ops_ in enumerate((tl(sW1, rb), tl(sW1, rc), tl(sW2, rb), tl(sW2, rc))): g.touches.setdefault(t + q_*st_, []).extend(ops_)
        g.touches.setdefault(cfg.touch_wo, []).extend(tl(sWO, ra))
    r = keep()
    p(f"v_and_b32 v{r}, 31, v0")
    p(f"v_lshlrev_b32 v{r}, 1, v{r}")
    p(f"s_lshl_b32 s{s_a}, s{s_i16c}, 8")
    p(f"v_add_u32 v{r}, s{s_a}, v{r}")
    for nt in range(4):
        late.append(T(f"global_load_ushort v{g.vB1+nt}, v{r}, {sp(sB1)} offset:{nt*64}", "b1"))
    r = keep()
    p(f"v_lshrrev_b32 v{r}, 5, v0")
    p(f"v_lshlrev_b32 v{r}, 3, v{r}")
    p(f"s_lshl_b32 s{s_a}, s{s_j}, 7")
    p(f"s_lshl_b32 s{s_b}, s{s_nh}, 6")
    p(f"s_add_u32 s{s_a}, s{s_a}, s{s_b}")
    p(f"v_add_u32 v{r}, s{s_a}, v{r}")
    for q in range(4):
        late.append(T(f"global_load_dwordx2 {vr(g.vB2+2*q,2)}, v{r}, {sp(sB2)} offset:{q*16}", "b2"))
    E = g.e1 = {}
    for k in ("NEG", "SelLo", "SelHi", "C512", "A1", "A2", "A3", "O", "O1"): E[k] = V.alloc()
    E["C8"] = V.alloc(2); E["XR"] = V.alloc(4)
    p(f"v_mov_b32 v{E['NEG']}, 0xff800000")
    p(f"v_and_b32 v{t0}, 1, v0")
    p(f"v_cmp_eq_u32 vcc, 1, v{t0}")
    p(f"v_mov_b32 v{E['SelLo']}, 0x0c0c0100"); p(f"v_mov_b32 v{t1}, 0x01000c0c")
    p(f"v_cndmask_b32 v{E['SelLo']}, v{E['SelLo']}, v{t1}, vcc")
    p(f"v_mov_b32 v{E['SelHi']}, 0x0c0c0302"); p(f"v_mov_b32 v{t1}, 0x03020c0c")
    p(f"v_cndmask_b32 v{E['SelHi']}, v{E['SelHi']}, v{t1}, vcc")
    p(f"v_mov_b32 v{E['C512']}, {fl(1/512)}")
    p(f"v_mov_b32 v{E['C8']}, 0x3e003e00"); p(f"v_mov_b32 v{E['C8']+1}, 0x3e003e00")
    p(f"v_and_b32 v{E['A3']}, 15, v0"); p(f"v_lshlrev_b32 v{E['A3']}, 3, v{E['A3']}"); p(f"v_add_u32 v{E['A3']}, {L_M}, v{E['A3']}")
    p(f"s_add_u32 s{s_a}, s{s_w}, 1"); p(f"s_lshl_b32 s{s_a}, s{s_a}, 7"); p(f"v_add_u32 v{E['A1']}, s{s_a}, v{E['A3']}")
    p(f"s_lshl_b32 s{s_a}, s{s_w}, 7"); p(f"s_add_u32 s{s_a}, s{s_a}, 1024"); p(f"v_add_u32 v{E['A2']}, s{s_a}, v{E['A3']}")
    p(f"v_and_b32 v{t0}, 15, v0"); p(f"v_bfe_u32 v{t1}, v0, 5, 1"); p(f"v_mul_u32_u24 v{t1}, 640, v{t1}")
    p(f"v_lshl_add_u32 v{t1}, v{t0}, 4, v{t1}"); p(f"v_bfe_u32 v{t2}, v0, 4, 1"); p(f"v_lshl_add_u32 v{t1}, v{t2}, 3, v{t1}")
    p(f"s_lshl_b32 s{s_a}, s{s_j}, 2"); p(f"s_add_u32 s{s_a}, s{s_a}, s{s_w}"); p(f"s_lshl_b32 s{s_a}, s{s_a}, 11")
    p(f"s_lshl_b32 s{s_b}, s{s_rt}, 17"); p(f"s_add_u32 s{s_a}, s{s_a}, s{s_b}")
    p(f"v_add_u32 v{E['O']}, s{s_a}, v{t1}")
    p(f"v_bfe_u32 v{t0}, v0, 3, 1"); p(f"v_bfe_u32 v{t2}, v0, 5, 1"); p(f"v_xor_b32 v{t2}, 1, v{t2}"); p(f"v_and_b32 v{t0}, v{t0}, v{t2}")
    p(f"v_lshlrev_b32 v{t0}, 7, v{t0}"); p(f"v_add_u32 v{t0}, 256, v{t0}"); p(f"v_add_u32 v{E['O1']}, v{E['O']}, v{t0}")
    p(f"s_lshl_b32 s{s_a}, s{s_sh}, 5"); p(f"s_add_u32 s{s_a}, s{s_a}, 16")
    p(f"v_and_b32 v{t0}, 31, v0"); p(f"v_add_u32 v{t0}, s{s_a}, v{t0}")
    p(f"v_bfe_u32 v{t1}, v{t0}, 1, 3")
    p(f"s_lshl_b32 s{s_b}, s{s_nh}, 2"); p(f"v_xor_b32 v{t1}, s{s_b}, v{t1}")
    p(f"s_sub_u32 s{s_c}, s{s_j}, s{s_rot}"); p(f"s_and_b32 s{s_c}, s{s_c}, 7")
    p(f"s_mul_i32 s{s_c}, s{s_c}, 10240")
    p(f"v_lshrrev_b32 v{t2}, 5, v0"); p(f"v_lshlrev_b32 v{t2}, 3, v{t2}")
    p(f"v_lshl_add_u32 v{t2}, v{t0}, 7, v{t2}"); p(f"v_add_u32 v{t2}, s{s_c}, v{t2}")
    for q in range(4):
        p(f"v_xor_b32 v{t0}, {q}, v{t1}")
        p(f"v_lshl_add_u32 v{E['XR']+q}, v{t0}, 4, v{t2}")
    for r in (t0, t1, t2): V.free(r)
    for r in range(4): p(f"v_mov_b32 v{g.ones+r}, 0x3f803f80")
    return p.items

def phase1(p, g):
    V = g.V; a = g.p1a; ones = g.ones
    FB = [V.alloc(36), V.alloc(36)]
    def fx(b, t): return FB[b] + 4 * t
    def fw(b, X): return FB[b] + 24 + 4 * X
    hal = V.alloc(4)
    Q = {t: V.alloc(4) for t in range(1, 5)}
    K = {t: V.alloc(4) for t in range(5)}
    Vv = {t: V.alloc(4) for t in range(5)}
    cs = [V.alloc(4) for _ in range(3)]
    sumO, gramO, sumH, gramH = (V.alloc(4) for _ in range(4))
    g.xres = xres = V.alloc(8)
    E = g.e1

    def reads(n):
        i, s_ = n >> 1, n & 1
        b = n & 1
        xo = (i * 10240 if i < 6 else (i - 6) * 10240)
        slot = i % 3
        wreg, wo = (a['Wr'], slot * 24576) if slot < 2 else (a['Wr2'], 0)
        xr, ow = a['Xr%d' % s_], a['Ow%d' % s_]
        def wr(X): return [f"ds_read_b64_tr_b16 {vr(fw(b, X) + 2*rd, 2)}, v{wreg} offset:{wo + X*8192 + s_*4096 + rd*512}" for rd in range(2)]
        out = wr(1)
        out += [f"ds_read_b128 {vr(fx(b, t), 4)}, v{xr} offset:{xo + t*2048}" for t in range(5)]
        out += wr(2) + wr(0)
        out += [f"ds_read_b128 {vr(fx(b, 5), 4)}, v{ow} offset:{xo}"]
        return out
    O4 = vr(ones, 4)
    def mf(d, A, B, first): return m16k32(d, A, B, "0" if first else vr(d, 4))
    def mfmas(n):
        b = n & 1; f = n == 0
        x = lambda t: vr(fx(b, t), 4); w = lambda X: vr(fw(b, X), 4)
        out = [mf(K[t], w(1), x(t), f) for t in range(5)]
        out.append(mf(cs[1], O4, w(1), f))
        out += [mf(Vv[t], x(t), w(2), f) for t in range(5)]
        out.append(mf(cs[2], O4, w(2), f))
        out += [mf(Q[t], w(0), x(t), f) for t in range(1, 5)]
        out.append(mf(cs[0], O4, w(0), f))
        out.append(mf(sumO, O4, x(5), f))
        out.append(mf(gramO, x(5), x(5), f))
        return out
    masks = []
    masks += set_mask(s_m1, mask64(lambda l: (l & 3) == 1)) + set_mask(s_m2, mask64(lambda l: (l & 3) == 2)) + set_mask(s_m3, mask64(lambda l: (l & 3) == 3))
    masks += set_mask(s_diag, mask64(lambda l: (l >> 4) == ((l & 15) >> 2))) + set_mask(s_odd, mask64(lambda l: l & 1))
    masks += set_mask(s_va0, mask64(lambda l: 4*(l >> 4) + (l & 1) >= (l & 15) + 2))
    masks += set_mask(s_va1, mask64(lambda l: 4*(l >> 4) + (l & 1) + 2 >= (l & 15) + 2))
    masks += set_mask(s_vb0, mask64(lambda l: 4*(l >> 4) + (l & 1) <= (l & 15)))
    masks += set_mask(s_vb1, mask64(lambda l: 4*(l >> 4) + (l & 1) + 2 <= (l & 15)))
    masks += [f"s_cmp_eq_u32 s{s_rt}, 0", f"s_cselect_b64 {sp(s_fa0)}, 0, {sp(s_va0)}", f"s_cselect_b64 {sp(s_fa1)}, 0, {sp(s_va1)}"]

    p.wait_vm(["G0", "W0"]); p("s_barrier")
    stamp(p, g, 1)
    p.add(reads(0))
    for n in range(16):
        i, s_ = n >> 1, n & 1
        if s_ == 1 and i < 7:
            tags = [f"W{i+1}"] + {1: ["G1", "G2"], 3: ["G3"]}.get(i, [])
            p.wait_lgkm0(); p.wait_vm(tags); p("s_barrier")
            if g.cfg.stamps >= 2: stamp(p, g, 22 + i)
        else:
            p.wait_lgkm0()
        m = mfmas(n)
        rd = []
        if n == 11: rd += [f"v_add_u32 v{a[k]}, 61440, v{a[k]}" for k in ("Xr0", "Xr1", "Ow0", "Ow1")]
        if n < 15: rd += reads(n + 1)
        if n % 4 == 2:
            pr = n // 4
            if pr == 3: rd.append(f"v_add_u32 v{a['Hal']}, 61440, v{a['Hal']}")
            rd.append(f"ds_read_b128 {vr(hal,4)}, v{a['Hal']} offset:{pr * 20480 if pr < 3 else 0}")
        if n % 4 == 3:
            m.append(mf(sumH, O4, vr(hal, 4), n == 3)); m.append(mf(gramH, vr(hal, 4), vr(hal, 4), n == 3))
        dm = []
        if s_ == 1 and i + 3 < 8: dm = dma_w(g, i + 3)
        if n == 0:
            if g.cfg.burst == 0: dm = dma_x(g, 2, 2) + dma_w(g, 2)
            if g.cfg.burst == 1: dm = dma_w(g, 1) + dma_w(g, 2) + dma_x(g, 2, 2)
            if g.cfg.burst == 2: dm = dma_w(g, 1) + dma_x(g, 1, 1) + dma_w(g, 2)
        if n == 1 and g.cfg.burst == 2: dm = dma_x(g, 2, 2) + dm
        if n == 2: dm = dma_x(g, 3, 0)
        if n == 11 and g.cfg.stop_after >= 2: dm = wo_piece(g, 0)
        if n == 13 and g.cfg.stop_after >= 2: dm = wo_piece(g, 1)
        extra = []
        if n == 1: extra = xgroup_sregs(3, 0)
        if n == g.cfg.latevm + 1:
            extra = extra + list(g.late_vm)
        if n == 12: extra = extra + masks[:16]
        if n == 14:
            extra = masks[16:] + [f"ds_read_b64 {vr(xres + 2*q, 2)}, v{E['XR']+q} offset:{L_X}" for q in range(4)]
        fixed = {}
        for k, r in enumerate(rd): fixed.setdefault(min(k, len(m) - 4), []).append(r)
        ng = len(m) - 1
        for k, (pre, dma) in enumerate(dm):
            gk = min(ng - 1, (k * (ng - 1)) // max(1, len(dm) - (0 if len(dm) < ng else 1)))
            fixed.setdefault(gk, []).extend(pre if isinstance(pre, list) else [pre])
            fixed.setdefault(gk + 1, []).insert(0, dma)
        if g.cfg.touch and n in g.touches: fixed.setdefault(len(m) - 2, []).extend(g.touches[n])
        seq, _ = weave(m, fixed, atomize_scc(extra), cap=2)
        p.add(seq)
    g.p1 = dict(Q=Q, K=K, V=Vv, cs=cs, sumO=sumO, gramO=gramO, sumH=sumH, gramH=gramH)
    V.free(FB[0], 36); V.free(FB[1], 36); V.free(hal, 4); V.free(E["XR"], 4)
    for k in a: V.free(a[k])
    for r in g.late_regs: V.free(r)

def split_hi_lo(val, dst, t0, t1, dup):
    o = [f"v_cvt_pk_bf16_f32 v{t0}, v{val}, v{val}",
         f"v_and_b32 v{t0}, 0xffff0000, v{t0}",
         f"v_sub_f32 v{t1}, v{val}, v{t0}",
         f"v_cvt_pk_bf16_f32 v{dst}, v{t0}, v{t1}"]
    if dup: o.append(f"v_mov_b32 v{dst+1}, v{dst}")
    return o

def insert_dma(items, pairs, b, e):
    return spread_pairs(items, [(pre if isinstance(pre, list) else [pre], [dma]) for pre, dma in pairs], b, e)

def dma_fifo(pairs):
    out = []
    for pre, dma in pairs:
        pre = pre if isinstance(pre, list) else [pre]
        out += pre + [dma]
    return out

def phase1_epilogue(p0, g):
    V = g.V; P = g.p1; E = g.e1
    Q, K, Vv, cs = P["Q"], P["K"], P["V"], P["cs"]
    p = Prog()
    p.wait_lgkm0(); p("s_barrier")
    stamp(p, g, 2)
    i_start = len(p.items)
    PO, PH = V.alloc(2), V.alloc(2)
    for (dst, sm, gr) in ((PO, P["sumO"], P["gramO"]), (PH, P["sumH"], P["gramH"])):
        p(f"v_cndmask_b32 v{dst+1}, v{gr}, v{gr+1}, {sp(s_m1)}")
        p(f"v_mov_b32 v{dst}, v{sm}")
        p(f"v_cndmask_b32 v{dst+1}, v{dst+1}, v{gr+2}, {sp(s_m2)}")
        p(f"v_cndmask_b32 v{dst+1}, v{dst+1}, v{gr+3}, {sp(s_m3)}")
    p(f"s_mov_b64 exec, {sp(s_diag)}")
    p(f"ds_write_b64 v{E['A1']}, {vr(PO,2)}")
    p(f"ds_write_b64 v{E['A2']}, {vr(PH,2)}")
    p("s_mov_b64 exec, -1")
    for k in ("sumO", "gramO", "sumH", "gramH"): V.free(P[k], 4)
    V.free(PO, 2); V.free(PH, 2); V.free(E["A1"]); V.free(E["A2"])
    CA = [V.alloc(2) for _ in range(3)]
    tA, tB = V.alloc(), V.alloc()
    for X in range(3):
        p(f"v_cvt_pk_bf16_f32 v{CA[X]}, v{cs[X]}, v{cs[X]}")
        p(f"v_and_b32 v{tA}, 0xffff0000, v{CA[X]}")
        p(f"v_sub_f32 v{tB}, v{cs[X]}, v{tA}")
        p(f"v_cvt_pk_bf16_f32 v{CA[X]+1}, v{tB}, v{tB}")
    for X in range(3): V.free(cs[X], 4)
    p.wait_lgkm0(); p("s_barrier")
    ST = {t: V.alloc(2) for t in range(1, 5)}
    HP = [V.alloc(2) for _ in range(4)]
    for u in range(4): p(f"ds_read_b64 {vr(HP[u],2)}, v{E['A3']} offset:{1024 + u*128}")
    for t in range(1, 5): p(f"ds_read_b64 {vr(ST[t],2)}, v{E['A3']} offset:{t*128}")
    V.free(E["A3"])
    p(f"v_pk_add_f32 {vr(HP[0],2)}, {vr(HP[0],2)}, {vr(HP[1],2)}")
    p(f"v_pk_add_f32 {vr(HP[2],2)}, {vr(HP[2],2)}, {vr(HP[3],2)}")
    p(f"v_pk_add_f32 {vr(HP[0],2)}, {vr(HP[0],2)}, {vr(HP[2],2)}")
    ST[0] = HP[0]
    for u in range(1, 4): V.free(HP[u], 2)
    BM = {t: V.alloc(2) for t in range(5)}
    RS = {t: V.alloc(2) for t in range(5)}
    rstd = {t: V.alloc(2) for t in range(5)}
    streams = []; tmps = []
    for t in (1, 2, 3, 4, 0):
        a0, a1, a2, a3 = (V.alloc() for _ in range(4)); tmps += [a0, a1, a2, a3]
        sm, sq = ST[t], ST[t] + 1
        s = [f"v_mul_f32 v{a0}, {fl(-1/2048)}, v{sm}",
             f"v_fmaak_f32 v{a1}, v{sq}, v{E['C512']}, {fl(1e-5)}",
             f"v_mul_f32 v{a2}, v{E['C512']}, v{sm}",
             f"v_fma_f32 v{a1}, -v{a2}, v{a2}, v{a1}",
             f"v_rsq_f32 v{rstd[t]}, v{a1}"]
        s += split_hi_lo(a0, BM[t], a2, a3, True)
        s += split_hi_lo(rstd[t], RS[t], a2, a3, True)
        streams.append(s)
    p.add(zipmerge(*streams))
    for r in tmps: V.free(r)
    for t in range(5): V.free(ST[t], 2)
    V.free(E["C512"])
    RB = {t: V.alloc(4) for t in range(5)}
    for t in range(5): p(m16k16(K[t], CA[1], BM[t], vr(K[t], 4)))
    for t in range(1, 5): p(m16k16(Q[t], CA[0], BM[t], vr(Q[t], 4)))
    for t in range(5): p(m16k16(RB[t], RS[t], E["C8"], "0"))
    for t in range(5): p(m16k16(Vv[t], BM[t], CA[2], vr(Vv[t], 4)))
    for X in range(3): V.free(CA[X], 2)
    V.free(tA); V.free(tB); V.free(E["C8"], 2)
    for t in range(5): V.free(BM[t], 2); V.free(RS[t], 2)
    cq = {t: V.alloc() for t in range(1, 5)}
    for t in range(1, 5): p(f"v_mul_f32 v{cq[t]}, {fl(0.25*math.log2(math.e))}, v{rstd[t]}")
    Qp = {t: V.alloc(2) for t in range(1, 5)}
    Kp = {t: V.alloc(2) for t in range(5)}
    Vp = V.alloc(10)
    st = []
    for t in range(5):
        s = [f"v_mul_f32 v{K[t]+r}, v{rstd[t]}, v{K[t]+r}" for r in range(4)]
        s += [f"v_cvt_pk_bf16_f32 v{Kp[t]+h}, v{K[t]+2*h}, v{K[t]+2*h+1}" for h in range(2)]
        if t >= 1: s += [f"v_cvt_pk_bf16_f32 v{Qp[t]+h}, v{Q[t]+2*h}, v{Q[t]+2*h+1}" for h in range(2)]
        st.append(s)
    p.add(zipmerge(*st))
    i_mid = len(p.items)
    for t in range(5): V.free(K[t], 4); V.free(rstd[t], 2)
    for t in range(1, 5): V.free(Q[t], 4)
    vst = []
    for t in range(5):
        vst += [f"v_mul_f32 v{Vv[t]+r}, v{RB[t]+r}, v{Vv[t]+r}" for r in range(4)]
        vst += [f"v_cvt_pk_bf16_f32 v{Vp+2*t+h}, v{Vv[t]+2*h}, v{Vv[t]+2*h+1}" for h in range(2)]
    ones = g.ones
    allocs = []; blocks = []; smf = []
    vNEG, vSelLo, vSelHi = E["NEG"], E["SelLo"], E["SelHi"]
    for b in range(4):
        qt = b + 1
        Sa, Sb, Pp, O, Dn = (V.alloc(4) for _ in range(5))
        v = [V.alloc() for _ in range(4)]
        m, mt, X1, X2 = (V.alloc() for _ in range(4))
        allocs += [(Sa, 4), (Sb, 4), (Pp, 4), (O, 4), (Dn, 4)] + [(x, 1) for x in v + [m, mt, X1, X2]]
        va0, va1 = (s_fa0, s_fa1) if b == 0 else (s_va0, s_va1)
        smf += [m16k16(Sa, Kp[qt-1], Qp[qt], "0"), m16k16(Sb, Kp[qt], Qp[qt], "0")]
        s = [f"v_cndmask_b32 v{v[0]}, v{Sa}, v{Sa+1}, {sp(s_odd)}",
             f"v_cndmask_b32 v{v[1]}, v{Sa+2}, v{Sa+3}, {sp(s_odd)}",
             f"v_cndmask_b32 v{v[2]}, v{Sb}, v{Sb+1}, {sp(s_odd)}",
             f"v_cndmask_b32 v{v[3]}, v{Sb+2}, v{Sb+3}, {sp(s_odd)}",
             f"v_cndmask_b32 v{v[0]}, v{vNEG}, v{v[0]}, {sp(va0)}",
             f"v_cndmask_b32 v{v[1]}, v{vNEG}, v{v[1]}, {sp(va1)}",
             f"v_cndmask_b32 v{v[2]}, v{vNEG}, v{v[2]}, {sp(s_vb0)}",
             f"v_cndmask_b32 v{v[3]}, v{vNEG}, v{v[3]}, {sp(s_vb1)}",
             f"v_max3_f32 v{m}, v{v[0]}, v{v[1]}, v{v[2]}",
             f"v_max_f32 v{m}, v{m}, v{v[3]}",
             f"v_mov_b32 v{mt}, v{m}",
             f"v_permlane32_swap_b32 v{m}, v{mt}",
             f"v_max_f32 v{m}, v{m}, v{mt}",
             f"v_mov_b32 v{mt}, v{m}",
             f"v_permlane16_swap_b32 v{m}, v{mt}",
             f"v_max_f32 v{m}, v{m}, v{mt}",
             f"v_mul_f32 v{m}, v{cq[qt]}, v{m}"]
        s += [f"v_fma_f32 v{v[k]}, v{v[k]}, v{cq[qt]}, -v{m}" for k in range(4)]
        s += [f"v_exp_f32 v{v[k]}, v{v[k]}" for k in range(4)]
        s += [f"v_cvt_pk_bf16_f32 v{X1}, v{v[0]}, v{v[1]}",
              f"v_cvt_pk_bf16_f32 v{X2}, v{v[2]}, v{v[3]}",
              f"v_perm_b32 v{Pp}, v{X1}, v{X1}, v{vSelLo}",
              f"v_perm_b32 v{Pp+1}, v{X1}, v{X1}, v{vSelHi}",
              f"v_perm_b32 v{Pp+2}, v{X2}, v{X2}, v{vSelLo}",
              f"v_perm_b32 v{Pp+3}, v{X2}, v{X2}, v{vSelHi}",
              m16k32(Dn, vr(ones, 4), vr(Pp, 4), "0"),
              m16k32(O, vr(Vp + 2*(qt-1), 4), vr(Pp, 4), "0"),
              f"v_rcp_f32 v{Dn}, v{Dn}"]
        s += [f"v_mul_f32 v{O+r}, v{Dn}, v{O+r}" for r in range(4)]
        s += [f"v_cvt_pk_bf16_f32 v{O}, v{O}, v{O+1}", f"v_cvt_pk_bf16_f32 v{O+1}, v{O+2}, v{O+3}"]
        so = f"s{s_k32}" if (b >> 1) else "0"
        s += [T(f"buffer_store_dwordx2 {vr(O,2)}, v{E['O1' if (b & 1) else 'O']}, {srd(sWS)}, {so} offen sc1", "ost")]
        blocks.append(s)
    seq, _ = weave(smf, {}, vst, cap=4)
    p.add(seq)
    p.add(zipmerge(*blocks))
    for r, n in allocs: V.free(r, n)
    for t in range(1, 5): V.free(Qp[t], 2); V.free(cq[t])
    for t in range(5): V.free(Kp[t], 2); V.free(Vv[t], 4); V.free(RB[t], 4)
    V.free(Vp, 10); V.free(vNEG); V.free(vSelLo); V.free(vSelHi); V.free(E["O"]); V.free(E["O1"])
    items = p.items
    if g.cfg.stop_after >= 2:
        items = insert_dma(items, wo_piece(g, 2) + w1_dma(g, 0, range(g.cfg.w1a_early)), i_start, i_mid)
    p0.add(items)

def get_nonce(p, g):
    p(f"v_readfirstlane_b32 s{s_nonce}, v{g.vEp}")
    p(f"v_readfirstlane_b32 s{s_nonce+1}, v{g.vEp+1}")
    p(f"s_add_u32 s{s_nonce}, s{s_nonce}, 2")
    p(f"s_or_b32 s{s_nonce}, s{s_nonce}, 1")
    p(f"v_mov_b32 v{g.vEp}, s{s_nonce}")
    p(f"v_mov_b32 v{g.vEp+1}, s{s_nonce+1}")

def signal(p, g, ph, tags):
    p.wait_vm(tags); p.wait_lgkm0()
    p("s_barrier")
    p(f"s_cmp_eq_u32 s{s_w}, 0")
    p(f"s_cselect_b64 exec, 1, 0")
    p(f"buffer_store_dwordx2 {vr(g.vEp,2)}, v{g.vMyFl}, {srd(sWS)}, 0 offen offset:{ph*128}", f"flagA{ph}")
    p("s_mov_b64 exec, -1")

def publish_b(g, ph):
    return [f"s_cmp_eq_u32 s{s_w}, 0", f"s_cselect_b64 exec, 1, 0",
            T(f"buffer_store_dwordx2 {vr(g.vEp,2)}, v{g.vMyFl}, {srd(sWS)}, 0 offen offset:{FB0 + ph*128} sc1", f"flagB{ph}"),
            "s_mov_b64 exec, -1"]

def wait_flags(p, g, ph, eight):
    V = g.V
    a = V.alloc(2); va = V.alloc()
    L = f"{ph}"; mask = 0xff if eight else 0xffff
    if eight:
        p(f"s_and_b32 s{s_a}, s{s_i16}, 8")
        p(f"s_lshl_b32 s{s_a}, s{s_a}, 3")
        p(f"v_add_u32 v{va}, s{s_a}, v{g.vFl}")
    else:
        p(f"v_mov_b32 v{va}, v{g.vFl}")
    p(f"s_mov_b32 s{s_cnt}, 0")
    p(f"s_mov_b64 exec, {mask}")
    p.label(f"L_poll{L}")
    p(f"buffer_load_dwordx2 {vr(a,2)}, v{va}, {srd(sWS)}, 0 offen offset:{ph*128} sc1")
    p("s_waitcnt vmcnt(0)")
    p(f"v_cmp_ne_u64 vcc, {sp(s_nonce)}, {vr(a,2)}")
    p(f"s_cbranch_vccz L_ok{L}")
    p.side_begin()
    p(f"s_add_u32 s{s_cnt}, s{s_cnt}, 1")
    p(f"s_cmp_lt_u32 s{s_cnt}, {KPOLL}")
    p(f"s_cbranch_scc1 L_poll{L}")
    p(f"s_cmp_eq_u32 s{s_cnt}, {KPOLL}")
    p(f"s_cbranch_scc0 L_pub{L}")
    p(f"s_cmp_eq_u32 s{s_w}, 0")
    p(f"s_cselect_b64 exec, 1, 0")
    p(f"buffer_store_dwordx2 {vr(g.vEp,2)}, v{g.vMyFl}, {srd(sWS)}, 0 offen offset:{FB0 + ph*128} sc1")
    p(f"s_mov_b64 exec, {mask}")
    p.label(f"L_pub{L}")
    p(f"buffer_load_dwordx2 {vr(a,2)}, v{va}, {srd(sWS)}, 0 offen offset:{FB0 + ph*128} sc1")
    p("s_waitcnt vmcnt(0)")
    p(f"v_cmp_ne_u64 vcc, {sp(s_nonce)}, {vr(a,2)}")
    p(f"s_cbranch_vccz L_ok{L}")
    p(f"s_cmp_lt_u32 s{s_cnt}, 0x80000")
    p(f"s_cbranch_scc1 L_poll{L}")
    p.side_end()
    p.label(f"L_ok{L}")
    p("s_mov_b64 exec, -1")
    V.free(a, 2); V.free(va)

def tr_base(p, dst, natural, tmp):
    t0, t1 = tmp
    p(f"v_bfe_u32 v{t0}, v0, 2, 2")
    p(f"v_lshrrev_b32 v{t1}, 5, v0")
    p(f"v_lshl_add_u32 v{t0}, v{t1}, {3 if natural else 2}, v{t0}")
    p(f"v_lshlrev_b32 v{t0}, 7, v{t0}")
    p(f"v_bfe_u32 v{t1}, v0, 3, 1")
    p(f"v_lshl_add_u32 v{t0}, v{t1}, 6, v{t0}")
    p(f"v_bfe_u32 v{t1}, v0, 4, 1")
    p(f"v_lshl_add_u32 v{t0}, v{t1}, 5, v{t0}")
    p(f"v_and_b32 v{t1}, 3, v0")
    p(f"v_lshl_add_u32 v{dst}, v{t1}, 3, v{t0}")

def phase2(p, g):
    V = g.V; cfg = g.cfg
    p.add(fifo_pairs(w1_dma(g, 0, range(cfg.w1a_early, 16))))
    get_nonce(p, g)
    vWa = [V.alloc() for _ in range(3)]; vWb = [V.alloc() for _ in range(3)]; vO = V.alloc()
    t0, t1 = V.alloc(), V.alloc()
    tr_base(p, t0, True, (t0, t1))
    p(f"s_lshl_b32 s{s_b}, s{s_nh}, 6")
    p(f"v_xor_b32 v{t0}, s{s_b}, v{t0}")
    for k, (base, stride) in enumerate(((L_WA, 12288), (L_WB, 12288), (L_WC, 8192))):
        p(f"s_mul_i32 s{s_a}, s{s_nh}, {stride}"); p(f"s_add_u32 s{s_a}, s{s_a}, {base}")
        p(f"v_add_u32 v{vWa[k]}, s{s_a}, v{t0}")
        p(f"v_xor_b32 v{vWb[k]}, 64, v{vWa[k]}")
    p(f"s_lshl_b32 s{s_a}, s{s_rt}, 17"); p(f"s_lshl_b32 s{s_b}, s{s_sh}, 16"); p(f"s_add_u32 s{s_a}, s{s_a}, s{s_b}")
    p(f"s_lshl_b32 s{s_b}, s{s_nh}, 15"); p(f"s_add_u32 s{s_a}, s{s_a}, s{s_b}")
    vFL = V.alloc()
    frag_lane(p, vFL, t0)
    p(f"v_add_u32 v{vO}, s{s_a}, v{vFL}")
    p(f"v_lshlrev_b32 v{t0}, 4, v0")
    vE, vE2, vH, vS = V.alloc(), V.alloc(), V.alloc(), V.alloc()
    p(f"s_lshl_b32 s{s_a}, s{s_w}, 12"); p(f"s_add_u32 s{s_a}, s{s_a}, {L_EX2}"); p(f"v_add_u32 v{vE}, s{s_a}, v{t0}")
    p(f"s_xor_b32 s{s_a}, s{s_w}, 2"); p(f"s_lshl_b32 s{s_a}, s{s_a}, 12"); p(f"s_add_u32 s{s_a}, s{s_a}, {L_EX2}"); p(f"v_add_u32 v{vE2}, s{s_a}, v{t0}")
    p(f"s_lshl_b32 s{s_a}, s{s_rt}, 1"); p(f"s_add_u32 s{s_a}, s{s_a}, s{s_sh}")
    p(f"s_lshl_b32 s{s_b}, s{s_a}, 16"); p(f"s_lshl_b32 s{s_c}, s{s_j}, 13"); p(f"s_add_u32 s{s_b}, s{s_b}, s{s_c}")
    p(f"s_lshl_b32 s{s_c}, s{s_nh}, 12"); p(f"s_add_u32 s{s_b}, s{s_b}, s{s_c}"); p(f"s_add_u32 s{s_b}, s{s_b}, {WS_H}")
    p(f"v_add_u32 v{vH}, s{s_b}, v{vFL}")
    p(f"s_lshl_b32 s{s_b}, s{s_a}, 13"); p(f"s_lshr_b32 s{s_c}, s{s_j}, 1"); p(f"s_lshl_b32 s{s_c}, s{s_c}, 11"); p(f"s_add_u32 s{s_b}, s{s_b}, s{s_c}")
    p(f"s_and_b32 s{s_c}, s{s_j}, 1"); p(f"s_lshl_b32 s{s_c}, s{s_c}, 3"); p(f"s_add_u32 s{s_b}, s{s_b}, s{s_c}"); p(f"s_add_u32 s{s_b}, s{s_b}, {WS_ST}")
    p(f"s_lshl_b32 s{s_c}, s{s_nh}, 5"); p(f"v_and_b32 v{t1}, 31, v0"); p(f"v_add_u32 v{t1}, s{s_c}, v{t1}")
    p(f"v_add_u32 v{vS}, 40, v{t1}"); p(f"v_bfe_u32 v{vS}, v{vS}, 6, 1"); p(f"v_lshlrev_b32 v{vS}, 7, v{vS}")
    p(f"v_lshl_add_u32 v{vS}, v{t1}, 4, v{vS}"); p(f"v_add_u32 v{vS}, s{s_b}, v{vS}")
    V.free(t0); V.free(t1)
    g.vFL = vFL
    signal(p, g, 0, ["ost", "wo"])
    stamp(p, g, 4)
    for ks in range(16):
        k = 0 if ks < 6 else (1 if ks < 12 else 2)
        o = (ks - (0, 6, 12)[k]) * 2048
        for u in range(2):
            for rd in range(2):
                p(f"ds_read_b64_tr_b16 {ar(8*ks + 4*u + 2*rd, 2)}, v{(vWa, vWb)[u][k]} offset:{o + rd*512}")
    for r in vWa + vWb: V.free(r)
    p.wait_lgkm0(); p("s_barrier")
    wait_flags(p, g, 0, True)
    stamp(p, g, 5)
    OF = V.alloc(64)
    for ks in range(16):
        if ks == 8: p(f"v_add_u32 v{vO}, {8*FS}, v{vO}")
        so, off = soff_for(ks & 7)
        p(f"buffer_load_dwordx4 {vr(OF+4*ks,4)}, v{vO}, {srd(sWS)}, {so} offen{off} sc1")
    acc = [V.alloc(16), V.alloc(16)]
    w1b = w1_dma(g, 1, range(16))
    for ks in range(16):
        m = [m32(vr(acc[u], 16), ar(8*ks + 4*u), vr(OF + 4*ks, 4), "0" if ks == 0 else vr(acc[u], 16)) for u in range(2)]
        pre, dma = w1b[ks]
        p.add([m[0]] + pre + [m[1], dma])
    V.free(OF, 64); V.free(vO)
    p.add(publish_b(g, 0))
    stamp(p, g, 6)
    q = Prog()
    for k in range(4): q(f"ds_write_b128 v{vE}, {vr(acc[1]+4*k,4)} offset:{k*1024}")
    A = acc[0]
    t = V.alloc(4)
    for k in range(8):
        x = g.xres + k
        q(f"v_lshlrev_b32 v{t + (k&1)*2}, 16, v{x}")
        q(f"v_and_b32 v{t + (k&1)*2 + 1}, 0xffff0000, v{x}")
        q(f"v_pk_add_f32 {vr(A + 2*k, 2)}, {vr(A + 2*k, 2)}, {vr(t + (k&1)*2, 2)}")
    q.wait_lgkm0(); q("s_barrier")
    for k in range(4): q(f"ds_read_b128 {vr(acc[1]+4*k,4)}, v{vE2} offset:{k*1024}")
    for k in range(8):
        q(f"v_pk_add_f32 {vr(A + 2*k, 2)}, {vr(A + 2*k, 2)}, {vr(acc[1] + 2*k, 2)}")
    V.free(t, 4); V.free(acc[1], 16); V.free(vE); V.free(vE2)
    hp = g.xres
    for k in range(8): q(f"v_cvt_pk_bf16_f32 v{hp+k}, v{A+2*k}, v{A+2*k+1}")
    V.free(A, 16)
    q(f"buffer_store_dwordx4 {vr(hp,4)}, v{vH}, {srd(sWS)}, 0 offen sc1", "hst")
    q(f"buffer_store_dwordx4 {vr(hp+4,4)}, v{vH}, {srd(sWS)}, 0 offen offset:{FS} sc1", "hst")
    SQ = V.alloc(2); t = V.alloc(2)
    q(f"v_mov_b32 v{SQ}, 0"); q(f"v_mov_b32 v{SQ+1}, 0")
    for k in range(8):
        q(f"v_dot2c_f32_bf16 v{SQ}, v{hp+k}, v{g.ones}")
        q(f"v_dot2c_f32_bf16 v{SQ+1}, v{hp+k}, v{hp+k}")
    q(f"v_mov_b32 v{t}, v{SQ}"); q(f"v_mov_b32 v{t+1}, v{SQ+1}")
    q(f"v_permlane32_swap_b32 v{SQ}, v{t}"); q(f"v_permlane32_swap_b32 v{SQ+1}, v{t+1}")
    q(f"v_add_f32 v{SQ}, v{SQ}, v{t}"); q(f"v_add_f32 v{SQ+1}, v{SQ+1}, v{t+1}")
    q("s_mov_b32 exec_hi, 0")
    q(f"buffer_store_dwordx2 {vr(SQ,2)}, v{vS}, {srd(sWS)}, 0 offen sc1", "hst")
    q("s_mov_b64 exec, -1")
    V.free(vH); V.free(vS); V.free(SQ, 2); V.free(t, 2)
    p.add(q.items)
    g.hp = hp
    stamp(p, g, 7)

NSTG = 8
def p4_read_bases(p, g):
    V = g.V
    g.vR = vR = [[V.alloc(), V.alloc()] for _ in range(3)]
    t = V.alloc()
    p(f"s_lshl_b32 s{s_a}, s{s_nh}, 6")
    p(f"v_xor_b32 v{t}, s{s_a}, v{g.vTrD}")
    for grp, sb in enumerate((s_b0, s_b1, s_b2)):
        p(f"v_add_u32 v{vR[grp][0]}, s{sb}, v{t}")
    p(f"v_xor_b32 v{t}, 64, v{t}")
    for grp, sb in enumerate((s_b0, s_b1, s_b2)):
        p(f"v_add_u32 v{vR[grp][1]}, s{sb}, v{t}")
    V.free(t)

def w2_reads(g, slot, dst):
    grp, off = w2_slot(slot)
    return [f"ds_read_b64_tr_b16 {dst(bb, r)}, v{g.vR[grp][bb]} offset:{off + r*1024}" for bb in range(2) for r in range(2)]

def phase3(p, g):
    V = g.V; cfg = g.cfg
    vW = [V.alloc() for _ in range(4)]
    t0, t1 = V.alloc(), V.alloc()
    tr_base(p, vW[0], False, (t0, t1))
    p(f"v_xor_b32 v{vW[1]}, 64, v{vW[0]}")
    p(f"v_add_u32 v{vW[2]}, 65536, v{vW[0]}")
    p(f"v_add_u32 v{vW[3]}, 65536, v{vW[1]}")
    g.vTrD = V.alloc()
    p(f"v_mov_b32 v{g.vTrD}, v{vW[0]}")
    p4_read_bases(p, g)
    V.free(g.vTrD)
    vC = V.alloc()
    p(f"s_lshl_b32 s{s_a}, s{s_sh}, 6"); p(f"s_lshl_b32 s{s_b}, s{s_nh}, 16")
    p(f"v_xor_b32 v{vC}, s{s_a}, v{vW[0]}"); p(f"v_add_u32 v{vC}, s{s_b}, v{vC}")
    sel = V.alloc(4)
    p(f"v_lshrrev_b32 v{t0}, 4, v0"); p(f"v_xor_b32 v{t0}, v{t0}, v0"); p(f"v_and_b32 v{t0}, 1, v{t0}")
    p(f"v_cmp_eq_u32 vcc, 0, v{t0}")
    p(f"v_mov_b32 v{t1}, 0")
    for r in range(4): p(f"v_cndmask_b32 v{sel+r}, v{t1}, v{g.ones}, vcc")
    vH, vS, vH1, vCw, vCr = (V.alloc() for _ in range(5))
    p(f"s_lshl_b32 s{s_a}, s{s_R}, 2"); p(f"s_add_u32 s{s_a}, s{s_a}, s{s_w}")
    p(f"s_lshl_b32 s{s_b}, s{s_a}, 16"); p(f"s_add_u32 s{s_b}, s{s_b}, {WS_H}")
    p(f"v_add_u32 v{vH}, s{s_b}, v{g.vFL}")
    p(f"s_mul_i32 s{s_b}, s{s_a}, {112*FS}"); p(f"s_lshl_b32 s{s_c}, s{s_i16c}, 14")
    p(f"s_add_u32 s{s_b}, s{s_b}, s{s_c}"); p(f"s_add_u32 s{s_b}, s{s_b}, {WS_H1}")
    p(f"v_add_u32 v{vH1}, s{s_b}, v{g.vFL}")
    p(f"s_lshl_b32 s{s_b}, s{s_a}, 13"); p(f"s_add_u32 s{s_b}, s{s_b}, {WS_ST}")
    p(f"v_add_u32 v{vS}, s{s_b}, v{g.vFL}")
    p(f"v_and_b32 v{t0}, 15, v0"); p(f"v_lshlrev_b32 v{t0}, 2, v{t0}"); p(f"s_lshl_b32 s{s_a}, s{s_w}, 7"); p(f"s_add_u32 s{s_a}, s{s_a}, {L_M}")
    p(f"v_add_u32 v{vCw}, s{s_a}, v{t0}")
    p(f"v_and_b32 v{t0}, 31, v0"); p(f"v_lshlrev_b32 v{t0}, 2, v{t0}"); p(f"v_add_u32 v{vCr}, {L_M}, v{t0}")
    signal(p, g, 1, ["hst", "w1a", "w1b"])
    stamp(p, g, 8)
    csacc = V.alloc(4); CF = [V.alloc(4) for _ in range(8)]
    def cr(ks): return [f"ds_read_b64_tr_b16 {vr(CF[ks % 8] + 2*rd, 2)}, v{vC} offset:{ks*2048 + rd*1024}" for rd in range(2)]
    for ks in range(6): p.add(cr(ks))
    for ks in range(32):
        if ks % 2 == 0: p(f"s_waitcnt lgkmcnt({8 if ks + 6 < 32 + 1 - 1 and ks <= 24 else max(0, 2 * (32 - ks - 2))})") if False else None
        p(m16k32(csacc, vr(sel, 4), vr(CF[ks % 8], 4), "0" if ks == 0 else vr(csacc, 4)))
        if ks + 6 < 32: p.add(cr(ks + 6))
    for b in CF: V.free(b, 4)
    V.free(sel, 4); V.free(vC)
    p(f"ds_write_b32 v{vCw}, v{csacc}")
    p(f"ds_write_b32 v{vCw}, v{csacc+1} offset:64")
    V.free(csacc, 4); V.free(vCw)
    p.wait_lgkm0(); p("s_barrier")
    CA = [V.alloc(4) for _ in range(4)]
    csv = V.alloc(4)
    for nt in range(4): p(f"ds_read_b32 v{csv+nt}, v{vCr} offset:{nt*128}")
    V.free(vCr)
    for nt in range(4):
        p(f"v_cvt_pk_bf16_f32 v{CA[nt]}, v{csv+nt}, v{csv+nt}")
        p(f"v_lshl_or_b32 v{CA[nt]+2}, v{g.vB1+nt}, 16, v{g.vB1+nt}")
        p(f"v_and_b32 v{t0}, 0xffff0000, v{CA[nt]}")
        p(f"v_mov_b32 v{CA[nt]+3}, 0")
        p(f"v_sub_f32 v{t1}, v{csv+nt}, v{t0}")
        p(f"v_cvt_pk_bf16_f32 v{CA[nt]+1}, v{t1}, v{t1}")
    V.free(csv, 4); V.free(g.vB1, 4)
    acc = [V.alloc(16) for _ in range(4)]
    WF = [V.alloc(4) for _ in range(6)]
    def rd(nt, ks, buf): return [f"ds_read_b64_tr_b16 {vr(buf + 2*r, 2)}, v{vW[nt]} offset:{ks*2048 + r*1024}" for r in range(2)]
    def rda(nt, ks): return [f"ds_read_b64_tr_b16 {ar(128 + 4*ks + 2*r, 2)}, v{vW[nt]} offset:{ks*2048 + r*1024}" for r in range(2)]
    p(f"s_cmp_eq_u32 s{s_j}, 3")
    p("s_cbranch_scc1 L_idle3")
    p.side_begin()
    p.add(rd(0, 0, WF[0]) + rd(1, 0, WF[1]) + rd(0, 1, WF[2]) + rd(1, 1, WF[3]))
    wait_flags(p, g, 1, False)
    stamp(p, g, 9)
    ST = V.alloc(16)
    def aload(ks):
        off = f" offset:{FS}" if ks & 1 else ""
        pre = [f"s_mov_b32 s{s_so}, {(ks >> 1) * 2 * FS}"] if (ks & 1) == 0 else []
        return pre + [f"buffer_load_dwordx4 {ar(4*ks)}, v{vH}, {srd(sWS)}, s{s_so} offen{off} sc1"]
    D = cfg.d3
    for ks in range(2): p.add(aload(ks))
    for q in range(4):
        so_, off_ = soff_for(q)
        p(f"buffer_load_dwordx4 {vr(ST+4*q,4)}, v{vS}, {srd(sWS)}, {so_} offen{off_} sc1")
    for ks in range(2, D): p.add(aload(ks))
    S, Qq = ST, ST + 1
    BM = V.alloc(4); KK = V.alloc(2); sdp = V.alloc(2); rs = V.alloc(); K1p = V.alloc(2)
    K2, K1, sd = KK, K1p, sdp
    U = V.alloc(16)
    u0, u1, u2, u3 = U, U + 1, U + 2, U + 3
    st = []
    for q in range(1, 8):
        st += [f"v_add_f32 v{S}, v{S}, v{ST+2*q}", f"v_add_f32 v{Qq}, v{Qq}, v{ST+2*q+1}"]
    st += [f"v_mov_b32 v{u0}, v{S}", f"v_mov_b32 v{u1}, v{Qq}", f"v_mov_b32 v{BM+3}, 0",
           f"v_permlane32_swap_b32 v{S}, v{u0}", f"v_permlane32_swap_b32 v{Qq}, v{u1}",
           f"v_add_f32 v{S}, v{S}, v{u0}", f"v_add_f32 v{Qq}, v{Qq}, v{u1}",
           f"v_mul_f32 v{u0}, {fl(1/512)}, v{S}",
           f"v_mul_f32 v{u1}, {fl(1/512)}, v{Qq}",
           f"v_add_f32 v{u1}, {fl(1e-5)}, v{u1}",
           f"v_fma_f32 v{u1}, -v{u0}, v{u0}, v{u1}",
           f"v_rsq_f32 v{rs}, v{u1}",
           f"v_mul_f32 v{u0}, -0.5, v{u0}",
           f"v_mul_f32 v{sd}, v{u1}, v{rs}",
           f"v_mul_f32 v{K1}, {fl(C1)}, v{rs}",
           f"v_mul_f32 v{u1}, v{rs}, v{rs}",
           f"v_mul_f32 v{u1}, v{u1}, v{rs}",
           f"v_mul_f32 v{K2}, {fl(C2)}, v{u1}"]
    st += split_hi_lo(u0, BM, u2, u3, True)
    st += [f"v_mul_f32 v{u0}, 0.5, v{sd}"]
    st += split_hi_lo(u0, BM + 2, u2, u3, False)
    def act(ks): return ar(4*ks)
    m = []; fixed = {}
    for ks in range(32):
        b0, b1 = WF[(2*ks) % 6], WF[(2*ks + 1) % 6]
        m.append(m32(vr(acc[0], 16), vr(b0, 4), act(ks), "0" if ks == 0 else vr(acc[0], 16)))
        m.append(m32(vr(acc[1], 16), vr(b1, 4), act(ks), "0" if ks == 0 else vr(acc[1], 16)))
        f0, f1 = [], []
        if ks + D < 32: f0 += aload(ks + D)
        if ks + 2 < 32:
            f0 += rd(0, ks + 2, WF[(2*ks + 4) % 6]); f1 += rd(1, ks + 2, WF[(2*ks + 5) % 6])
        f1 += rda(2, ks)
        fixed[2*ks] = f0; fixed[2*ks + 1] = f1
    seq, _ = weave(m, fixed, st, cap=5, start=8)
    p.add(seq)
    for nt in range(2): p(m32(vr(acc[nt], 16), vr(CA[nt], 4), vr(BM, 4), vr(acc[nt], 16)))
    p("s_barrier")
    stamp(p, g, 10)
    p.add(publish_b(g, 1))
    def gelu(nt, pk=False):
        A = acc[nt]; ops = []
        for blk in range(2):
            rs_ = [A + 8*blk + i for i in range(8)]
            Ub = U + 8*(blk & 1) if cfg.u16 else U
            if not pk:
                ops += [f"v_mul_f32 v{Ub+i}, v{rs_[i]}, v{rs_[i]}" for i in range(8)]
                ops += [f"v_fma_f32 v{Ub+i}, v{Ub+i}, v{K2}, v{K1}" for i in range(8)]
                ops += [f"v_mul_f32 v{Ub+i}, v{rs_[i]}, v{Ub+i}" for i in range(8)]
                ops += [f"v_exp_f32 v{Ub+i}, v{Ub+i}" for i in range(8)]
                ops += [f"v_fma_f32 v{Ub+i}, v{Ub+i}, v{sd}, v{sd}" for i in range(8)]
                ops += [f"v_rcp_f32 v{Ub+i}, v{Ub+i}" for i in range(8)]
                ops += [f"v_mul_f32 v{rs_[i]}, v{rs_[i]}, v{Ub+i}" for i in range(8)]
            else:
                P = lambda r: vr(r, 2)
                ops += [f"v_pk_mul_f32 {P(Ub+2*i)}, {P(rs_[2*i])}, {P(rs_[2*i])}" for i in range(4)]
                ops += [f"v_pk_fma_f32 {P(Ub+2*i)}, {P(Ub+2*i)}, {P(K2)}, {P(K1)} op_sel_hi:[1,0,0]" for i in range(4)]
                ops += [f"v_pk_mul_f32 {P(Ub+2*i)}, {P(rs_[2*i])}, {P(Ub+2*i)}" for i in range(4)]
                ops += [f"v_exp_f32 v{Ub+i}, v{Ub+i}" for i in range(8)]
                ops += [f"v_pk_fma_f32 {P(Ub+2*i)}, {P(Ub+2*i)}, {P(sd)}, {P(sd)} op_sel_hi:[1,0,0]" for i in range(4)]
                ops += [f"v_rcp_f32 v{Ub+i}, v{Ub+i}" for i in range(8)]
                ops += [f"v_pk_mul_f32 {P(rs_[2*i])}, {P(rs_[2*i])}, {P(Ub+2*i)}" for i in range(4)]
            ops += [f"v_cvt_pk_bf16_f32 v{A + 8*blk + k}, v{rs_[2*k]}, v{rs_[2*k+1]}" for k in range(4)]
            idx = 2*nt + blk
            so, off = soff_for(idx)
            ops.append(T(f"buffer_store_dwordx4 {vr(A + 8*blk, 4)}, v{vH1}, {srd(sWS)}, {so} offen{off} sc1", "h1st"))
        return ops
    if cfg.stage:
        for b in WF: V.free(b, 4)
        V.free(ST, 16)
        SG = g.SG = [V.alloc(8) for _ in range(NSTG)]
        g0, g1 = gelu(0), gelu(1)
        m = []; fixed = {}
        for ks in range(32):
            m.append(m32(vr(acc[2], 16), ar(128 + 4*ks), act(ks), "0" if ks == 0 else vr(acc[2], 16)))
            fixed[ks] = rda(3, ks)
        m.append(m32(vr(acc[2], 16), vr(CA[2], 4), vr(BM, 4), vr(acc[2], 16)))
        p.wait_lgkm0()
        seq, rem = weave(m, fixed, dma_fifo(w2_range(g, 19, 3, NSTG)) + g0 + g1, cap=cfg.capB, tail=False)
        p.add(seq)
        p.wait_lgkm0(); p("s_barrier")
        if cfg.stamps >= 2: stamp(p, g, 30)
        m = [m32(vr(acc[3], 16), ar(128 + 4*ks), act(ks), "0" if ks == 0 else vr(acc[3], 16)) for ks in range(32)]
        m.append(m32(vr(acc[3], 16), vr(CA[3], 4), vr(BM, 4), vr(acc[3], 16)))
        stg = [("wait_vm", [f"w2_{19 + k_}" for k_ in range(NSTG)])]
        for k_ in range(NSTG): stg += w2_reads(g, 3 + k_, lambda bb, r, k_=k_: vr(SG[k_] + 4*bb + 2*r, 2))
        nrem = cfg.crem
        fC = dma_fifo(w2_range(g, 11, 11, 8)) + rem[:nrem] + stg + rem[nrem:nrem + 8] + [("wait_lgkm0",)] + dma_fifo(w2_range(g, 3, 3, 8)) + rem[nrem + 8:]
        seq, rem = weave(m, {}, fC, cap=cfg.capC, tail=False)
        p.add(seq)
        stamp(p, g, 11)
        p.add(rem)
        p.add(gelu(2, pk=bool(cfg.pktail)))
        p.add(gelu(3, pk=bool(cfg.pktail)))
        p.wait_vm(["h1st"])
        for b in acc: V.free(b, 16)
        V.free(BM, 4); V.free(KK, 2); V.free(sdp, 2); V.free(K1p, 2); V.free(rs); V.free(U, 16)
    else:
        for b in WF: V.free(b, 4)
        V.free(ST, 16)
        g0 = gelu(0)
        m = []; fixed = {}
        for ks in range(32):
            m.append(m32(vr(acc[2], 16), ar(128 + 4*ks), act(ks), "0" if ks == 0 else vr(acc[2], 16)))
            fixed[ks] = rda(3, ks)
        m.append(m32(vr(acc[2], 16), vr(CA[2], 4), vr(BM, 4), vr(acc[2], 16)))
        def place_dma(fixed, pairs, g0_, step):
            for k_, (pre, dma) in enumerate(pairs):
                gk = g0_ + k_ * step
                fixed.setdefault(gk, []).extend(pre)
                fixed.setdefault(gk + 1, []).insert(0, dma)
        pb = w2_range(g, 0, 0, 3) + w2_range(g, 3, 3, 8)
        for k_, (pre, dma) in enumerate(pb):
            gk = (k_ * 31) // len(pb)
            fixed.setdefault(gk, []).extend(pre)
            fixed.setdefault(gk + 1, []).insert(0, dma)
        p.wait_lgkm0()
        seq, rem = weave(m, fixed, g0, cap=cfg.capB, tail=False)
        p.add(seq)
        p.wait_lgkm0(); p("s_barrier")
        if cfg.stamps >= 2: stamp(p, g, 30)
        m = [m32(vr(acc[3], 16), ar(128 + 4*ks), act(ks), "0" if ks == 0 else vr(acc[3], 16)) for ks in range(32)]
        m.append(m32(vr(acc[3], 16), vr(CA[3], 4), vr(BM, 4), vr(acc[3], 16)))
        fixed = {}
        place_dma(fixed, w2_range(g, 11, 11, 8), 0, 2)
        more = gelu(1) if cfg.g1c else []
        seq, rem = weave(m, fixed, rem + more, cap=cfg.capC, tail=False)
        p.add(seq)
        stamp(p, g, 11)
        p.add(rem)
        if not cfg.g1c: p.add(gelu(1, pk=True))
        p.add(gelu(2, pk=True)); p.add(gelu(3, pk=True))
        p.wait_vm(["h1st"])
        for b in acc: V.free(b, 16)
        V.free(BM, 4); V.free(KK, 2); V.free(sdp, 2); V.free(K1p, 2); V.free(rs); V.free(U, 16)
    p.side_end()
    p.label("L_merge3")
    q = Prog()
    q.label("L_idle3")
    q.add(publish_b(g, 1))
    if cfg.stage:
        q.add(fifo_pairs(w2_range(g, 19, 3, NSTG)))
        q.add(fifo_pairs(w2_range(g, 11, 11, 8)))
        q.wait_vm([f"w2_{19 + k_}" for k_ in range(NSTG)])
        for k_ in range(NSTG): q.add(w2_reads(g, 3 + k_, lambda bb, r, k_=k_: vr(g.SG[k_] + 4*bb + 2*r, 2)))
        q.wait_lgkm0()
        q.add(fifo_pairs(w2_range(g, 3, 3, 8)))
        q("s_waitcnt vmcnt(0)")
    else:
        q.add(fifo_pairs(w2_range(g, 0, 0, 3))); q.add(fifo_pairs(w2_range(g, 3, 3, 8))); q.add(fifo_pairs(w2_range(g, 11, 11, 8)))
        q("s_waitcnt vmcnt(0)")
    q("s_branch L_merge3")
    g.tail_blocks.append(q)
    for b in CA: V.free(b, 4)
    V.free(t0); V.free(t1)
    for r in vW + [vH, vS, vH1]: V.free(r)

def phase4(p, g):
    V = g.V; cfg = g.cfg
    p.items.append(("assume_vm", []))
    signal(p, g, 2, [])
    stamp(p, g, 12)
    acc = [V.alloc(16) for _ in range(4)]
    t = V.alloc(4)
    for q in range(8):
        p(f"v_lshlrev_b32 v{acc[0]+2*q}, 16, v{g.hp+q}")
        p(f"v_and_b32 v{acc[0]+2*q+1}, 0xffff0000, v{g.hp+q}")
        p(f"v_lshlrev_b32 v{t}, 16, v{g.vB2+q}")
        p(f"v_and_b32 v{t+1}, 0xffff0000, v{g.vB2+q}")
        p(f"v_pk_add_f32 {vr(acc[0]+2*q,2)}, {vr(acc[0]+2*q,2)}, {vr(t,2)}")
    V.free(t, 4); V.free(g.vB2, 8); V.free(g.hp, 8)
    vA = [V.alloc(), V.alloc()]; t1 = V.alloc()
    p(f"v_lshlrev_b32 v{t1}, 4, v0")
    for a_ in range(2):
        p(f"s_xor_b32 s{s_a}, s{s_sh}, {a_}")
        p(f"s_lshl_b32 s{s_b}, s{s_rt}, 1"); p(f"s_add_u32 s{s_a}, s{s_a}, s{s_b}")
        p(f"s_mul_i32 s{s_a}, s{s_a}, {112*FS}")
        p(f"s_mul_i32 s{s_b}, s{s_w}, {28*FS}"); p(f"s_add_u32 s{s_a}, s{s_a}, s{s_b}")
        p(f"s_add_u32 s{s_a}, s{s_a}, {WS_H1}")
        p(f"v_add_u32 v{vA[a_]}, s{s_a}, v{g.vFL}")
    V.free(g.vFL)
    vE, vP, vOut = V.alloc(), [V.alloc() for _ in range(3)], V.alloc()
    p(f"v_add_u32 v{vE}, s{s_b1}, v{t1}")
    for u in range(1, 4):
        p(f"s_xor_b32 s{s_a}, s{s_w}, {u}"); p(f"s_lshl_b32 s{s_a}, s{s_a}, 14"); p(f"v_add_u32 v{vP[u-1]}, s{s_a}, v{t1}")
    p(f"s_lshl_b32 s{s_a}, s{s_rt}, 6"); p(f"s_lshl_b32 s{s_b}, s{s_sh}, 5"); p(f"s_add_u32 s{s_a}, s{s_a}, s{s_b}")
    p(f"s_lshl_b32 s{s_a}, s{s_a}, 10")
    p(f"s_lshl_b32 s{s_b}, s{s_j}, 7"); p(f"s_add_u32 s{s_a}, s{s_a}, s{s_b}")
    p(f"s_lshl_b32 s{s_b}, s{s_nh}, 6"); p(f"s_add_u32 s{s_a}, s{s_a}, s{s_b}")
    p(f"v_and_b32 v{vOut}, 31, v0"); p(f"v_lshlrev_b32 v{vOut}, 10, v{vOut}")
    p(f"v_lshrrev_b32 v{t1}, 5, v0"); p(f"v_lshl_add_u32 v{vOut}, v{t1}, 4, v{vOut}"); p(f"v_add_u32 v{vOut}, s{s_a}, v{vOut}")
    V.free(t1)
    WF = [V.alloc(8) for _ in range(3)]
    if cfg.stage:
        lds_units = list(range(19)) + [27]
        slot_map = {u: (u if u < 19 else 0) for u in lds_units}
        stream = {1: w2_dma_to(g, 27, 0)}
    else:
        lds_units = list(range(28))
        slot_map = {u: (u if u < 19 else u - 19) for u in lds_units}
        stream = {2: w2_dma_to(g, 19, 0, 2), 3: w2_dma_to(g, 21, 2), 5: w2_dma_to(g, 22, 3, 2), 7: w2_dma_to(g, 24, 5, 2), 9: w2_dma_to(g, 26, 7, 2)}
    ring = {u: WF[i % 3] for i, u in enumerate(lds_units)}
    def reads(u): return w2_reads(g, slot_map[u], lambda bb, r: vr(ring[u] + 4*bb + 2*r, 2))
    p.add(reads(0)); p.add(reads(1))
    wait_flags(p, g, 2, False)
    stamp(p, g, 13)
    def hreg(u, a_): return 8*u + 4*a_
    def loads(u):
        out = []
        if (u & 1) == 0: out.append(f"s_mov_b32 s{s_so2}, {(u >> 1) * 2 * FS}")
        off = f" offset:{FS}" if u & 1 else ""
        for a_ in range(2):
            out.append(T(f"buffer_load_dwordx4 {ar(hreg(u, a_))}, v{vA[a_]}, {srd(sWS)}, s{s_so2} offen{off} sc1", f"h1_{u}"))
        return out
    D = cfg.d4
    for u in range(D): p.add(loads(u))
    nxt = {lds_units[i]: lds_units[i + 2] for i in range(len(lds_units) - 2)}
    for u in range(28):
        m = []
        for bb in range(2):
            A_ = vr(ring[u] + 4*bb, 4) if u in ring else vr(g.SG[u - 19] + 4*bb, 4)
            for a_ in range(2):
                d = vr(acc[2*bb + a_], 16)
                first = (u == 0 and 2*bb + a_ != 0)
                m.append(m32(d, A_, ar(hreg(u, a_)), "0" if first else d))
        ld = loads(u + D) if u + D < 28 else []
        rd_ = []
        if u in nxt:
            un = nxt[u]
            rd_ = [("wait_vm", [f"w2_{un}"])] + reads(un)
        dm = stream.get(u, [])
        pre = dm[0][0] if dm else []
        dmas = [d for _, d in dm]
        seq = [m[0]] + ld[:-1] + [m[1]] + ld[-1:] + rd_ + pre + [m[2]] + dmas[:2] + [m[3]] + dmas[2:]
        p.add(seq)
    for b in WF: V.free(b, 8)
    if cfg.stage:
        for b in g.SG: V.free(b, 8)
    for g_ in g.vR:
        for r in g_: V.free(r)
    for r in vA: V.free(r)
    stamp(p, g, 14)
    for u in range(1, 4):
        for q in range(4): p(f"ds_write_b128 v{vE}, {vr(acc[u]+4*q,4)} offset:{(u-1)*4096 + q*1024}")
    p.add(publish_b(g, 2))
    p.wait_lgkm0(); p("s_barrier")
    for u in range(1, 4):
        for q in range(4): p(f"ds_read_b128 {vr(acc[u]+4*q,4)}, v{vP[u-1]} offset:{(u-1)*4096 + q*1024}")
    A = acc[0]
    for u in range(1, 4):
        for q in range(8): p(f"v_pk_add_f32 {vr(A+2*q,2)}, {vr(A+2*q,2)}, {vr(acc[u]+2*q,2)}")
    for q in range(8): p(f"v_cvt_pk_bf16_f32 v{A+q}, v{A+2*q}, v{A+2*q+1}")
    for q in (0, 2):
        p(f"v_permlane32_swap_b32 v{A+2*q}, v{A+2*q+2}")
        p(f"v_permlane32_swap_b32 v{A+2*q+1}, v{A+2*q+3}")
    p(f"buffer_store_dwordx4 {vr(A,4)}, v{vOut}, {srd(sOUT)}, 0 offen")
    p(f"buffer_store_dwordx4 {vr(A+4,4)}, v{vOut}, {srd(sOUT)}, 0 offen offset:32")
    p(f"s_lshl_b32 s{s_a}, s{s_R}, 10"); p(f"s_add_u32 s{s_a}, s{s_a}, {WS_FL}")
    p(f"v_mov_b32 v{vE}, s{s_a}")
    p(f"s_or_b32 s{s_b}, s{s_i16}, s{s_w}")
    p(f"s_cmp_eq_u32 s{s_b}, 0")
    p("s_cselect_b64 exec, 1, 0")
    p(f"buffer_store_dwordx2 {vr(g.vEp,2)}, v{vE}, {srd(sWS)}, 0 offen offset:{FEP}")
    p("s_mov_b64 exec, -1")
    V.free(vE); V.free(vOut)
    for r in vP: V.free(r)
    for b in acc: V.free(b, 16)

def build(cfg):
    g = G(); g.cfg = cfg; g.tail_blocks = []
    g.V = V = Pool(1, 256)
    V.take(1, 1)
    g.vdummy = V.take(252, 4)
    if cfg.stamps: g.vstamp = V.take(251, 1)
    g.ones = V.alloc(4)
    p = Prog()
    prologue(p, g)
    if cfg.stamps:
        p(f"v_mov_b32 v{g.vstamp}, 0")
        p(f"s_memrealtime {sp(s_stamp)}"); p("s_waitcnt lgkmcnt(0)")
        p(f"v_writelane_b32 v{g.vstamp}, s{s_stamp}, 16")
        stamp(p, g, 0)
    for _ in range(cfg.startsleep): p("s_sleep 127")
    p1_addresses(p, g)
    p.add(xgroup_sregs(0, 0)); p.add(xgroup_sregs(1, 1)); p.add(xgroup_sregs(2, 2))
    if cfg.stamps >= 2: stamp(p, g, 18)
    p("s_waitcnt lgkmcnt(0)")
    if cfg.stamps >= 2: stamp(p, g, 19)
    p.add(make_srd(sX, 4, 2048*512*2)); p.add(make_srd(sWQ, 6, 512*1536*2))
    setup = setup_ops(g)
    burst = dma_x(g, 0, 0) + dma_w(g, 0)
    if cfg.burst in (0, 1): burst += dma_x(g, 1, 1)
    if cfg.burst == 0: burst += dma_w(g, 1)
    seps = list(setup)
    per = -(-len(seps) // len(burst))
    p.add(pairs_with_sep(burst, seps, per - 1))
    if cfg.stamps >= 2: stamp(p, g, 20)
    p.add(seps)
    phase1(p, g)
    phase1_epilogue(p, g)
    stamp(p, g, 3)
    if cfg.stop_after >= 2: phase2(p, g)
    if cfg.stop_after >= 3: phase3(p, g)
    if cfg.stop_after >= 4: phase4(p, g)
    if cfg.stamps:
        p("s_waitcnt vmcnt(0)")
        stamp(p, g, 15)
        p(f"s_memrealtime {sp(s_stamp)}"); p("s_waitcnt lgkmcnt(0)")
        p(f"v_writelane_b32 v{g.vstamp}, s{s_stamp}, 17")
        p(f"s_lshl_b32 s{s_t0}, s2, 2"); p(f"s_add_u32 s{s_t0}, s{s_t0}, s{s_w}")
        p(f"s_lshl_b32 s{s_t0}, s{s_t0}, 8"); p(f"s_add_u32 s{s_t0}, s{s_t0}, {WS_DBG}")
        p(f"v_lshlrev_b32 v1, 2, v0"); p(f"v_add_u32 v1, s{s_t0}, v1")
        p(f"buffer_store_dword v{g.vstamp}, v1, {srd(sWS)}, 0 offen")
    for _ in range(cfg.endsleep): p("s_sleep 127")
    p.label("L_end")
    p("s_endpgm")
    items, stats = finalize(p)
    body = render(items)
    for q in g.tail_blocks:
        it2, _ = finalize(q)
        body += render(it2)
    body += "L_code_end:\n    s_endpgm\n"
    hdr = open("cdna_kernels/" + NAME + ".s.ref").read().split("; Override launch geometry")[0]
    out = hdr
    out += "; Override launch geometry by editing the next line (default: block=256,\n"
    out += f"; @launch grid=(256,1,1) block=(256,1,1) lds={LDS_SIZE}\n"
    out += '.amdgcn_target "amdgcn-amd-amdhsa--gfx950"\n.text\n'
    out += f".globl {KNAME}\n.p2align 8\n.type {KNAME},@function\n{KNAME}:\n"
    out += body
    out += f'''.section .rodata,"a"
.p2align 6
.amdhsa_kernel {KNAME}
  .amdhsa_next_free_vgpr 512
  .amdhsa_next_free_sgpr 102
  .amdhsa_accum_offset 256
  .amdhsa_group_segment_fixed_size 0
  .amdhsa_kernarg_size 88
  .amdhsa_user_sgpr_count 2
  .amdhsa_user_sgpr_kernarg_segment_ptr 1
  .amdhsa_system_sgpr_workgroup_id_x 1
.end_amdhsa_kernel
'''
    stats["ninstr"] = sum(1 for i in items if i.kind not in ("none", "label")); stats["vhigh"] = V.high
    return out, stats

if __name__ == "__main__":
    cfg = Cfg()
    outp = sys.argv[1]
    for a in sys.argv[2:]:
        k, v = a.split("=")
        setattr(cfg, k, int(v))
    s, st = build(cfg)
    open(outp, "w").write(s)
    print(st)
```

```python
import sys, math, struct
from core import *

NAME = "sequential_preLN__sliding_local_dilated__dense_activation_gelu__prompt"
KNAME = NAME + "_kernel"

FS      = 2048
WS_O    = 0
WS_H    = 4 << 20
WS_ST   = 8 << 20
WS_FL   = 9 << 20
WS_H1   = 10 << 20
WS_DBG  = 25 << 20
WS_SIZE = 26 << 20
FA0, FB0, FEP = 0, 512, 896

def f2u(x): return struct.unpack("<I", struct.pack("<f", x))[0]
def hx(x): return hex(x & 0xffffffff)
def fl(x): return hx(f2u(x))
C1 = -2.0 * math.sqrt(2.0 / math.pi) * math.log2(math.e)
C2 = C1 * 0.044715

sX, sWQ, sWO, sW1, sW2, sWS, sOUT = 28, 32, 36, 40, 44, 48, 52
sB1, sB2 = 14, 18
s_w, s_xg, s_j, s_rt, s_i16, s_R = 56, 57, 58, 59, 60, 61
s_t0, s_t1, s_t2, s_t3 = 62, 63, 64, 65
s_wl, s_xl0, s_xl2 = 66, 67, 68
s_nh, s_sh, s_i16c = 69, 70, 71
s_cw = 72
s_xs = (80, 85, 90)
s_m1, s_m2, s_m3, s_diag = 72, 74, 76, 78
s_odd, s_va0, s_va1, s_vb0, s_vb1, s_fa0, s_fa1 = 80, 82, 84, 86, 88, 90, 92
s_nonce = 94
s_k32 = 96
s_c4 = 97
s_sv = 98
s_rot = 99
s_stamp = 100
s_a, s_b, s_c, s_d = 4, 5, 6, 7
s_so, s_so2 = 8, 9
s_4k, s_8k, s_12k = 10, 11, 12
s_woG = 13
s_cnt = 16
s_woC = 17
s_b0, s_b1, s_b2, s_wg = 20, 21, 22, 23
s_woAl, s_woCl = 24, 25
s_h0, s_h1 = 26, 27
def srd(n): return f"s[{n}:{n+3}]"
def sp(n): return f"s[{n}:{n+1}]"
def vr(a, n=1): return f"v{a}" if n == 1 else f"v[{a}:{a+n-1}]"
def ar(a, n=4): return f"a[{a}:{a+n-1}]"

def mask64(fn):
    m = 0
    for l in range(64):
        if fn(l): m |= 1 << l
    return m
def set_mask(s, m):
    return [f"s_mov_b32 s{s}, {hx(m & 0xffffffff)}", f"s_mov_b32 s{s+1}, {hx(m >> 32)}"]

L_X = 0; L_R = 81920; L_M = 159744
L_WA = 131072; L_WB = 81920; L_WC = 106496
L_EX2 = 131072; L_S = 131072
LDS_SIZE = 163840
KPOLL = 64

class Cfg:
    stop_after = 4
    stamps = 0
    rotate = 4
    codepf = 1
    touch = 1
    outmode = 0
    endsleep = 0
    startsleep = 0
    jshift = 0
    w1a_early = 8
    d3 = 14
    d4 = 7
    capB = 6
    capC = 8
    pktail = 1
    u16 = 1
    crem = 40
    stage = 0
    g1c = 1
    touch_at = 9
    touch_step = 1
    touch_wo = 5
    burst = 0
    latevm = 9
    rt = 0
class G: pass

def stamp(p, g, idx):
    if not g.cfg.stamps: return
    p(f"s_mem{'real' if g.cfg.rt else ''}time {sp(s_stamp)}")
    p("s_waitcnt lgkmcnt(0)")
    p(f"v_writelane_b32 v{g.vstamp}, s{s_stamp}, {idx}")

def make_srd(s, base, nbytes):
    return [f"s_mov_b32 s{s}, s{base}", f"s_and_b32 s{s+1}, s{base+1}, 0xffff",
            f"s_mov_b32 s{s+2}, {nbytes}", f"s_mov_b32 s{s+3}, 0x00020000"]

def frag_lane(p, dst, tmp):
    p(f"v_add_u32 v{tmp}, 40, v0"); p(f"v_bfe_u32 v{tmp}, v{tmp}, 6, 1"); p(f"v_lshlrev_b32 v{tmp}, 7, v{tmp}")
    p(f"v_lshl_add_u32 v{dst}, v0, 4, v{tmp}")

def soff_for(idx):
    so = ["0", f"s{s_4k}", f"s{s_8k}", f"s{s_12k}"][idx >> 1]
    return so, (f" offset:{FS}" if idx & 1 else "")

def m16k32(d, A, B, c): return f"v_mfma_f32_16x16x32_bf16 {vr(d,4)}, {A}, {B}, {c}"
def m16k16(d, A, B, c): return f"v_mfma_f32_16x16x16_bf16 {vr(d,4)}, {vr(A,2)}, {vr(B,2)}, {c}"
def m32(d, A, B, c): return f"v_mfma_f32_32x32x16_bf16 {d}, {A}, {B}, {c}"

def prologue(p, g):
    cfg, V = g.cfg, g.V
    p("s_cmp_ge_u32 s2, 256")
    p("s_cbranch_scc1 L_end")
    p("s_load_dwordx16 s[4:19], s[0:1], 0")
    p("s_load_dwordx4 s[20:23], s[0:1], 64")
    p("s_load_dwordx2 s[24:25], s[0:1], 80")
    p("s_getpc_b64 s[26:27]")
    p.label("L_pc")
    p("v_lshrrev_b32 v1, 6, v0")
    p("v_and_b32 v0, 63, v0")
    p(f"v_readfirstlane_b32 s{s_w}, v1")
    p(f"s_lshr_b32 s{s_t0}, s2, 3")
    if cfg.codepf:
        p(f"s_lshl_b32 s{s_t1}, s{s_t0}, 2")
        p(f"s_add_u32 s{s_t1}, s{s_t1}, s{s_w}")
        p(f"s_lshl_b32 s{s_t1}, s{s_t1}, 8")
        p("v_lshlrev_b32 v1, 2, v0")
        p(f"v_add_u32 v1, s{s_t1}, v1")
        p(f"s_mov_b32 s{s_t1}, L_code_end-L_pc-4")
        p(f"v_min_u32 v1, s{s_t1}, v1")
        p(f"global_load_dword v{g.vdummy}, v1, s[26:27]")
    p(f"s_and_b32 s{s_xg}, s2, 7")
    if cfg.jshift:
        p(f"s_add_u32 s{s_j}, s{s_t0}, {cfg.jshift}"); p(f"s_and_b32 s{s_j}, s{s_j}, 7")
        p(f"s_and_b32 s{s_i16}, s{s_t0}, 8"); p(f"s_or_b32 s{s_i16}, s{s_i16}, s{s_j}")
    else:
        p(f"s_and_b32 s{s_j}, s{s_t0}, 7")
        p(f"s_and_b32 s{s_i16}, s{s_t0}, 15")
    p(f"s_lshr_b32 s{s_c4}, s{s_t0}, 3")
    p(f"s_lshl_b32 s{s_rt}, s{s_xg}, 2")
    p(f"s_add_u32 s{s_rt}, s{s_rt}, s{s_c4}")
    p(f"s_lshr_b32 s{s_R}, s{s_rt}, 1")
    p(f"s_lshr_b32 s{s_nh}, s{s_w}, 1"); p(f"s_and_b32 s{s_sh}, s{s_w}, 1")
    if cfg.rotate == 2:
        p(f"s_lshl_b32 s{s_rot}, s{s_c4}, 1"); p(f"s_add_u32 s{s_rot}, s{s_rot}, s{s_j}"); p(f"s_add_u32 s{s_rot}, s{s_rot}, s{s_xg}")
        p(f"s_and_b32 s{s_rot}, s{s_rot}, 7")
    elif cfg.rotate == 3:
        p(f"s_lshl_b32 s{s_rot}, s{s_c4}, 1"); p(f"s_add_u32 s{s_rot}, s{s_rot}, s{s_xg}")
        p(f"s_and_b32 s{s_rot}, s{s_rot}, 7")
    elif cfg.rotate == 4:
        p(f"s_lshl_b32 s{s_rot}, s{s_c4}, 1"); p(f"s_cmp_eq_u32 s{s_j}, 3"); p(f"s_cselect_b32 s{s_rot}, s{s_rot}, 0")
        p(f"s_add_u32 s{s_rot}, s{s_rot}, s{s_xg}"); p(f"s_and_b32 s{s_rot}, s{s_rot}, 7")
    elif cfg.rotate == 1: p(f"s_mov_b32 s{s_rot}, s{s_xg}")
    else: p(f"s_mov_b32 s{s_rot}, 0")
    rot = f"s{s_rot}"
    for i in range(8):
        p(f"s_add_u32 s{s_t0}, {rot}, {i}")
        p(f"s_and_b32 s{s_t0}, s{s_t0}, 7")
        p(f"s_mul_i32 s{s_cw+i}, s{s_t0}, 196608")

def xgroup_sregs(gi, st):
    b = s_xs[st]; P = s_t2
    o = [f"s_lshr_b32 s{s_t3}, s{s_j}, 1"]
    if gi == 0: o += [f"s_mov_b32 s{P}, 0"]
    elif gi == 1: o += [f"s_max_u32 s{P}, s{s_t3}, 1"]
    elif gi == 2: o += [f"s_cmp_le_u32 s{s_t3}, 1", f"s_cselect_b32 s{P}, 2, 1"]
    else: o += [f"s_cmp_eq_u32 s{s_t3}, 3", f"s_cselect_b32 s{P}, 2, 3"]
    o += [f"s_mul_i32 s{s_t3}, s{P}, 20480",
          f"s_add_u32 s{b}, s{s_xl0}, s{s_t3}", f"s_add_u32 s{b+1}, s{s_xl2}, s{s_t3}",
          f"s_lshl_b32 s{P}, s{P}, 1", f"s_add_u32 s{P}, s{P}, s{s_rot}",
          f"s_and_b32 s{s_t3}, s{P}, 7", f"s_lshl_b32 s{b+2}, s{s_t3}, 7",
          f"s_add_u32 s{P}, s{P}, 1", f"s_and_b32 s{s_t3}, s{P}, 7", f"s_lshl_b32 s{b+3}, s{s_t3}, 7",
          f"s_cmp_eq_u32 s{s_nh}, 0", f"s_cselect_b32 s{b+4}, s{b+2}, s{b+3}"]
    return o

def p1_addresses(p, g):
    V = g.V
    a = g.p1a = {k: V.alloc() for k in ["Wd0", "Wd1", "X0", "X1", "X2", "Xr0", "Xr1", "Ow0", "Ow1", "Hal", "Wr", "Wr2"]}
    t0, t1, t2, t3, t4 = t = [V.alloc() for _ in range(5)]
    p(f"v_lshrrev_b32 v{t0}, 3, v0")
    p(f"s_lshl_b32 s{s_t0}, s{s_w}, 4")
    p(f"v_add_u32 v{t1}, s{s_t0}, v{t0}")
    p(f"v_mul_u32_u24 v{t1}, 3072, v{t1}")
    p(f"v_bfe_u32 v{t2}, v0, 1, 2")
    p(f"v_bfe_u32 v{t3}, v0, 4, 1")
    p(f"v_xor_b32 v{t2}, v{t2}, v{t3}")
    p(f"v_lshlrev_b32 v{t2}, 5, v{t2}")
    p(f"v_and_b32 v{t3}, 1, v0")
    p(f"v_lshlrev_b32 v{t3}, 4, v{t3}")
    p(f"v_add3_u32 v{t1}, v{t1}, v{t2}, v{t3}")
    p(f"s_lshl_b32 s{s_t1}, s{s_j}, 7")
    p(f"v_add_u32 v{a['Wd0']}, s{s_t1}, v{t1}")
    p(f"v_xor_b32 v{a['Wd1']}, 64, v{a['Wd0']}")
    p(f"v_add_u32 v{a['Wd1']}, {8*3072}, v{a['Wd1']}")
    p(f"s_lshl_b32 s{s_wl}, s{s_w}, 11")
    p(f"s_add_u32 s{s_wl}, s{s_wl}, {L_R}")
    p(f"s_lshl_b32 s{s_t1}, s{s_sh}, 2")
    p(f"v_lshrrev_b32 v{t1}, 4, v0")
    p(f"v_add_u32 v{t1}, s{s_t1}, v{t1}")
    p(f"v_and_b32 v{t2}, 7, v0")
    p(f"v_xor_b32 v{t1}, v{t1}, v{t2}")
    p(f"v_lshlrev_b32 v{t1}, 4, v{t1}")
    p(f"v_lshl_add_u32 v{t1}, v{t0}, 10, v{t1}")
    p(f"s_lshl_b32 s{s_t1}, s{s_rt}, 6")
    p(f"s_lshl_b32 s{s_t2}, s{s_w}, 3")
    p(f"s_add_u32 s{s_t2}, s{s_t1}, s{s_t2}")
    p(f"s_sub_i32 s{s_t3}, s{s_t2}, 16")
    p(f"s_max_i32 s{s_t3}, s{s_t3}, 0")
    p(f"s_lshl_b32 s{s_t3}, s{s_t3}, 10")
    p(f"v_add_u32 v{a['X0']}, s{s_t3}, v{t1}")
    p(f"s_add_u32 s{s_t3}, s{s_t2}, 16")
    p(f"s_lshl_b32 s{s_t3}, s{s_t3}, 10")
    p(f"v_add_u32 v{a['X1']}, s{s_t3}, v{t1}")
    p(f"s_lshl_b32 s{s_t2}, s{s_sh}, 3")
    p(f"s_add_u32 s{s_t3}, s{s_t1}, s{s_t2}")
    p(f"s_add_u32 s{s_t3}, s{s_t3}, 48")
    p(f"s_lshl_b32 s{s_t3}, s{s_t3}, 10")
    p(f"v_add_u32 v{a['X2']}, s{s_t3}, v{t1}")
    p(f"s_lshl_b32 s{s_xl0}, s{s_w}, 10")
    p(f"s_mul_i32 s{s_xl2}, s{s_nh}, 10240")
    p(f"s_lshl_b32 s{s_t2}, s{s_sh}, 10")
    p(f"s_add_u32 s{s_xl2}, s{s_xl2}, s{s_t2}")
    p(f"s_add_u32 s{s_xl2}, s{s_xl2}, 8192")
    p(f"v_and_b32 v{t0}, 15, v0")
    p(f"v_lshrrev_b32 v{t1}, 4, v0")
    p(f"v_lshrrev_b32 v{t2}, 1, v{t0}")
    p(f"v_xor_b32 v{t2}, v{t2}, v{t1}")
    p(f"v_lshlrev_b32 v{t2}, 4, v{t2}")
    p(f"v_lshl_add_u32 v{a['Xr0']}, v{t0}, 7, v{t2}")
    p(f"v_xor_b32 v{a['Xr1']}, 64, v{a['Xr0']}")
    p(f"s_add_u32 s{s_t2}, s{s_w}, 1")
    p(f"s_lshl_b32 s{s_t2}, s{s_t2}, 11")
    p(f"v_add_u32 v{a['Ow0']}, s{s_t2}, v{a['Xr0']}")
    p(f"v_add_u32 v{a['Ow1']}, s{s_t2}, v{a['Xr1']}")
    p(f"s_lshl_b32 s{s_t2}, s{s_sh}, 6")
    p(f"v_xor_b32 v{a['Hal']}, s{s_t2}, v{a['Xr0']}")
    p(f"s_mul_i32 s{s_t2}, s{s_nh}, 10240")
    p(f"v_add_u32 v{a['Hal']}, s{s_t2}, v{a['Hal']}")
    p(f"v_lshrrev_b32 v{t2}, 2, v{t0}")
    p(f"v_lshl_add_u32 v{t2}, v{t1}, 3, v{t2}")
    p(f"v_lshlrev_b32 v{t2}, 7, v{t2}")
    p(f"v_bfe_u32 v{t3}, v0, 3, 1")
    p(f"v_bfe_u32 v{t4}, v0, 4, 1")
    p(f"v_lshl_add_u32 v{t3}, v{t4}, 1, v{t3}")
    p(f"v_xor_b32 v{t3}, s{s_w}, v{t3}")
    p(f"v_lshl_add_u32 v{t2}, v{t3}, 5, v{t2}")
    p(f"v_and_b32 v{t3}, 3, v0")
    p(f"v_lshl_add_u32 v{t2}, v{t3}, 3, v{t2}")
    p(f"v_add_u32 v{a['Wr']}, {L_R}, v{t2}")
    p(f"v_add_u32 v{a['Wr2']}, 49152, v{a['Wr']}")
    for r in t: V.free(r)

def dma_w(g, i):
    a = g.p1a; out = []
    slot = i % 3
    for X in range(3):
        for e in range(2):
            off = f" offset:{X*1024}" if X else ""
            out.append((f"s_add_u32 m0, s{s_wl}, {slot*24576 + X*7168 + e*1024}",
                        T(f"buffer_load_dwordx4 v{a['Wd%d' % e]}, {srd(sWQ)}, s{s_cw+i} offen{off} lds", f"W{i}")))
    return out

def dma_x(g, gi, st):
    a = g.p1a; b = s_xs[st]; tag = f"G{gi}"
    out = []
    for ii in range(2):
        out.append((f"s_add_u32 m0, s{b}, {L_X + ii*10240}", T(f"buffer_load_dwordx4 v{a['X0']}, {srd(sX)}, s{b+2+ii} offen lds", tag)))
        out.append((f"s_add_u32 m0, s{b}, {L_X + ii*10240 + 4096}", T(f"buffer_load_dwordx4 v{a['X1']}, {srd(sX)}, s{b+2+ii} offen lds", tag)))
    out.append((f"s_mov_b32 m0, s{b+1}", T(f"buffer_load_dwordx4 v{a['X2']}, {srd(sX)}, s{b+4} offen lds", tag)))
    return out

def pairs_with_sep(pairs, seps, after=2):
    out = []
    for pre, dma in pairs:
        pre = pre if isinstance(pre, list) else [pre]
        out += pre
        if len(pre) == 1 and seps: out.append(seps.pop(0))
        out.append(dma)
        for _ in range(after):
            if seps: out.append(seps.pop(0))
    return out

def fifo_pairs(pairs):
    out = []
    for pre, dma in pairs:
        out += pre if isinstance(pre, list) else [pre]
        out += dma if isinstance(dma, list) else [dma]
    return out

def dma_group(regs, sr, m0expr, soexpr, n, tag, so):
    pre = [m0expr, soexpr]
    out = []
    for e in range(n):
        off = f" offset:{e*1024}" if e else ""
        ins = T(f"buffer_load_dwordx4 v{regs[e]}, {srd(sr)}, s{so} offen{off} lds", tag)
        out.append((pre if e == 0 else [], ins))
    return out

def wo_piece(g, which):
    out = []
    if which < 2:
        for q0, n in ((0, 4), (4, 2)):
            out += dma_group(g.vW2e, sWO, f"s_add_u32 m0, s{s_woAl}, {(L_WA, L_WB)[which] - L_WA + q0*1024}",
                             f"s_add_u32 s{s_so}, s{s_woG}, {which*96*1024 + q0*8192}", n, "wo", s_so)
    else:
        out += dma_group(g.vW2e, sWO, f"s_mov_b32 m0, s{s_woCl}", f"s_mov_b32 s{s_so}, s{s_woC}", 4, "wo", s_so)
    return out

def w1_dma(g, half, us):
    out = []
    us = list(us)
    for u0 in us[::4]:
        out += dma_group(g.vW1e, sW1, f"s_add_u32 m0, s{s_b1}, {half*65536 + u0*1024}", f"s_add_u32 s{s_so2}, s{(s_h0, s_h1)[half]}, {u0*8*3584}", 4,
                         "w1a" if half == 0 else "w1b", s_so2)
    return out

def w2_slot(s):
    if s < 3: return (0, s * 2048)
    if s < 11: return (1, (s - 3) * 2048)
    return (2, (s - 11) * 2048)

def w2_dma_to(g, u, slot, n=1):
    grp, off = w2_slot(slot)
    sb = (s_b0, s_b1, s_b2)[grp]
    res = dma_group(g.vW2e, sW2, f"s_add_u32 m0, s{sb}, {off}", f"s_add_u32 s{s_so}, s{s_wg}, {16*u*1024}", 2*n, None, s_so)
    return [(pre, T(ins[1], f"w2_{u + e//2}")) for e, (pre, ins) in enumerate(res)]

def w2_range(g, u0, slot0, count):
    out = []
    for k_ in range(0, count, 2): out += w2_dma_to(g, u0 + k_, slot0 + k_, min(2, count - k_))
    return out

def setup_ops(g):
    V = g.V; cfg = g.cfg
    p = Prog()
    for s, b, n in ((sWS, 24, WS_SIZE), (sWO, 8, 512*512*2), (sW1, 12, 512*1792*2), (sW2, 16, 1792*512*2), (sOUT, 20, 2048*512*2)):
        p.add(make_srd(s, b, n))
    p(f"s_lshr_b32 s{s_a}, s{s_i16}, 3"); p(f"s_mul_i32 s{s_a}, s{s_a}, 7"); p(f"s_add_u32 s{s_i16c}, s{s_a}, s{s_j}")
    p(f"s_add_u32 s{s_a}, s{s_j}, 4"); p(f"s_lshr_b32 s{s_a}, s{s_a}, 3")
    p(f"s_sub_u32 s{s_i16c}, s{s_i16c}, s{s_a}")
    p(f"s_and_b32 s{s_h0}, s{s_i16c}, 1"); p(f"s_lshl_b32 s{s_h0}, s{s_h0}, 7"); p(f"s_xor_b32 s{s_h1}, s{s_h0}, 128")
    p(f"s_mov_b32 s{s_4k}, 4096"); p(f"s_mov_b32 s{s_8k}, 8192"); p(f"s_mov_b32 s{s_12k}, 12288"); p(f"s_mov_b32 s{s_k32}, 65536")
    p(f"s_lshl_b32 s{s_woG}, s{s_nh}, 8"); p(f"s_mul_i32 s{s_a}, s{s_sh}, 48"); p(f"s_add_u32 s{s_woG}, s{s_woG}, s{s_a}"); p(f"s_lshl_b32 s{s_woG}, s{s_woG}, 10")
    p(f"s_lshl_b32 s{s_woC}, s{s_nh}, 8"); p(f"s_lshl_b32 s{s_a}, s{s_sh}, 5"); p(f"s_add_u32 s{s_woC}, s{s_woC}, s{s_a}"); p(f"s_add_u32 s{s_woC}, s{s_woC}, 192"); p(f"s_lshl_b32 s{s_woC}, s{s_woC}, 10")
    p(f"s_mul_i32 s{s_woAl}, s{s_w}, 6144"); p(f"s_add_u32 s{s_woAl}, s{s_woAl}, {L_WA}")
    p(f"s_lshl_b32 s{s_woCl}, s{s_w}, 12"); p(f"s_add_u32 s{s_woCl}, s{s_woCl}, {L_WC}")
    p(f"s_mul_i32 s{s_b0}, s{s_w}, 7168"); p(f"s_add_u32 s{s_b0}, s{s_b0}, {L_S}")
    p(f"s_lshl_b32 s{s_b1}, s{s_w}, 14"); p(f"s_add_u32 s{s_b2}, s{s_b1}, 65536")
    p(f"s_mul_i32 s{s_wg}, s{s_w}, {448*1024}")
    g.vW1e = [V.alloc() for _ in range(4)]; g.vW2e = [V.alloc() for _ in range(4)]
    g.vW1d, g.vW2d = g.vW1e[0], g.vW2e[0]
    t0, t1, t2 = V.alloc(), V.alloc(), V.alloc()
    p(f"v_and_b32 v{t0}, 7, v0")
    p(f"v_lshrrev_b32 v{t1}, 2, v{t0}")
    p(f"v_bfe_u32 v{t2}, v0, 4, 1")
    p(f"v_xor_b32 v{t1}, v{t1}, v{t2}")
    p(f"v_and_b32 v{t0}, 3, v{t0}")
    p(f"v_lshl_add_u32 v{t0}, v{t1}, 2, v{t0}")
    p(f"v_lshlrev_b32 v{t0}, 4, v{t0}")
    p(f"v_lshrrev_b32 v{t1}, 3, v0")
    p(f"v_lshl_add_u32 v{t2}, v{t1}, 10, v{t0}")
    p(f"s_lshl_b32 s{s_a}, s{s_j}, 7")
    p(f"v_add_u32 v{g.vW2d}, s{s_a}, v{t2}")
    p(f"v_mul_u32_u24 v{t1}, 3584, v{t1}")
    p(f"v_add_u32 v{t1}, v{t1}, v{t0}")
    p(f"s_mul_i32 s{s_a}, s{s_w}, {16*8*3584}")
    p(f"s_lshl_b32 s{s_b}, s{s_i16c}, 8")
    p(f"s_add_u32 s{s_a}, s{s_a}, s{s_b}")
    p(f"v_add_u32 v{g.vW1d}, s{s_a}, v{t1}")
    for e in range(1, 4):
        p(f"v_add_u32 v{g.vW1e[e]}, {e*(8*3584 - 1024)}, v{g.vW1d}")
        p(f"v_add_u32 v{g.vW2e[e]}, {e*(8192 - 1024)}, v{g.vW2d}")
    g.vFl = V.alloc(); g.vMyFl = V.alloc(); g.vEp = V.alloc(2)
    p(f"s_lshl_b32 s{s_a}, s{s_R}, 10")
    p(f"s_add_u32 s{s_a}, s{s_a}, {WS_FL}")
    p(f"v_and_b32 v{t0}, 15, v0")
    p(f"v_lshlrev_b32 v{t0}, 3, v{t0}")
    p(f"v_add_u32 v{g.vFl}, s{s_a}, v{t0}")
    p(f"s_lshl_b32 s{s_b}, s{s_i16}, 3")
    p(f"s_add_u32 s{s_b}, s{s_b}, s{s_a}")
    p(f"v_mov_b32 v{g.vMyFl}, s{s_b}")
    late = g.late_vm = []; g.late_regs = []
    def keep():
        r = V.alloc(); g.late_regs.append(r); return r
    r = keep()
    p(f"v_mov_b32 v{r}, s{s_a}")
    late.append(T(f"buffer_load_dwordx2 {vr(g.vEp,2)}, v{r}, {srd(sWS)}, 0 offen offset:{FEP} sc1", "ep"))
    r = keep()
    p(f"v_min_u32 v{r}, 2, v0")
    p(f"v_lshlrev_b32 v{r}, 7, v{r}")
    p(f"v_add_u32 v{r}, s{s_a}, v{r}")
    late.append(T(f"buffer_load_dword v{g.vdummy}, v{r}, {srd(sWS)}, 0 offen", "warm"))
    g.vB1 = V.alloc(4); g.vB2 = V.alloc(8)
    g.touches = {}
    if cfg.touch:
        ra, rb, rc = keep(), keep(), keep()
        p(f"s_lshl_b32 s{s_a}, s2, 2"); p(f"s_add_u32 s{s_a}, s{s_a}, s{s_w}")
        p(f"v_lshlrev_b32 v{rc}, 4, v0")
        p(f"s_mul_i32 s{s_b}, s{s_a}, 1792"); p(f"v_add_u32 v{rb}, s{s_b}, v{rc}")
        p(f"s_lshl_b32 s{s_b}, s{s_a}, 9"); p(f"v_add_u32 v{ra}, s{s_b}, v{rc}")
        p(f"v_mov_b32 v{t2}, 0x7ffffff0")
        p(f"v_cmp_gt_u32 vcc, 32, v0"); p(f"v_add_u32 v{rc}, 1024, v{rb}"); p(f"s_nop 0"); p(f"v_cndmask_b32 v{ra}, v{t2}, v{ra}, vcc")
        p(f"v_cmp_gt_u32 vcc, 48, v0"); p(f"s_nop 1"); p(f"v_cndmask_b32 v{rc}, v{t2}, v{rc}, vcc")
        D4 = vr(g.vdummy, 4)
        def tl(sr, r): return [T(f"buffer_load_dwordx4 {D4}, v{r}, {srd(sr)}, 0 offen", "touch")]
        t = cfg.touch_at
        st_ = cfg.touch_step
        g.touches = {}
        for q_, ops_ in enumerate((tl(sW1, rb), tl(sW1, rc), tl(sW2, rb), tl(sW2, rc))): g.touches.setdefault(t + q_*st_, []).extend(ops_)
        g.touches.setdefault(cfg.touch_wo, []).extend(tl(sWO, ra))
    r = keep()
    p(f"v_and_b32 v{r}, 31, v0")
    p(f"v_lshlrev_b32 v{r}, 1, v{r}")
    p(f"s_lshl_b32 s{s_a}, s{s_i16c}, 8")
    p(f"v_add_u32 v{r}, s{s_a}, v{r}")
    r2 = keep()
    p(f"v_add_u32 v{r2}, s{s_h1}, v{r}"); p(f"v_add_u32 v{r}, s{s_h0}, v{r}")
    for nt in range(4):
        late.append(T(f"global_load_ushort v{g.vB1+nt}, v{(r, r2)[nt >> 1]}, {sp(sB1)} offset:{(nt & 1)*64}", "b1"))
    r = keep()
    p(f"v_lshrrev_b32 v{r}, 5, v0")
    p(f"v_lshlrev_b32 v{r}, 3, v{r}")
    p(f"s_lshl_b32 s{s_a}, s{s_j}, 7")
    p(f"s_lshl_b32 s{s_b}, s{s_nh}, 6")
    p(f"s_add_u32 s{s_a}, s{s_a}, s{s_b}")
    p(f"v_add_u32 v{r}, s{s_a}, v{r}")
    for q in range(4):
        late.append(T(f"global_load_dwordx2 {vr(g.vB2+2*q,2)}, v{r}, {sp(sB2)} offset:{q*16}", "b2"))
    E = g.e1 = {}
    for k in ("NEG", "SelLo", "SelHi", "C512", "A1", "A2", "A3", "O", "O1"): E[k] = V.alloc()
    E["C8"] = V.alloc(2); E["XR"] = V.alloc(4)
    E["MA"] = V.alloc(4); E["MB"] = V.alloc(4); E["MA0"] = V.alloc(4)
    p(f"v_mov_b32 v{E['NEG']}, 0xff800000")
    p(f"v_and_b32 v{t0}, 1, v0")
    p(f"v_cmp_eq_u32 vcc, 1, v{t0}")
    p(f"v_mov_b32 v{E['SelLo']}, 0x0c0c0100"); p(f"v_mov_b32 v{t1}, 0x01000c0c")
    p(f"v_cndmask_b32 v{E['SelLo']}, v{E['SelLo']}, v{t1}, vcc")
    p(f"v_mov_b32 v{E['SelHi']}, 0x0c0c0302"); p(f"v_mov_b32 v{t1}, 0x03020c0c")
    p(f"v_cndmask_b32 v{E['SelHi']}, v{E['SelHi']}, v{t1}, vcc")
    p(f"v_mov_b32 v{t2}, 0")
    for r in range(4):
        for nm, fn in (("MA", lambda l, r=r: ((l & 15) + r) % 2 == 0 and 4*(l >> 4) + r >= (l & 15) + 2),
                       ("MB", lambda l, r=r: ((l & 15) + r) % 2 == 0 and 4*(l >> 4) + r <= (l & 15))):
            mk = mask64(fn)
            p(f"s_mov_b32 vcc_lo, {hx(mk & 0xffffffff)}"); p(f"s_mov_b32 vcc_hi, {hx(mk >> 32)}")
            p(f"v_cndmask_b32 v{E[nm]+r}, v{E['NEG']}, v{t2}, vcc")
    p(f"s_cmp_eq_u32 s{s_rt}, 0"); p(f"s_cselect_b64 vcc, -1, 0")
    for r in range(4): p(f"v_cndmask_b32 v{E['MA0']+r}, v{E['MA']+r}, v{E['NEG']}, vcc")
    p(f"v_mov_b32 v{E['C512']}, {fl(1/512)}")
    p(f"v_mov_b32 v{E['C8']}, 0x3e003e00"); p(f"v_mov_b32 v{E['C8']+1}, 0x3e003e00")
    p(f"v_and_b32 v{E['A3']}, 15, v0"); p(f"v_lshlrev_b32 v{E['A3']}, 3, v{E['A3']}"); p(f"v_add_u32 v{E['A3']}, {L_M}, v{E['A3']}")
    p(f"s_add_u32 s{s_a}, s{s_w}, 1"); p(f"s_lshl_b32 s{s_a}, s{s_a}, 7"); p(f"v_add_u32 v{E['A1']}, s{s_a}, v{E['A3']}")
    p(f"s_lshl_b32 s{s_a}, s{s_w}, 7"); p(f"s_add_u32 s{s_a}, s{s_a}, 1024"); p(f"v_add_u32 v{E['A2']}, s{s_a}, v{E['A3']}")
    p(f"v_bfe_u32 v{t0}, v0, 2, 2"); p(f"v_lshrrev_b32 v{t1}, 4, v0"); p(f"v_cmp_eq_u32 vcc, v{t0}, v{t1}")
    p(f"v_lshlrev_b32 v{t0}, 3, v0"); p(f"v_add_u32 v{t0}, {L_M + 2048}, v{t0}")
    p(f"v_cndmask_b32 v{E['A1']}, v{t0}, v{E['A1']}, vcc"); p(f"v_cndmask_b32 v{E['A2']}, v{t0}, v{E['A2']}, vcc")
    p(f"v_and_b32 v{t0}, 15, v0"); p(f"v_bfe_u32 v{t1}, v0, 5, 1"); p(f"v_mul_u32_u24 v{t1}, 640, v{t1}")
    p(f"v_lshl_add_u32 v{t1}, v{t0}, 4, v{t1}"); p(f"v_bfe_u32 v{t2}, v0, 4, 1"); p(f"v_lshl_add_u32 v{t1}, v{t2}, 3, v{t1}")
    p(f"s_lshl_b32 s{s_a}, s{s_j}, 2"); p(f"s_add_u32 s{s_a}, s{s_a}, s{s_w}"); p(f"s_lshl_b32 s{s_a}, s{s_a}, 11")
    p(f"s_lshl_b32 s{s_b}, s{s_rt}, 17"); p(f"s_add_u32 s{s_a}, s{s_a}, s{s_b}")
    p(f"v_add_u32 v{E['O']}, s{s_a}, v{t1}")
    p(f"v_bfe_u32 v{t0}, v0, 3, 1"); p(f"v_bfe_u32 v{t2}, v0, 5, 1"); p(f"v_xor_b32 v{t2}, 1, v{t2}"); p(f"v_and_b32 v{t0}, v{t0}, v{t2}")
    p(f"v_lshlrev_b32 v{t0}, 7, v{t0}"); p(f"v_add_u32 v{t0}, 256, v{t0}"); p(f"v_add_u32 v{E['O1']}, v{E['O']}, v{t0}")
    p(f"s_lshl_b32 s{s_a}, s{s_sh}, 5"); p(f"s_add_u32 s{s_a}, s{s_a}, 16")
    p(f"v_and_b32 v{t0}, 31, v0"); p(f"v_add_u32 v{t0}, s{s_a}, v{t0}")
    p(f"v_bfe_u32 v{t1}, v{t0}, 1, 3")
    p(f"s_lshl_b32 s{s_b}, s{s_nh}, 2"); p(f"v_xor_b32 v{t1}, s{s_b}, v{t1}")
    p(f"s_sub_u32 s{s_c}, s{s_j}, s{s_rot}"); p(f"s_and_b32 s{s_c}, s{s_c}, 7")
    p(f"s_mul_i32 s{s_c}, s{s_c}, 10240")
    p(f"v_lshrrev_b32 v{t2}, 5, v0"); p(f"v_lshlrev_b32 v{t2}, 3, v{t2}")
    p(f"v_lshl_add_u32 v{t2}, v{t0}, 7, v{t2}"); p(f"v_add_u32 v{t2}, s{s_c}, v{t2}")
    for q in range(4):
        p(f"v_xor_b32 v{t0}, {q}, v{t1}")
        p(f"v_lshl_add_u32 v{E['XR']+q}, v{t0}, 4, v{t2}")
    for r in (t0, t1, t2): V.free(r)
    for r in range(4): p(f"v_mov_b32 v{g.ones+r}, 0x3f803f80")
    return p.items

def phase1(p, g):
    V = g.V; a = g.p1a; ones = g.ones
    def fx(b, t): return 32*b + 4*t
    def fw(b, X): return 32*b + 20 + 4*X
    def fo(b, q): return 64 + 8*b + 4*q
    def fh(h): return 80 + 4*h
    Q = {t: V.alloc(4) for t in range(1, 5)}
    K = {t: V.alloc(4) for t in range(5)}
    Vv = {t: V.alloc(4) for t in range(5)}
    cs = [V.alloc(4) for _ in range(3)]
    sumO, gramO, sumH, gramH = (V.alloc(4) for _ in range(4))
    g.xres = xres = V.alloc(8)
    E = g.e1
    def stat_ks(n): return [n] if n < 8 else ([8 + 2*(n - 8), 9 + 2*(n - 8)] if n < 12 else [])
    halo = {2: 0, 4: 1, 7: 2, 8: 3}

    def reads(n):
        i, s_ = n >> 1, n & 1
        b = n & 1
        xo = (i * 10240 if i < 6 else (i - 6) * 10240)
        slot = i % 3
        wreg, wo = (a['Wr'], slot * 24576) if slot < 2 else (a['Wr2'], 0)
        xr = a['Xr%d' % s_]
        def wr(X): return [f"ds_read_b64_tr_b16 {ar(fw(b, X) + 2*rd, 2)}, v{wreg} offset:{wo + X*8192 + s_*4096 + rd*512}" for rd in range(2)]
        out = wr(1)
        out += [f"ds_read_b128 {ar(fx(b, t))}, v{xr} offset:{xo + t*2048}" for t in range(5)]
        out += wr(2) + wr(0)
        for q, ks in enumerate(stat_ks(n)):
            ii = ks >> 1
            out.append(f"ds_read_b128 {ar(fo(b, q))}, v{a['Ow%d' % (ks & 1)]} offset:{(ii if ii < 6 else ii - 6) * 10240}")
        return out
    O4 = vr(ones, 4)
    def mf(d, A, B, first): return m16k32(d, A, B, "0" if first else vr(d, 4))
    def mfmas(n):
        b = n & 1; f = n == 0
        x = lambda t: ar(fx(b, t)); w = lambda X: ar(fw(b, X))
        out = [mf(K[t], w(1), x(t), f) for t in range(5)]
        out.append(mf(cs[1], O4, w(1), f))
        for q, ks in enumerate(stat_ks(n)):
            out.append(mf(sumO, O4, ar(fo(b, q)), f)); out.append(mf(gramO, ar(fo(b, q)), ar(fo(b, q)), f))
        if n - 1 in halo:
            h = halo[n - 1]
            out.append(mf(sumH, O4, ar(fh(h & 1)), h == 0)); out.append(mf(gramH, ar(fh(h & 1)), ar(fh(h & 1)), h == 0))
        out += [mf(Vv[t], x(t), w(2), f) for t in range(5)]
        out.append(mf(cs[2], O4, w(2), f))
        out += [mf(Q[t], w(0), x(t), f) for t in range(1, 5)]
        out.append(mf(cs[0], O4, w(0), f))
        return out
    masks = set_mask(s_m1, mask64(lambda l: (l & 3) == 1)) + set_mask(s_m2, mask64(lambda l: (l & 3) == 2)) + set_mask(s_m3, mask64(lambda l: (l & 3) == 3))
    PO, PH = V.alloc(2), V.alloc(2)
    extract = []
    for (dst, sm, gr) in ((PH, sumH, gramH), (PO, sumO, gramO)):
        extract += [f"v_cndmask_b32 v{dst+1}, v{gr}, v{gr+1}, {sp(s_m1)}", f"v_mov_b32 v{dst}, v{sm}",
                    f"v_cndmask_b32 v{dst+1}, v{dst+1}, v{gr+2}, {sp(s_m2)}", f"v_cndmask_b32 v{dst+1}, v{dst+1}, v{gr+3}, {sp(s_m3)}"]
    extract += [f"ds_write_b64 v{E['A2']}, {vr(PH,2)}", f"ds_write_b64 v{E['A1']}, {vr(PO,2)}"]
    ST = {t: V.alloc(2) for t in range(1, 5)}
    HP = [V.alloc(2) for _ in range(4)]
    gather = [f"ds_read_b64 {vr(HP[u],2)}, v{E['A3']} offset:{1024 + u*128}" for u in range(4)]
    gather += [f"ds_read_b64 {vr(ST[t],2)}, v{E['A3']} offset:{t*128}" for t in range(1, 5)]
    gather += [f"v_add_f32 v{HP[0]+h}, v{HP[0]+h}, v{HP[1]+h}" for h in range(2)] + [f"v_add_f32 v{HP[2]+h}, v{HP[2]+h}, v{HP[3]+h}" for h in range(2)]
    gather += [f"v_add_f32 v{HP[0]+h}, v{HP[0]+h}, v{HP[2]+h}" for h in range(2)]
    ST[0] = HP[0]
    BM = {t: V.alloc(2) for t in range(5)}
    RS = {t: V.alloc(2) for t in range(5)}
    rstd = {t: V.alloc(2) for t in range(5)}
    cq = {t: V.alloc(2) for t in range(1, 5)}
    s1, s2, tmps = [], [], []
    for t in (1, 2, 3, 4, 0):
        a0, a1, a2, a3 = (V.alloc() for _ in range(4)); tmps += [a0, a1, a2, a3]
        sm, sq = ST[t], ST[t] + 1
        s1.append([f"v_mul_f32 v{a0}, {fl(-1/2048)}, v{sm}",
                   f"v_fmaak_f32 v{a1}, v{sq}, v{E['C512']}, {fl(1e-5)}",
                   f"v_mul_f32 v{a2}, v{E['C512']}, v{sm}",
                   f"v_fma_f32 v{a1}, -v{a2}, v{a2}, v{a1}",
                   f"v_rsq_f32 v{rstd[t]}, v{a1}"])
        s2.append(split_hi_lo(a0, BM[t], a2, a3, True) + split_hi_lo(rstd[t], RS[t], a2, a3, True) +
                  ([f"v_mul_f32 v{cq[t]}, {fl(0.25*math.log2(math.e))}, v{rstd[t]}"] if t >= 1 else []))
    prep1, prep2 = zipmerge(*s1), zipmerge(*s2)

    p.wait_vm(["G0", "W0"]); p("s_barrier")
    stamp(p, g, 1)
    p.add(reads(0))
    for n in range(16):
        i, s_ = n >> 1, n & 1
        if s_ == 1 and i < 7:
            tags = [f"W{i+1}"] + {1: ["G1", "G2"], 3: ["G3"]}.get(i, [])
            p.wait_lgkm0(); p.wait_vm(tags); p("s_barrier")
            if g.cfg.stamps >= 2: stamp(p, g, 22 + i)
        else:
            p.wait_lgkm0()
        m = mfmas(n)
        rd = []
        if n == 9: rd += [f"v_add_u32 v{a[k]}, 61440, v{a[k]}" for k in ("Ow0", "Ow1")]
        if n == 11: rd += [f"v_add_u32 v{a[k]}, 61440, v{a[k]}" for k in ("Xr0", "Xr1")]
        if n < 15: rd += reads(n + 1)
        if n in halo:
            pr = halo[n]
            if pr == 3: rd.append(f"v_add_u32 v{a['Hal']}, 61440, v{a['Hal']}")
            rd.append(f"ds_read_b128 {ar(fh(pr & 1))}, v{a['Hal']} offset:{pr * 20480 if pr < 3 else 0}")
        dm = []
        if s_ == 1 and i + 3 < 8: dm = dma_w(g, i + 3)
        if n == 0: dm = dma_x(g, 2, 2) + dma_w(g, 2)
        if n == 2: dm = dma_x(g, 3, 0)
        if n == 11 and g.cfg.stop_after >= 2: dm = wo_piece(g, 0)
        if n == 13 and g.cfg.stop_after >= 2: dm = wo_piece(g, 1)
        extra = []; start = 0
        if n == 1: extra = xgroup_sregs(3, 0)
        if n == g.cfg.latevm + 1: extra = extra + list(g.late_vm)
        if n == 11: extra = extra + masks
        if n == 12: extra = extra + extract; start = 2
        if n == 13: extra = extra + gather
        if n == 14:
            extra = [f"ds_read_b64 {vr(xres + 2*q, 2)}, v{E['XR']+q} offset:{L_X}" for q in range(4)] + prep1
        if n == 15: extra = prep2
        fixed = {}
        for k, r in enumerate(rd): fixed.setdefault(min(k, len(m) - 4), []).append(r)
        ng = len(m) - 1
        for k, (pre, dma) in enumerate(dm):
            gk = min(ng - 1, (k * (ng - 1)) // max(1, len(dm) - (0 if len(dm) < ng else 1)))
            fixed.setdefault(gk, []).extend(pre if isinstance(pre, list) else [pre])
            fixed.setdefault(gk + 1, []).insert(0, dma)
        if g.cfg.touch and n in g.touches: fixed.setdefault(len(m) - 2, []).extend(g.touches[n])
        seq, _ = weave(m, fixed, atomize_scc(extra), cap=2, start=start)
        p.add(seq)
    g.p1 = dict(Q=Q, K=K, V=Vv, cs=cs, BM=BM, RS=RS, rstd=rstd, cq=cq)
    for r in (sumO, gramO, sumH, gramH): V.free(r, 4)
    V.free(PO, 2); V.free(PH, 2); V.free(E["XR"], 4)
    for t in range(1, 5): V.free(ST[t], 2)
    for u in range(4): V.free(HP[u], 2)
    for r in tmps: V.free(r)
    for k in ("A1", "A2", "A3", "C512"): V.free(E[k])
    for k in a: V.free(a[k])
    for r in g.late_regs: V.free(r)

def split_hi_lo(val, dst, t0, t1, dup):
    o = [f"v_cvt_pk_bf16_f32 v{t0}, v{val}, v{val}",
         f"v_and_b32 v{t0}, 0xffff0000, v{t0}",
         f"v_sub_f32 v{t1}, v{val}, v{t0}",
         f"v_cvt_pk_bf16_f32 v{dst}, v{t0}, v{t1}"]
    if dup: o.append(f"v_mov_b32 v{dst+1}, v{dst}")
    return o

def insert_dma(items, pairs, b, e):
    return spread_pairs(items, [(pre if isinstance(pre, list) else [pre], [dma]) for pre, dma in pairs], b, e)

def dma_fifo(pairs):
    out = []
    for pre, dma in pairs:
        pre = pre if isinstance(pre, list) else [pre]
        out += pre + [dma]
    return out

def phase1_epilogue(p0, g):
    V = g.V; P = g.p1; E = g.e1
    Q, K, Vv, cs = P["Q"], P["K"], P["V"], P["cs"]
    p = Prog()
    p.wait_lgkm0(); p("s_barrier")
    stamp(p, g, 2)
    i_start = len(p.items)
    BM, RS, rstd, cq = P["BM"], P["RS"], P["rstd"], P["cq"]
    RB = {t: V.alloc(4) for t in range(5)}
    for t in range(5): p(m16k16(RB[t], RS[t], E["C8"], "0"))
    CA = [V.alloc(2) for _ in range(3)]
    tt = [V.alloc(2) for _ in range(3)]
    p.add(zipmerge(*[[f"v_cvt_pk_bf16_f32 v{CA[X]}, v{cs[X]}, v{cs[X]}", f"v_and_b32 v{tt[X]}, 0xffff0000, v{CA[X]}",
                      f"v_sub_f32 v{tt[X]+1}, v{cs[X]}, v{tt[X]}", f"v_cvt_pk_bf16_f32 v{CA[X]+1}, v{tt[X]+1}, v{tt[X]+1}"] for X in (1, 0, 2)]))
    for X in range(3): V.free(cs[X], 4); V.free(tt[X], 2)
    for t in range(5): p(m16k16(K[t], CA[1], BM[t], vr(K[t], 4)))
    for t in range(1, 5): p(m16k16(Q[t], CA[0], BM[t], vr(Q[t], 4)))
    for t in range(5): p(m16k16(Vv[t], BM[t], CA[2], vr(Vv[t], 4)))
    for X in range(3): V.free(CA[X], 2)
    V.free(E["C8"], 2)
    for t in range(5): V.free(BM[t], 2); V.free(RS[t], 2)
    Qp = {t: V.alloc(2) for t in range(1, 5)}
    Kp = {t: V.alloc(2) for t in range(5)}
    Vp = V.alloc(10)
    st = []
    for t in range(5):
        s = [f"v_pk_mul_f32 {vr(K[t]+2*h,2)}, {vr(K[t]+2*h,2)}, {vr(rstd[t],2)} op_sel_hi:[1,0]" for h in range(2)]
        s += [f"v_cvt_pk_bf16_f32 v{Kp[t]+h}, v{K[t]+2*h}, v{K[t]+2*h+1}" for h in range(2)]
        if t >= 1: s += [f"v_cvt_pk_bf16_f32 v{Qp[t]+h}, v{Q[t]+2*h}, v{Q[t]+2*h+1}" for h in range(2)]
        st.append(s)
    p.add(zipmerge(*st))
    i_mid = len(p.items)
    for t in range(5): V.free(K[t], 4); V.free(rstd[t], 2)
    for t in range(1, 5): V.free(Q[t], 4)
    vst = []
    for t in range(5):
        vst += [f"v_mul_f32 v{Vv[t]+r}, v{RB[t]+r}, v{Vv[t]+r}" for r in range(4)]
        vst += [f"v_cvt_pk_bf16_f32 v{Vp+2*t+h}, v{Vv[t]+2*h}, v{Vv[t]+2*h+1}" for h in range(2)]
    ones = g.ones
    vSelLo, vSelHi = E["SelLo"], E["SelHi"]
    B = []; smf = []
    for b in range(4):
        qt = b + 1
        d = dict(Sa=V.alloc(4), Sb=V.alloc(4), P=V.alloc(4), O=V.alloc(4), Dn=V.alloc(4), v=V.alloc(4), m=V.alloc(2), X=V.alloc(2))
        B.append(d)
        smf += [m16k16(d["Sa"], Kp[qt-1], Qp[qt], vr(E["MA0" if b == 0 else "MA"], 4)), m16k16(d["Sb"], Kp[qt], Qp[qt], vr(E["MB"], 4))]
    seq, _ = weave(smf, {}, vst, cap=4)
    p.add(seq)
    def each(fn):
        p.add(zipmerge(*[fn(d, b) for b, d in enumerate(B)]))
    each(lambda d, b: [f"v_max_f32 v{d['v']}, v{d['Sa']}, v{d['Sa']+1}", f"v_max_f32 v{d['v']+1}, v{d['Sa']+2}, v{d['Sa']+3}",
                       f"v_max_f32 v{d['v']+2}, v{d['Sb']}, v{d['Sb']+1}", f"v_max_f32 v{d['v']+3}, v{d['Sb']+2}, v{d['Sb']+3}",
                       f"v_max3_f32 v{d['m']}, v{d['v']}, v{d['v']+1}, v{d['v']+2}", f"v_max_f32 v{d['m']}, v{d['m']}, v{d['v']+3}"])
    m0, m1, m2, m3 = (d["m"] for d in B)
    p(f"v_permlane32_swap_b32 v{m0}, v{m1}"); p(f"v_permlane32_swap_b32 v{m2}, v{m3}")
    p(f"v_max_f32 v{m0}, v{m0}, v{m1}"); p(f"v_max_f32 v{m2}, v{m2}, v{m3}")
    p(f"v_permlane16_swap_b32 v{m0}, v{m2}")
    p(f"v_max_f32 v{m0}, v{m0}, v{m2}")
    p(f"v_mov_b32 v{m2}, v{m0}")
    p(f"v_permlane16_swap_b32 v{m0}, v{m2}")
    p(f"v_mov_b32 v{m1}, v{m0}"); p(f"v_mov_b32 v{m3}, v{m2}")
    p(f"v_permlane32_swap_b32 v{m0}, v{m1}"); p(f"v_permlane32_swap_b32 v{m2}, v{m3}")
    P2 = lambda r: vr(r, 2)
    each(lambda d, b: [f"v_mul_f32 v{d['m']}, v{cq[b+1]}, v{d['m']}"] +
                      [f"v_pk_fma_f32 {P2(d['v']+2*h)}, {P2(d['v']+2*h)}, {P2(cq[b+1])}, {P2(d['m'])} op_sel_hi:[1,0,0] neg_lo:[0,0,1] neg_hi:[0,0,1]" for h in range(2)])
    each(lambda d, b: [f"v_exp_f32 v{d['v']+k_}, v{d['v']+k_}" for k_ in range(4)])
    each(lambda d, b: [f"v_cvt_pk_bf16_f32 v{d['X']}, v{d['v']}, v{d['v']+1}", f"v_cvt_pk_bf16_f32 v{d['X']+1}, v{d['v']+2}, v{d['v']+3}",
                       f"v_perm_b32 v{d['P']}, v{d['X']}, v{d['X']}, v{vSelLo}", f"v_perm_b32 v{d['P']+1}, v{d['X']}, v{d['X']}, v{vSelHi}",
                       f"v_perm_b32 v{d['P']+2}, v{d['X']+1}, v{d['X']+1}, v{vSelLo}", f"v_perm_b32 v{d['P']+3}, v{d['X']+1}, v{d['X']+1}, v{vSelHi}"])
    each(lambda d, b: [m16k32(d["Dn"], vr(ones, 4), vr(d["P"], 4), "0")])
    each(lambda d, b: [m16k32(d["O"], vr(Vp + 2*b, 4), vr(d["P"], 4), "0")])
    each(lambda d, b: [f"v_rcp_f32 v{d['Dn']}, v{d['Dn']}"])
    each(lambda d, b: [f"v_pk_mul_f32 {P2(d['O']+2*h)}, {P2(d['O']+2*h)}, {P2(d['Dn'])} op_sel_hi:[1,0]" for h in range(2)] +
                      [f"v_cvt_pk_bf16_f32 v{d['O']}, v{d['O']}, v{d['O']+1}", f"v_cvt_pk_bf16_f32 v{d['O']+1}, v{d['O']+2}, v{d['O']+3}",
                       T(f"buffer_store_dwordx2 {vr(d['O'],2)}, v{E['O1' if (b & 1) else 'O']}, {srd(sWS)}, {('s%d' % s_k32) if (b >> 1) else '0'} offen sc1", "ost")])
    for d in B:
        for k_, n_ in (("Sa", 4), ("Sb", 4), ("P", 4), ("O", 4), ("Dn", 4), ("v", 4), ("m", 2), ("X", 2)): V.free(d[k_], n_)
    for t in range(1, 5): V.free(Qp[t], 2); V.free(cq[t], 2)
    for t in range(5): V.free(Kp[t], 2); V.free(Vv[t], 4); V.free(RB[t], 4)
    V.free(Vp, 10); V.free(E["NEG"]); V.free(vSelLo); V.free(vSelHi); V.free(E["O"]); V.free(E["O1"])
    for k_ in ("MA", "MB", "MA0"): V.free(E[k_], 4)
    items = p.items
    if g.cfg.stop_after >= 2:
        items = insert_dma(items, wo_piece(g, 2) + w1_dma(g, 0, range(g.cfg.w1a_early)), i_start, i_mid)
    p0.add(items)

def get_nonce(p, g):
    p(f"v_readfirstlane_b32 s{s_nonce}, v{g.vEp}")
    p(f"v_readfirstlane_b32 s{s_nonce+1}, v{g.vEp+1}")
    p(f"s_add_u32 s{s_nonce}, s{s_nonce}, 2")
    p(f"s_or_b32 s{s_nonce}, s{s_nonce}, 1")
    p(f"v_mov_b32 v{g.vEp}, s{s_nonce}")
    p(f"v_mov_b32 v{g.vEp+1}, s{s_nonce+1}")

def signal(p, g, ph, tags):
    p.wait_vm(tags); p.wait_lgkm0()
    p("s_barrier")
    p(f"s_cmp_eq_u32 s{s_w}, 0")
    p(f"s_cselect_b64 exec, 1, 0")
    p(f"buffer_store_dwordx2 {vr(g.vEp,2)}, v{g.vMyFl}, {srd(sWS)}, 0 offen offset:{ph*128}", f"flagA{ph}")
    p("s_mov_b64 exec, -1")

def publish_b(g, ph):
    return [f"s_cmp_eq_u32 s{s_w}, 0", f"s_cselect_b64 exec, 1, 0",
            T(f"buffer_store_dwordx2 {vr(g.vEp,2)}, v{g.vMyFl}, {srd(sWS)}, 0 offen offset:{FB0 + ph*128} sc1", f"flagB{ph}"),
            "s_mov_b64 exec, -1"]

def wait_flags(p, g, ph, eight):
    V = g.V
    a = V.alloc(2); va = V.alloc()
    L = f"{ph}"; mask = 0xff if eight else 0xffff
    if eight:
        p(f"s_and_b32 s{s_a}, s{s_i16}, 8")
        p(f"s_lshl_b32 s{s_a}, s{s_a}, 3")
        p(f"v_add_u32 v{va}, s{s_a}, v{g.vFl}")
    else:
        p(f"v_mov_b32 v{va}, v{g.vFl}")
    p(f"s_mov_b32 s{s_cnt}, 0")
    p(f"s_mov_b64 exec, {mask}")
    p.label(f"L_poll{L}")
    p(f"buffer_load_dwordx2 {vr(a,2)}, v{va}, {srd(sWS)}, 0 offen offset:{ph*128} sc1")
    p("s_waitcnt vmcnt(0)")
    p(f"v_cmp_ne_u64 vcc, {sp(s_nonce)}, {vr(a,2)}")
    p(f"s_cbranch_vccz L_ok{L}")
    p.side_begin()
    p(f"s_add_u32 s{s_cnt}, s{s_cnt}, 1")
    p(f"s_cmp_lt_u32 s{s_cnt}, {KPOLL}")
    p(f"s_cbranch_scc1 L_poll{L}")
    p(f"s_cmp_eq_u32 s{s_cnt}, {KPOLL}")
    p(f"s_cbranch_scc0 L_pub{L}")
    p(f"s_cmp_eq_u32 s{s_w}, 0")
    p(f"s_cselect_b64 exec, 1, 0")
    p(f"buffer_store_dwordx2 {vr(g.vEp,2)}, v{g.vMyFl}, {srd(sWS)}, 0 offen offset:{FB0 + ph*128} sc1")
    p(f"s_mov_b64 exec, {mask}")
    p.label(f"L_pub{L}")
    p(f"buffer_load_dwordx2 {vr(a,2)}, v{va}, {srd(sWS)}, 0 offen offset:{FB0 + ph*128} sc1")
    p("s_waitcnt vmcnt(0)")
    p(f"v_cmp_ne_u64 vcc, {sp(s_nonce)}, {vr(a,2)}")
    p(f"s_cbranch_vccz L_ok{L}")
    p(f"s_cmp_lt_u32 s{s_cnt}, 0x80000")
    p(f"s_cbranch_scc1 L_poll{L}")
    p.side_end()
    p.label(f"L_ok{L}")
    p("s_mov_b64 exec, -1")
    V.free(a, 2); V.free(va)

def tr_base(p, dst, natural, tmp):
    t0, t1 = tmp
    p(f"v_bfe_u32 v{t0}, v0, 2, 2")
    p(f"v_lshrrev_b32 v{t1}, 5, v0")
    p(f"v_lshl_add_u32 v{t0}, v{t1}, {3 if natural else 2}, v{t0}")
    p(f"v_lshlrev_b32 v{t0}, 7, v{t0}")
    p(f"v_bfe_u32 v{t1}, v0, 3, 1")
    p(f"v_lshl_add_u32 v{t0}, v{t1}, 6, v{t0}")
    p(f"v_bfe_u32 v{t1}, v0, 4, 1")
    p(f"v_lshl_add_u32 v{t0}, v{t1}, 5, v{t0}")
    p(f"v_and_b32 v{t1}, 3, v0")
    p(f"v_lshl_add_u32 v{dst}, v{t1}, 3, v{t0}")

def phase2(p, g):
    V = g.V; cfg = g.cfg
    p.add(fifo_pairs(w1_dma(g, 0, range(cfg.w1a_early, 16))))
    get_nonce(p, g)
    vWa = [V.alloc() for _ in range(3)]; vWb = [V.alloc() for _ in range(3)]; vO = V.alloc()
    t0, t1 = V.alloc(), V.alloc()
    tr_base(p, t0, True, (t0, t1))
    p(f"s_lshl_b32 s{s_b}, s{s_nh}, 6")
    p(f"v_xor_b32 v{t0}, s{s_b}, v{t0}")
    for k, (base, stride) in enumerate(((L_WA, 12288), (L_WB, 12288), (L_WC, 8192))):
        p(f"s_mul_i32 s{s_a}, s{s_nh}, {stride}"); p(f"s_add_u32 s{s_a}, s{s_a}, {base}")
        p(f"v_add_u32 v{vWa[k]}, s{s_a}, v{t0}")
        p(f"v_xor_b32 v{vWb[k]}, 64, v{vWa[k]}")
    p(f"s_lshl_b32 s{s_a}, s{s_rt}, 17"); p(f"s_lshl_b32 s{s_b}, s{s_sh}, 16"); p(f"s_add_u32 s{s_a}, s{s_a}, s{s_b}")
    p(f"s_lshl_b32 s{s_b}, s{s_nh}, 15"); p(f"s_add_u32 s{s_a}, s{s_a}, s{s_b}")
    vFL = V.alloc()
    frag_lane(p, vFL, t0)
    p(f"v_add_u32 v{vO}, s{s_a}, v{vFL}")
    p(f"v_lshlrev_b32 v{t0}, 4, v0")
    vE, vE2, vH, vS = V.alloc(), V.alloc(), V.alloc(), V.alloc()
    p(f"s_lshl_b32 s{s_a}, s{s_w}, 12"); p(f"s_add_u32 s{s_a}, s{s_a}, {L_EX2}"); p(f"v_add_u32 v{vE}, s{s_a}, v{t0}")
    p(f"s_xor_b32 s{s_a}, s{s_w}, 2"); p(f"s_lshl_b32 s{s_a}, s{s_a}, 12"); p(f"s_add_u32 s{s_a}, s{s_a}, {L_EX2}"); p(f"v_add_u32 v{vE2}, s{s_a}, v{t0}")
    p(f"s_lshl_b32 s{s_a}, s{s_rt}, 1"); p(f"s_add_u32 s{s_a}, s{s_a}, s{s_sh}")
    p(f"s_lshl_b32 s{s_b}, s{s_a}, 16"); p(f"s_lshl_b32 s{s_c}, s{s_j}, 13"); p(f"s_add_u32 s{s_b}, s{s_b}, s{s_c}")
    p(f"s_lshl_b32 s{s_c}, s{s_nh}, 12"); p(f"s_add_u32 s{s_b}, s{s_b}, s{s_c}"); p(f"s_add_u32 s{s_b}, s{s_b}, {WS_H}")
    p(f"v_add_u32 v{vH}, s{s_b}, v{vFL}")
    p(f"s_lshl_b32 s{s_b}, s{s_a}, 13"); p(f"s_lshl_b32 s{s_c}, s{s_j}, 10"); p(f"s_add_u32 s{s_b}, s{s_b}, s{s_c}")
    p(f"s_lshl_b32 s{s_c}, s{s_nh}, 9"); p(f"s_add_u32 s{s_b}, s{s_b}, s{s_c}"); p(f"s_add_u32 s{s_b}, s{s_b}, {WS_ST}")
    p(f"v_lshlrev_b32 v{t1}, 3, v0"); p(f"v_add_u32 v{vS}, s{s_b}, v{t1}")
    V.free(t0); V.free(t1)
    g.vFL = vFL
    signal(p, g, 0, ["ost", "wo"])
    stamp(p, g, 4)
    for ks in range(16):
        k = 0 if ks < 6 else (1 if ks < 12 else 2)
        o = (ks - (0, 6, 12)[k]) * 2048
        for u in range(2):
            for rd in range(2):
                p(f"ds_read_b64_tr_b16 {ar(8*ks + 4*u + 2*rd, 2)}, v{(vWa, vWb)[u][k]} offset:{o + rd*512}")
    for r in vWa + vWb: V.free(r)
    acc = [V.alloc(16), V.alloc(16)]
    for k_ in range(8):
        p(f"v_lshlrev_b32 v{acc[0] + 2*k_}, 16, v{g.xres + k_}")
        p(f"v_and_b32 v{acc[0] + 2*k_ + 1}, 0xffff0000, v{g.xres + k_}")
    p.wait_lgkm0(); p("s_barrier")
    wait_flags(p, g, 0, True)
    stamp(p, g, 5)
    OF = V.alloc(64)
    for ks in range(16):
        if ks == 8: p(f"v_add_u32 v{vO}, {8*FS}, v{vO}")
        so, off = soff_for(ks & 7)
        p(f"buffer_load_dwordx4 {vr(OF+4*ks,4)}, v{vO}, {srd(sWS)}, {so} offen{off} sc1")
    w1b = w1_dma(g, 1, range(16))
    for ks in range(16):
        m = [m32(vr(acc[u], 16), ar(8*ks + 4*u), vr(OF + 4*ks, 4), "0" if (ks == 0 and u == 1) else vr(acc[u], 16)) for u in range(2)]
        pre, dma = w1b[ks]
        p.add([m[0]] + pre + [m[1], dma])
    V.free(OF, 64); V.free(vO)
    p.add(publish_b(g, 0))
    stamp(p, g, 6)
    q = Prog()
    for k in range(4): q(f"ds_write_b128 v{vE}, {vr(acc[1]+4*k,4)} offset:{k*1024}")
    A = acc[0]
    q.wait_lgkm0(); q("s_barrier")
    for k in range(4): q(f"ds_read_b128 {vr(acc[1]+4*k,4)}, v{vE2} offset:{k*1024}")
    for k in range(8):
        q(f"v_pk_add_f32 {vr(A + 2*k, 2)}, {vr(A + 2*k, 2)}, {vr(acc[1] + 2*k, 2)}")
    V.free(acc[1], 16); V.free(vE); V.free(vE2)
    hp = g.xres
    for k in range(8): q(f"v_cvt_pk_bf16_f32 v{hp+k}, v{A+2*k}, v{A+2*k+1}")
    V.free(A, 16)
    q(f"buffer_store_dwordx4 {vr(hp,4)}, v{vH}, {srd(sWS)}, 0 offen sc1", "hst")
    q(f"buffer_store_dwordx4 {vr(hp+4,4)}, v{vH}, {srd(sWS)}, 0 offen offset:{FS} sc1", "hst")
    SQ = V.alloc(2); t = V.alloc(2)
    q(f"v_mov_b32 v{SQ}, 0"); q(f"v_mov_b32 v{SQ+1}, 0")
    for k in range(8):
        q(f"v_dot2c_f32_bf16 v{SQ}, v{hp+k}, v{g.ones}")
        q(f"v_dot2c_f32_bf16 v{SQ+1}, v{hp+k}, v{hp+k}")
    q(f"v_mov_b32 v{t}, v{SQ}"); q(f"v_mov_b32 v{t+1}, v{SQ+1}")
    q(f"v_permlane32_swap_b32 v{SQ}, v{t}"); q(f"v_permlane32_swap_b32 v{SQ+1}, v{t+1}")
    q(f"v_add_f32 v{SQ}, v{SQ}, v{t}"); q(f"v_add_f32 v{SQ+1}, v{SQ+1}, v{t+1}")
    q("s_mov_b32 exec_hi, 0")
    q(f"buffer_store_dwordx2 {vr(SQ,2)}, v{vS}, {srd(sWS)}, 0 offen sc1", "hst")
    q("s_mov_b64 exec, -1")
    V.free(vH); V.free(vS); V.free(SQ, 2); V.free(t, 2)
    p.add(q.items)
    g.hp = hp
    stamp(p, g, 7)

NSTG = 8
def p4_read_bases(p, g):
    V = g.V
    g.vR = vR = [[V.alloc(), V.alloc()] for _ in range(3)]
    t = V.alloc()
    p(f"s_lshl_b32 s{s_a}, s{s_nh}, 6")
    p(f"v_xor_b32 v{t}, s{s_a}, v{g.vTrD}")
    for grp, sb in enumerate((s_b0, s_b1, s_b2)):
        p(f"v_add_u32 v{vR[grp][0]}, s{sb}, v{t}")
    p(f"v_xor_b32 v{t}, 64, v{t}")
    for grp, sb in enumerate((s_b0, s_b1, s_b2)):
        p(f"v_add_u32 v{vR[grp][1]}, s{sb}, v{t}")
    V.free(t)

def w2_reads(g, slot, dst):
    grp, off = w2_slot(slot)
    return [f"ds_read_b64_tr_b16 {dst(bb, r)}, v{g.vR[grp][bb]} offset:{off + r*1024}" for bb in range(2) for r in range(2)]

def phase3(p, g):
    V = g.V; cfg = g.cfg
    vW = [V.alloc() for _ in range(4)]
    t0, t1 = V.alloc(), V.alloc()
    tr_base(p, vW[0], False, (t0, t1))
    p(f"v_xor_b32 v{vW[1]}, 64, v{vW[0]}")
    p(f"v_add_u32 v{vW[2]}, 65536, v{vW[0]}")
    p(f"v_add_u32 v{vW[3]}, 65536, v{vW[1]}")
    g.vTrD = V.alloc()
    p(f"v_mov_b32 v{g.vTrD}, v{vW[0]}")
    p4_read_bases(p, g)
    V.free(g.vTrD)
    vC = V.alloc()
    p(f"s_lshl_b32 s{s_a}, s{s_sh}, 6"); p(f"s_lshl_b32 s{s_b}, s{s_nh}, 16")
    p(f"v_xor_b32 v{vC}, s{s_a}, v{vW[0]}"); p(f"v_add_u32 v{vC}, s{s_b}, v{vC}")
    sel = V.alloc(4)
    p(f"v_lshrrev_b32 v{t0}, 4, v0"); p(f"v_xor_b32 v{t0}, v{t0}, v0"); p(f"v_and_b32 v{t0}, 1, v{t0}")
    p(f"v_cmp_eq_u32 vcc, 0, v{t0}")
    p(f"v_mov_b32 v{t1}, 0")
    for r in range(4): p(f"v_cndmask_b32 v{sel+r}, v{t1}, v{g.ones}, vcc")
    vH, vS, vH1, vCw, vCr = (V.alloc() for _ in range(5))
    p(f"s_lshl_b32 s{s_a}, s{s_R}, 2"); p(f"s_add_u32 s{s_a}, s{s_a}, s{s_w}")
    p(f"s_lshl_b32 s{s_b}, s{s_a}, 16"); p(f"s_add_u32 s{s_b}, s{s_b}, {WS_H}")
    p(f"v_add_u32 v{vH}, s{s_b}, v{g.vFL}")
    p(f"s_mul_i32 s{s_b}, s{s_a}, {112*FS}"); p(f"s_lshl_b32 s{s_c}, s{s_i16c}, 14")
    p(f"s_add_u32 s{s_b}, s{s_b}, s{s_c}"); p(f"s_add_u32 s{s_b}, s{s_b}, {WS_H1}")
    p(f"v_add_u32 v{vH1}, s{s_b}, v{g.vFL}")
    vH1b = V.alloc()
    p(f"s_lshl_b32 s{s_c}, s{s_h1}, 6"); p(f"v_add_u32 v{vH1b}, s{s_c}, v{vH1}")
    p(f"s_lshl_b32 s{s_c}, s{s_h0}, 6"); p(f"v_add_u32 v{vH1}, s{s_c}, v{vH1}")
    p(f"s_lshl_b32 s{s_b}, s{s_a}, 13"); p(f"s_add_u32 s{s_b}, s{s_b}, {WS_ST}")
    p(f"v_and_b32 v{t1}, 31, v0"); p(f"v_lshlrev_b32 v{t1}, 3, v{t1}")
    p(f"v_lshrrev_b32 v{vS}, 5, v0"); p(f"v_lshl_add_u32 v{vS}, v{vS}, 9, v{t1}"); p(f"v_add_u32 v{vS}, s{s_b}, v{vS}")
    p(f"v_and_b32 v{t0}, 15, v0"); p(f"v_lshlrev_b32 v{t0}, 2, v{t0}"); p(f"s_lshl_b32 s{s_a}, s{s_w}, 7"); p(f"s_add_u32 s{s_a}, s{s_a}, {L_M}")
    p(f"v_add_u32 v{vCw}, s{s_a}, v{t0}")
    p(f"v_and_b32 v{t0}, 31, v0"); p(f"v_lshlrev_b32 v{t0}, 2, v{t0}"); p(f"v_add_u32 v{vCr}, {L_M}, v{t0}")
    signal(p, g, 1, ["hst", "w1a", "w1b"])
    stamp(p, g, 8)
    csacc = V.alloc(4); CF = [V.alloc(4) for _ in range(8)]
    def cr(ks): return [f"ds_read_b64_tr_b16 {vr(CF[ks % 8] + 2*rd, 2)}, v{vC} offset:{ks*2048 + rd*1024}" for rd in range(2)]
    for ks in range(6): p.add(cr(ks))
    for ks in range(32):
        if ks % 2 == 0: p(f"s_waitcnt lgkmcnt({8 if ks + 6 < 32 + 1 - 1 and ks <= 24 else max(0, 2 * (32 - ks - 2))})") if False else None
        p(m16k32(csacc, vr(sel, 4), vr(CF[ks % 8], 4), "0" if ks == 0 else vr(csacc, 4)))
        if ks + 6 < 32: p.add(cr(ks + 6))
    for b in CF: V.free(b, 4)
    V.free(sel, 4); V.free(vC)
    p(f"ds_write_b32 v{vCw}, v{csacc}")
    p(f"ds_write_b32 v{vCw}, v{csacc+1} offset:64")
    V.free(csacc, 4); V.free(vCw)
    p.wait_lgkm0(); p("s_barrier")
    CA = [V.alloc(4) for _ in range(4)]
    csv = V.alloc(4)
    for nt in range(4): p(f"ds_read_b32 v{csv+nt}, v{vCr} offset:{nt*128}")
    V.free(vCr)
    for nt in range(4):
        p(f"v_cvt_pk_bf16_f32 v{CA[nt]}, v{csv+nt}, v{csv+nt}")
        p(f"v_lshl_or_b32 v{CA[nt]+2}, v{g.vB1+nt}, 16, v{g.vB1+nt}")
        p(f"v_and_b32 v{t0}, 0xffff0000, v{CA[nt]}")
        p(f"v_mov_b32 v{CA[nt]+3}, 0")
        p(f"v_sub_f32 v{t1}, v{csv+nt}, v{t0}")
        p(f"v_cvt_pk_bf16_f32 v{CA[nt]+1}, v{t1}, v{t1}")
    V.free(csv, 4); V.free(g.vB1, 4)
    acc = [V.alloc(16) for _ in range(4)]
    WF = [V.alloc(4) for _ in range(6)]
    def rd(nt, ks, buf): return [f"ds_read_b64_tr_b16 {vr(buf + 2*r, 2)}, v{vW[nt]} offset:{ks*2048 + r*1024}" for r in range(2)]
    def rda(nt, ks): return [f"ds_read_b64_tr_b16 {ar(128 + 4*ks + 2*r, 2)}, v{vW[nt]} offset:{ks*2048 + r*1024}" for r in range(2)]
    p(f"s_cmp_eq_u32 s{s_j}, 3")
    p("s_cbranch_scc1 L_idle3")
    p.side_begin()
    p.add(rd(0, 0, WF[0]) + rd(1, 0, WF[1]) + rd(0, 1, WF[2]) + rd(1, 1, WF[3]))
    wait_flags(p, g, 1, False)
    stamp(p, g, 9)
    ST = V.alloc(16)
    def aload(ks):
        off = f" offset:{FS}" if ks & 1 else ""
        pre = [f"s_mov_b32 s{s_so}, {(ks >> 1) * 2 * FS}"] if (ks & 1) == 0 else []
        return pre + [f"buffer_load_dwordx4 {ar(4*ks)}, v{vH}, {srd(sWS)}, s{s_so} offen{off} sc1"]
    D = cfg.d3
    for ks in range(2): p.add(aload(ks))
    stl = [f"buffer_load_dwordx2 {vr(ST+2*q,2)}, v{vS}, {srd(sWS)}, {'0' if q < 4 else 's%d' % s_4k} offen offset:{(q & 3)*1024} sc1" for q in range(8)]
    p.add(stl)
    for ks in range(2, D): p.add(aload(ks))
    S, Qq = ST, ST + 1
    BM = V.alloc(4); KK = V.alloc(2); sdp = V.alloc(2); rs = V.alloc(); K1p = V.alloc(2)
    K2, K1, sd = KK, K1p, sdp
    U = V.alloc(16)
    u0, u1, u2, u3 = U, U + 1, U + 2, U + 3
    st = []
    for q in range(1, 8):
        st += [f"v_add_f32 v{S}, v{S}, v{ST+2*q}", f"v_add_f32 v{Qq}, v{Qq}, v{ST+2*q+1}"]
    st += [f"v_mov_b32 v{u0}, v{S}", f"v_mov_b32 v{u1}, v{Qq}", f"v_mov_b32 v{BM+3}, 0",
           f"v_permlane32_swap_b32 v{S}, v{u0}", f"v_permlane32_swap_b32 v{Qq}, v{u1}",
           f"v_add_f32 v{S}, v{S}, v{u0}", f"v_add_f32 v{Qq}, v{Qq}, v{u1}",
           f"v_mul_f32 v{u0}, {fl(1/512)}, v{S}",
           f"v_mul_f32 v{u1}, {fl(1/512)}, v{Qq}",
           f"v_add_f32 v{u1}, {fl(1e-5)}, v{u1}",
           f"v_fma_f32 v{u1}, -v{u0}, v{u0}, v{u1}",
           f"v_rsq_f32 v{rs}, v{u1}",
           f"v_mul_f32 v{u0}, -0.5, v{u0}",
           f"v_mul_f32 v{sd}, v{u1}, v{rs}",
           f"v_mul_f32 v{K1}, {fl(C1)}, v{rs}",
           f"v_mul_f32 v{u1}, v{rs}, v{rs}",
           f"v_mul_f32 v{u1}, v{u1}, v{rs}",
           f"v_mul_f32 v{K2}, {fl(C2)}, v{u1}"]
    st += split_hi_lo(u0, BM, u2, u3, True)
    st += [f"v_mul_f32 v{u0}, 0.5, v{sd}"]
    st += split_hi_lo(u0, BM + 2, u2, u3, False)
    def act(ks): return ar(4*ks)
    m = []; fixed = {}
    for ks in range(32):
        b0, b1 = WF[(2*ks) % 6], WF[(2*ks + 1) % 6]
        m.append(m32(vr(acc[0], 16), vr(b0, 4), act(ks), "0" if ks == 0 else vr(acc[0], 16)))
        m.append(m32(vr(acc[1], 16), vr(b1, 4), act(ks), "0" if ks == 0 else vr(acc[1], 16)))
        f0, f1 = [], []
        if ks + D < 32: f0 += aload(ks + D)
        if ks + 2 < 32:
            f0 += rd(0, ks + 2, WF[(2*ks + 4) % 6]); f1 += rd(1, ks + 2, WF[(2*ks + 5) % 6])
        f1 += rda(2, ks)
        fixed[2*ks] = f0; fixed[2*ks + 1] = f1
    seq, _ = weave(m, fixed, st, cap=5, start=8)
    p.add(seq)
    for nt in range(2): p(m32(vr(acc[nt], 16), vr(CA[nt], 4), vr(BM, 4), vr(acc[nt], 16)))
    p("s_barrier")
    stamp(p, g, 10)
    p.add(publish_b(g, 1))
    def gelu(nt, pk=False):
        A = acc[nt]; ops = []
        for blk in range(2):
            rs_ = [A + 8*blk + i for i in range(8)]
            Ub = U + 8*(blk & 1) if cfg.u16 else U
            if not pk:
                ops += [f"v_mul_f32 v{Ub+i}, v{rs_[i]}, v{rs_[i]}" for i in range(8)]
                ops += [f"v_fma_f32 v{Ub+i}, v{Ub+i}, v{K2}, v{K1}" for i in range(8)]
                ops += [f"v_mul_f32 v{Ub+i}, v{rs_[i]}, v{Ub+i}" for i in range(8)]
                ops += [f"v_exp_f32 v{Ub+i}, v{Ub+i}" for i in range(8)]
                ops += [f"v_fma_f32 v{Ub+i}, v{Ub+i}, v{sd}, v{sd}" for i in range(8)]
                ops += [f"v_rcp_f32 v{Ub+i}, v{Ub+i}" for i in range(8)]
                ops += [f"v_mul_f32 v{rs_[i]}, v{rs_[i]}, v{Ub+i}" for i in range(8)]
            else:
                P = lambda r: vr(r, 2)
                ops += [f"v_pk_mul_f32 {P(Ub+2*i)}, {P(rs_[2*i])}, {P(rs_[2*i])}" for i in range(4)]
                ops += [f"v_pk_fma_f32 {P(Ub+2*i)}, {P(Ub+2*i)}, {P(K2)}, {P(K1)} op_sel_hi:[1,0,0]" for i in range(4)]
                ops += [f"v_pk_mul_f32 {P(Ub+2*i)}, {P(rs_[2*i])}, {P(Ub+2*i)}" for i in range(4)]
                ops += [f"v_exp_f32 v{Ub+i}, v{Ub+i}" for i in range(8)]
                ops += [f"v_pk_fma_f32 {P(Ub+2*i)}, {P(Ub+2*i)}, {P(sd)}, {P(sd)} op_sel_hi:[1,0,0]" for i in range(4)]
                ops += [f"v_rcp_f32 v{Ub+i}, v{Ub+i}" for i in range(8)]
                ops += [f"v_pk_mul_f32 {P(rs_[2*i])}, {P(rs_[2*i])}, {P(Ub+2*i)}" for i in range(4)]
            ops += [f"v_cvt_pk_bf16_f32 v{A + 8*blk + k}, v{rs_[2*k]}, v{rs_[2*k+1]}" for k in range(4)]
            idx = 2*nt + blk
            so, off = soff_for(idx & 3)
            ops.append(T(f"buffer_store_dwordx4 {vr(A + 8*blk, 4)}, v{(vH1, vH1b)[idx >> 2]}, {srd(sWS)}, {so} offen{off} sc1", "h1st"))
        return ops
    if cfg.stage:
        for b in WF: V.free(b, 4)
        V.free(ST, 16)
        SG = g.SG = [V.alloc(8) for _ in range(NSTG)]
        g0, g1 = gelu(0), gelu(1)
        m = []; fixed = {}
        for ks in range(32):
            m.append(m32(vr(acc[2], 16), ar(128 + 4*ks), act(ks), "0" if ks == 0 else vr(acc[2], 16)))
            fixed[ks] = rda(3, ks)
        m.append(m32(vr(acc[2], 16), vr(CA[2], 4), vr(BM, 4), vr(acc[2], 16)))
        p.wait_lgkm0()
        seq, rem = weave(m, fixed, dma_fifo(w2_range(g, 19, 3, NSTG)) + g0 + g1, cap=cfg.capB, tail=False)
        p.add(seq)
        p.wait_lgkm0(); p("s_barrier")
        if cfg.stamps >= 2: stamp(p, g, 30)
        m = [m32(vr(acc[3], 16), ar(128 + 4*ks), act(ks), "0" if ks == 0 else vr(acc[3], 16)) for ks in range(32)]
        m.append(m32(vr(acc[3], 16), vr(CA[3], 4), vr(BM, 4), vr(acc[3], 16)))
        stg = [("wait_vm", [f"w2_{19 + k_}" for k_ in range(NSTG)])]
        for k_ in range(NSTG): stg += w2_reads(g, 3 + k_, lambda bb, r, k_=k_: vr(SG[k_] + 4*bb + 2*r, 2))
        nrem = cfg.crem
        fC = dma_fifo(w2_range(g, 11, 11, 8)) + rem[:nrem] + stg + rem[nrem:nrem + 8] + [("wait_lgkm0",)] + dma_fifo(w2_range(g, 3, 3, 8)) + rem[nrem + 8:]
        seq, rem = weave(m, {}, fC, cap=cfg.capC, tail=False)
        p.add(seq)
        stamp(p, g, 11)
        p.add(rem)
        p.add(gelu(2, pk=bool(cfg.pktail)))
        p.add(gelu(3, pk=bool(cfg.pktail)))
        p.wait_vm(["h1st"])
        for b in acc: V.free(b, 16)
        V.free(BM, 4); V.free(KK, 2); V.free(sdp, 2); V.free(K1p, 2); V.free(rs); V.free(U, 16)
    else:
        for b in WF: V.free(b, 4)
        V.free(ST, 16)
        g0 = gelu(0)
        m = []; fixed = {}
        for ks in range(32):
            m.append(m32(vr(acc[2], 16), ar(128 + 4*ks), act(ks), "0" if ks == 0 else vr(acc[2], 16)))
            fixed[ks] = rda(3, ks)
        m.append(m32(vr(acc[2], 16), vr(CA[2], 4), vr(BM, 4), vr(acc[2], 16)))
        def place_dma(fixed, pairs, g0_, step):
            for k_, (pre, dma) in enumerate(pairs):
                gk = g0_ + k_ * step
                fixed.setdefault(gk, []).extend(pre)
                fixed.setdefault(gk + 1, []).insert(0, dma)
        pb = w2_range(g, 0, 0, 3) + w2_range(g, 3, 3, 8)
        for k_, (pre, dma) in enumerate(pb):
            gk = (k_ * 31) // len(pb)
            fixed.setdefault(gk, []).extend(pre)
            fixed.setdefault(gk + 1, []).insert(0, dma)
        p.wait_lgkm0()
        seq, rem = weave(m, fixed, g0, cap=cfg.capB, tail=False)
        p.add(seq)
        p.wait_lgkm0(); p("s_barrier")
        if cfg.stamps >= 2: stamp(p, g, 30)
        m = [m32(vr(acc[3], 16), ar(128 + 4*ks), act(ks), "0" if ks == 0 else vr(acc[3], 16)) for ks in range(32)]
        m.append(m32(vr(acc[3], 16), vr(CA[3], 4), vr(BM, 4), vr(acc[3], 16)))
        fixed = {}
        place_dma(fixed, w2_range(g, 11, 11, 8), 0, 2)
        more = gelu(1) if cfg.g1c else []
        seq, rem = weave(m, fixed, rem + more, cap=cfg.capC, tail=False)
        p.add(seq)
        stamp(p, g, 11)
        p.add(rem)
        if not cfg.g1c: p.add(gelu(1, pk=True))
        p.add(gelu(2, pk=True)); p.add(gelu(3, pk=True))
        p.wait_vm(["h1st"])
        for b in acc: V.free(b, 16)
        V.free(BM, 4); V.free(KK, 2); V.free(sdp, 2); V.free(K1p, 2); V.free(rs); V.free(U, 16)
    p.side_end()
    p.label("L_merge3")
    q = Prog()
    q.label("L_idle3")
    q.add(publish_b(g, 1))
    if cfg.stage:
        q.add(fifo_pairs(w2_range(g, 19, 3, NSTG)))
        q.add(fifo_pairs(w2_range(g, 11, 11, 8)))
        q.wait_vm([f"w2_{19 + k_}" for k_ in range(NSTG)])
        for k_ in range(NSTG): q.add(w2_reads(g, 3 + k_, lambda bb, r, k_=k_: vr(g.SG[k_] + 4*bb + 2*r, 2)))
        q.wait_lgkm0()
        q.add(fifo_pairs(w2_range(g, 3, 3, 8)))
        q("s_waitcnt vmcnt(0)")
    else:
        q.add(fifo_pairs(w2_range(g, 0, 0, 3))); q.add(fifo_pairs(w2_range(g, 3, 3, 8))); q.add(fifo_pairs(w2_range(g, 11, 11, 8)))
        q("s_waitcnt vmcnt(0)")
    q("s_branch L_merge3")
    g.tail_blocks.append(q)
    for b in CA: V.free(b, 4)
    V.free(t0); V.free(t1)
    for r in vW + [vH, vS, vH1, vH1b]: V.free(r)

def phase4(p, g):
    V = g.V; cfg = g.cfg
    p.items.append(("assume_vm", []))
    signal(p, g, 2, [])
    stamp(p, g, 12)
    acc = [V.alloc(16) for _ in range(4)]
    t = V.alloc(4)
    for q in range(8):
        p(f"v_lshlrev_b32 v{acc[0]+2*q}, 16, v{g.hp+q}")
        p(f"v_and_b32 v{acc[0]+2*q+1}, 0xffff0000, v{g.hp+q}")
        p(f"v_lshlrev_b32 v{t}, 16, v{g.vB2+q}")
        p(f"v_and_b32 v{t+1}, 0xffff0000, v{g.vB2+q}")
        p(f"v_pk_add_f32 {vr(acc[0]+2*q,2)}, {vr(acc[0]+2*q,2)}, {vr(t,2)}")
    V.free(t, 4); V.free(g.vB2, 8); V.free(g.hp, 8)
    vA = [V.alloc(), V.alloc()]; t1 = V.alloc()
    p(f"v_lshlrev_b32 v{t1}, 4, v0")
    for a_ in range(2):
        p(f"s_xor_b32 s{s_a}, s{s_sh}, {a_}")
        p(f"s_lshl_b32 s{s_b}, s{s_rt}, 1"); p(f"s_add_u32 s{s_a}, s{s_a}, s{s_b}")
        p(f"s_mul_i32 s{s_a}, s{s_a}, {112*FS}")
        p(f"s_mul_i32 s{s_b}, s{s_w}, {28*FS}"); p(f"s_add_u32 s{s_a}, s{s_a}, s{s_b}")
        p(f"s_add_u32 s{s_a}, s{s_a}, {WS_H1}")
        p(f"v_add_u32 v{vA[a_]}, s{s_a}, v{g.vFL}")
    V.free(g.vFL)
    vE, vP, vOut = V.alloc(), [V.alloc() for _ in range(3)], V.alloc()
    p(f"v_add_u32 v{vE}, s{s_b1}, v{t1}")
    for u in range(1, 4):
        p(f"s_xor_b32 s{s_a}, s{s_w}, {u}"); p(f"s_lshl_b32 s{s_a}, s{s_a}, 14"); p(f"v_add_u32 v{vP[u-1]}, s{s_a}, v{t1}")
    p(f"s_lshl_b32 s{s_a}, s{s_rt}, 6"); p(f"s_lshl_b32 s{s_b}, s{s_sh}, 5"); p(f"s_add_u32 s{s_a}, s{s_a}, s{s_b}")
    p(f"s_lshl_b32 s{s_a}, s{s_a}, 10")
    p(f"s_lshl_b32 s{s_b}, s{s_j}, 7"); p(f"s_add_u32 s{s_a}, s{s_a}, s{s_b}")
    p(f"s_lshl_b32 s{s_b}, s{s_nh}, 6"); p(f"s_add_u32 s{s_a}, s{s_a}, s{s_b}")
    p(f"v_and_b32 v{vOut}, 31, v0"); p(f"v_lshlrev_b32 v{vOut}, 10, v{vOut}")
    p(f"v_lshrrev_b32 v{t1}, 5, v0"); p(f"v_lshl_add_u32 v{vOut}, v{t1}, 4, v{vOut}"); p(f"v_add_u32 v{vOut}, s{s_a}, v{vOut}")
    V.free(t1)
    WF = [V.alloc(8) for _ in range(3)]
    if cfg.stage:
        lds_units = list(range(19)) + [27]
        slot_map = {u: (u if u < 19 else 0) for u in lds_units}
        stream = {1: w2_dma_to(g, 27, 0)}
    else:
        lds_units = list(range(28))
        slot_map = {u: (u if u < 19 else u - 19) for u in lds_units}
        stream = {2: w2_dma_to(g, 19, 0, 2), 3: w2_dma_to(g, 21, 2), 5: w2_dma_to(g, 22, 3, 2), 7: w2_dma_to(g, 24, 5, 2), 9: w2_dma_to(g, 26, 7, 2)}
    ring = {u: WF[i % 3] for i, u in enumerate(lds_units)}
    def reads(u): return w2_reads(g, slot_map[u], lambda bb, r: vr(ring[u] + 4*bb + 2*r, 2))
    p.add(reads(0)); p.add(reads(1))
    wait_flags(p, g, 2, False)
    stamp(p, g, 13)
    def hreg(u, a_): return 8*u + 4*a_
    def loads(u):
        out = []
        if (u & 1) == 0: out.append(f"s_mov_b32 s{s_so2}, {(u >> 1) * 2 * FS}")
        off = f" offset:{FS}" if u & 1 else ""
        for a_ in range(2):
            out.append(T(f"buffer_load_dwordx4 {ar(hreg(u, a_))}, v{vA[a_]}, {srd(sWS)}, s{s_so2} offen{off} sc1", f"h1_{u}"))
        return out
    D = cfg.d4
    for u in range(D): p.add(loads(u))
    nxt = {lds_units[i]: lds_units[i + 2] for i in range(len(lds_units) - 2)}
    for u in range(28):
        m = []
        for bb in range(2):
            A_ = vr(ring[u] + 4*bb, 4) if u in ring else vr(g.SG[u - 19] + 4*bb, 4)
            for a_ in range(2):
                d = vr(acc[2*bb + a_], 16)
                first = (u == 0 and 2*bb + a_ != 0)
                m.append(m32(d, A_, ar(hreg(u, a_)), "0" if first else d))
        ld = loads(u + D) if u + D < 28 else []
        rd_ = []
        if u in nxt:
            un = nxt[u]
            rd_ = [("wait_vm", [f"w2_{un}"])] + reads(un)
        dm = stream.get(u, [])
        pre = dm[0][0] if dm else []
        dmas = [d for _, d in dm]
        seq = [m[0]] + ld[:-1] + [m[1]] + ld[-1:] + rd_ + pre + [m[2]] + dmas[:2] + [m[3]] + dmas[2:]
        p.add(seq)
    for b in WF: V.free(b, 8)
    if cfg.stage:
        for b in g.SG: V.free(b, 8)
    for g_ in g.vR:
        for r in g_: V.free(r)
    for r in vA: V.free(r)
    stamp(p, g, 14)
    for u in range(1, 4):
        for q in range(4): p(f"ds_write_b128 v{vE}, {vr(acc[u]+4*q,4)} offset:{(u-1)*4096 + q*1024}")
    p.add(publish_b(g, 2))
    p.wait_lgkm0(); p("s_barrier")
    for u in range(1, 4):
        for q in range(4): p(f"ds_read_b128 {vr(acc[u]+4*q,4)}, v{vP[u-1]} offset:{(u-1)*4096 + q*1024}")
    A = acc[0]
    for u in range(1, 4):
        for q in range(8): p(f"v_pk_add_f32 {vr(A+2*q,2)}, {vr(A+2*q,2)}, {vr(acc[u]+2*q,2)}")
    for q in range(8): p(f"v_cvt_pk_bf16_f32 v{A+q}, v{A+2*q}, v{A+2*q+1}")
    for q in (0, 2):
        p(f"v_permlane32_swap_b32 v{A+2*q}, v{A+2*q+2}")
        p(f"v_permlane32_swap_b32 v{A+2*q+1}, v{A+2*q+3}")
    om = {0: "", 1: " sc1", 2: " nt", 3: " sc0 sc1"}[cfg.outmode]
    p(f"buffer_store_dwordx4 {vr(A,4)}, v{vOut}, {srd(sOUT)}, 0 offen{om}")
    p(f"buffer_store_dwordx4 {vr(A+4,4)}, v{vOut}, {srd(sOUT)}, 0 offen offset:32{om}")
    p(f"s_lshl_b32 s{s_a}, s{s_R}, 10"); p(f"s_add_u32 s{s_a}, s{s_a}, {WS_FL}")
    p(f"v_mov_b32 v{vE}, s{s_a}")
    p(f"s_or_b32 s{s_b}, s{s_i16}, s{s_w}")
    p(f"s_cmp_eq_u32 s{s_b}, 0")
    p("s_cselect_b64 exec, 1, 0")
    p(f"buffer_store_dwordx2 {vr(g.vEp,2)}, v{vE}, {srd(sWS)}, 0 offen offset:{FEP}")
    p("s_mov_b64 exec, -1")
    V.free(vE); V.free(vOut)
    for r in vP: V.free(r)
    for b in acc: V.free(b, 16)

def build(cfg):
    g = G(); g.cfg = cfg; g.tail_blocks = []
    g.V = V = Pool(1, 256)
    V.take(1, 1)
    g.vdummy = V.take(252, 4)
    if cfg.stamps: g.vstamp = V.take(251, 1)
    g.ones = V.alloc(4)
    p = Prog()
    prologue(p, g)
    if cfg.stamps:
        p(f"v_mov_b32 v{g.vstamp}, 0")
        p(f"s_memrealtime {sp(s_stamp)}"); p("s_waitcnt lgkmcnt(0)")
        p(f"v_writelane_b32 v{g.vstamp}, s{s_stamp}, 16")
        stamp(p, g, 0)
    for _ in range(cfg.startsleep): p("s_sleep 127")
    p1_addresses(p, g)
    p.add(xgroup_sregs(0, 0)); p.add(xgroup_sregs(1, 1)); p.add(xgroup_sregs(2, 2))
    if cfg.stamps >= 2: stamp(p, g, 18)
    p("s_waitcnt lgkmcnt(0)")
    if cfg.stamps >= 2: stamp(p, g, 19)
    p.add(make_srd(sX, 4, 2048*512*2)); p.add(make_srd(sWQ, 6, 512*1536*2))
    setup = setup_ops(g)
    burst = dma_x(g, 0, 0) + dma_w(g, 0)
    if cfg.burst in (0, 1): burst += dma_x(g, 1, 1)
    if cfg.burst == 0: burst += dma_w(g, 1)
    seps = list(setup)
    per = -(-len(seps) // len(burst))
    p.add(pairs_with_sep(burst, seps, per - 1))
    if cfg.stamps >= 2: stamp(p, g, 20)
    p.add(seps)
    phase1(p, g)
    phase1_epilogue(p, g)
    stamp(p, g, 3)
    if cfg.stop_after >= 2: phase2(p, g)
    if cfg.stop_after >= 3: phase3(p, g)
    if cfg.stop_after >= 4: phase4(p, g)
    if cfg.stamps:
        p("s_waitcnt vmcnt(0)")
        stamp(p, g, 15)
        p(f"s_memrealtime {sp(s_stamp)}"); p("s_waitcnt lgkmcnt(0)")
        p(f"v_writelane_b32 v{g.vstamp}, s{s_stamp}, 17")
        p(f"s_lshl_b32 s{s_t0}, s2, 2"); p(f"s_add_u32 s{s_t0}, s{s_t0}, s{s_w}")
        p(f"s_lshl_b32 s{s_t0}, s{s_t0}, 8"); p(f"s_add_u32 s{s_t0}, s{s_t0}, {WS_DBG}")
        p(f"v_lshlrev_b32 v1, 2, v0"); p(f"v_add_u32 v1, s{s_t0}, v1")
        p(f"buffer_store_dword v{g.vstamp}, v1, {srd(sWS)}, 0 offen")
    for _ in range(cfg.endsleep): p("s_sleep 127")
    p.label("L_end")
    p("s_endpgm")
    items, stats = finalize(p)
    body = render(items)
    for q in g.tail_blocks:
        it2, _ = finalize(q)
        body += render(it2)
    body += "L_code_end:\n    s_endpgm\n"
    hdr = open("cdna_kernels/" + NAME + ".s.ref").read().split("; Override launch geometry")[0]
    out = hdr
    out += "; Override launch geometry by editing the next line (default: block=256,\n"
    out += f"; @launch grid=(256,1,1) block=(256,1,1) lds={LDS_SIZE}\n"
    out += '.amdgcn_target "amdgcn-amd-amdhsa--gfx950"\n.text\n'
    out += f".globl {KNAME}\n.p2align 8\n.type {KNAME},@function\n{KNAME}:\n"
    out += body
    out += f'''.section .rodata,"a"
.p2align 6
.amdhsa_kernel {KNAME}
  .amdhsa_next_free_vgpr 512
  .amdhsa_next_free_sgpr 102
  .amdhsa_accum_offset 256
  .amdhsa_group_segment_fixed_size 0
  .amdhsa_kernarg_size 88
  .amdhsa_user_sgpr_count 2
  .amdhsa_user_sgpr_kernarg_segment_ptr 1
  .amdhsa_system_sgpr_workgroup_id_x 1
.end_amdhsa_kernel
'''
    stats["ninstr"] = sum(1 for i in items if i.kind not in ("none", "label")); stats["vhigh"] = V.high
    return out, stats

if __name__ == "__main__":
    cfg = Cfg()
    outp = sys.argv[1]
    for a in sys.argv[2:]:
        k, v = a.split("=")
        setattr(cfg, k, int(v))
    s, st = build(cfg)
    open(outp, "w").write(s)
    print(st)
```
